```python
import torch

def _softmax(x, axis=-1):
    return torch.softmax(x, dim=axis)
def _gelu(x):
    return torch.nn.functional.gelu(x, approximate="tanh")
def _silu(x):
    return torch.nn.functional.silu(x)
def _sigmoid(x):
    return torch.sigmoid(x)
def _layernorm(x, axis=-1, eps=1e-5):
    m = x.mean(dim=axis, keepdim=True)
    v = x.var(dim=axis, keepdim=True, unbiased=False)
    return (x - m) / torch.sqrt(v + eps)
def _scatter_add(tgt, idx, src, axis=0):
    return tgt.clone().index_add_(axis, idx, src)
def _segment_sum(src, seg, n):
    out = torch.zeros((n,) + src.shape[1:], dtype=src.dtype)
    return out.index_add_(0, seg, src)
def _pad(x, pw):
    flat = tuple(v for pair in reversed(pw) for v in pair)
    return torch.nn.functional.pad(x, flat)

kernel_name = 'gated_mix__grouped_kv_mqa__glu_gated_glu__prompt'

def setup_inputs():

    _w = (lambda a: (lambda t: t.to(torch.bfloat16) if t.is_floating_point() else t)(torch.as_tensor(a)))
    def _A_setup():
        B, S, D, H = 1, 2048, 1024, 32
        Dh = D // H
        return {
            "x": _w((lambda *s: torch.randn(*s, dtype=torch.bfloat16) * 0.05)(B, S, D)),
            "wq": _w((lambda *s: torch.randn(*s, dtype=torch.bfloat16) * 0.8)(D, H * Dh)),
            "wk": _w((lambda *s: torch.randn(*s, dtype=torch.bfloat16) * 0.8)(D, Dh)),
            "wv": _w((lambda *s: torch.randn(*s, dtype=torch.bfloat16) * 0.2)(D, Dh)),
            "wo": _w((lambda *s: torch.randn(*s, dtype=torch.bfloat16) * 0.2)(H * Dh, D)),
        }
    _A_in = _A_setup()

    def _B_setup():
        B, S, D, F = 1, 2048, 1024, 3584
        return {
            "x": _w((lambda *s: torch.randn(*s, dtype=torch.bfloat16) * 0.05)(B, S, D)),
            "w_gate": _w((lambda *s: torch.randn(*s, dtype=torch.bfloat16) * 1.6)(D, F)),
            "w_up": _w((lambda *s: torch.randn(*s, dtype=torch.bfloat16) * 0.05)(D, F)),
            "w_down": _w((lambda *s: torch.randn(*s, dtype=torch.bfloat16) * 0.05)(F, D)),
        }
    _B_in = _B_setup()

    return {
        "A_x": _A_in["x"],
        "A_wq": _A_in["wq"],
        "A_wk": _A_in["wk"],
        "A_wv": _A_in["wv"],
        "A_wo": _A_in["wo"],
        "B_x": _B_in["x"],
        "B_w_gate": _B_in["w_gate"],
        "B_w_up": _B_in["w_up"],
        "B_w_down": _B_in["w_down"],
        "gate_w": _w((lambda *s: torch.randn(*s, dtype=torch.bfloat16) * 0.05)(1024) * 16.0),
    }

def reference(A_x, A_wq, A_wk, A_wv, A_wo, B_x, B_w_gate, B_w_up, B_w_down, gate_w):
    def _A_ref(x, wq, wk, wv, wo):
        B, S, D = x.shape
        H = 32
        Dh = D // H
        q = (lambda x, *d: x.permute(*d))((x @ wq).reshape(B, S, H, Dh), 0, 2, 1, 3)
        k = x @ wk
        v = x @ wv
        scores = torch.einsum("bhqd,bkd->bhqk", q, k) * (Dh ** -0.5)
        p = _softmax(scores, axis=-1)
        o = torch.einsum("bhqk,bkd->bhqd", p, v)
        return (lambda x, *d: x.permute(*d))(o, 0, 2, 1, 3).reshape(B, S, H * Dh) @ wo

    def _B_ref(x, w_gate, w_up, w_down):
        g = torch.einsum("bsd,df->bsf", x, w_gate)
        u = torch.einsum("bsd,df->bsf", x, w_up)
        h = _sigmoid(g) * u
        return torch.einsum("bsf,fd->bsd", h, w_down)

    x = A_x
    g = _sigmoid((x * gate_w).sum(-1, keepdims=True))
    a = _A_ref(x, A_wq, A_wk, A_wv, A_wo)
    b = _B_ref(x, B_w_gate, B_w_up, B_w_down)
    return g * a + (1 - g) * b
```

```python
import struct

class Asm:
    def __init__(self):
        self.l = []
    def __call__(self, txt):
        for t in txt.strip("\n").split("\n"):
            t = t.strip()
            if not t: continue
            if t.endswith(":"): self.l.append(t)
            else: self.l.append("    " + t)
    def lab(self, name): self.l.append(name + ":")
    def raw(self, t): self.l.append(t)
    def text(self): return "\n".join(self.l) + "\n"

def f2u(x): return struct.unpack("<I", struct.pack("<f", x))[0]
def hx(x): return "0x%x" % (x & 0xffffffff)
def vr(a, n=1): return f"v{a}" if n == 1 else f"v[{a}:{a+n-1}]"
def sr(a, n=1): return f"s{a}" if n == 1 else f"s[{a}:{a+n-1}]"

class LQ:
    def __init__(self, maxv): self.q = []; self.maxv = maxv
    def push(self, tag): self.q.append(tag)
    def need(self, tags):
        idx = max([i for i, t in enumerate(self.q) if t in tags], default=-1)
        n = min(len(self.q) - 1 - idx, self.maxv)
        self.q = self.q[len(self.q)-n:]
        return n

WS_H    = 0x0
WS_Q    = 0x1000000
WS_KV   = 0x1400000
WS_GATE = 0x1480000
WS_O    = 0x1800000
WS_FLAG = 0x1C00000
WS_F1   = 0x1C01000
WS_FQ   = 0x1C02000
NREP = 32
WS_SIZE = 0x2000000

LOG2E = 1.4426950408889634
QSCALE = LOG2E * (32 ** -0.5)

def kernel_desc(name, vgpr=256, sgpr=102):
    return f""".section .rodata,"a"
.p2align 6
.amdhsa_kernel {name}
  .amdhsa_next_free_vgpr {vgpr}
  .amdhsa_next_free_sgpr {sgpr}
  .amdhsa_accum_offset {vgpr}
  .amdhsa_group_segment_fixed_size 0
  .amdhsa_kernarg_size 104
  .amdhsa_user_sgpr_count 2
  .amdhsa_user_sgpr_kernarg_segment_ptr 1
  .amdhsa_system_sgpr_workgroup_id_x 1
.end_amdhsa_kernel
"""
```

```python
from common import *

XSZ = 32768
WB = 98304; WSZ = 32768
KVB = 65536; KVSZ = 8192
K1_LDS = 163840

V_X0, V_X1, V_W0, V_W1, V_KV = 1, 2, 3, 4, 5
V_DX = 6
V_DW = 8
V_DKV = 12
V_P, V_PD, V_GA, V_GO, V_GX, V_GW, V_GZ = 6, 7, 8, 9, 10, 11, 12
V_GT = 14
V_ST, V_ST2 = 14, 15
KVW = 16
KVA = 24
WF = 32
XF = 96
ACC = 128
def acc(u, s): return ACC + (u*4+s)*4
def wf(st, s, kh): return WF + st*32 + s*8 + kh*4
def xf(u, kh): return XF + (u & 3)*8 + kh*4

S_WAVE = 3
SRD_X, SRD_W0, SRD_W1, SRD_K, SRD_V, SRD_WS, SRD_G, SRD_P = 8, 12, 16, 20, 24, 44, 48, 52
S_MT, S_NT, S_Q, S_WM, S_WN = 56, 57, 58, 59, 60
S_XA = 61
S_WK, S_KVK, S_WSTEP = 65, 66, 67
S_XT, S_XT1, S_XT2 = 68, 69, 70
S_WT, S_KVT = 71, 72
S_D, S_D2, S_CNT, S_C32 = 73, 74, 75, 76
S_PK, S_PSTEP, S_GK, S_MSK = 77, 78, 79, 80
S_ROT = 81
S_E0, S_E1, S_E2, S_E3 = 82, 83, 84, 85
ST = 86

def gen_k1(name="k1_kernel", stamp=False, abl=()):
    PD = 1
    for x in abl:
        if x.startswith("pd"): PD = int(x[2:])
    pf = "nopf" not in abl
    RN = RM = 0
    for x in abl:
        if x.startswith("rn"): RN = int(x[2:])
        if x.startswith("rm"): RM = int(x[2:])
    uniq = "uniq" in abl
    a = Asm()
    def stp(o, i, real=False):
        if stamp:
            o(f"{'s_memrealtime' if real else 's_memtime'} s[4:5]\ns_waitcnt lgkmcnt(0)\ns_mov_b32 s{ST+i}, s4")
    T = 96
    a.raw(f".globl {name}\n.p2align 8\n.type {name},@function\n{name}:")
    if stamp: a(f"s_memtime s[{ST}:{ST+1}]\ns_memrealtime s[{ST+2}:{ST+3}]")
    a(f"""
    s_load_dwordx4 s[28:31], s[0:1], 0
    s_load_dwordx4 s[36:39], s[0:1], 48
    s_load_dwordx4 s[32:35], s[0:1], 16
    s_load_dwordx2 s[40:41], s[0:1], 72
    s_load_dwordx2 s[42:43], s[0:1], 96
    s_cmp_ge_u32 s2, 256
    s_cbranch_scc1 {name}_end
    v_lshrrev_b32 v1, 6, v0
    v_and_b32 v0, 63, v0
    v_readfirstlane_b32 s{S_WAVE}, v1
    s_and_b32 s4, s2, 7
    s_lshr_b32 s5, s2, 3
    s_and_b32 s6, s4, 1
    s_lshl_b32 s6, s6, 2
    s_and_b32 s7, s5, 3
    s_add_u32 s{S_MT}, s6, s7
    s_lshr_b32 s4, s4, 1
    s_lshl_b32 s4, s4, 3
    s_lshr_b32 s5, s5, 2
    s_add_u32 s{S_NT}, s4, s5
    s_lshr_b32 s4, s{S_NT}, 3
    s_mul_i32 s4, s4, {RN}
    s_lshr_b32 s5, s{S_MT}, 2
    s_mul_i32 s5, s5, {RM}
    s_add_u32 s4, s4, s5
    s_and_b32 s{S_ROT}, s4, 15
    s_lshr_b32 s{S_WM}, s{S_WAVE}, 2
    s_and_b32 s{S_WN}, s{S_WAVE}, 3
    s_sub_u32 s{S_Q}, s{S_NT}, 28
    s_cselect_b32 s{S_Q}, 0, s{S_Q}
    s_cselect_b32 s4, 7168, 0
    s_cselect_b32 s5, 0, 2048
    s_add_u32 s4, s4, s5
    s_lshl_b32 s5, s{S_NT}, 8
    s_lshl_b32 s6, s{S_Q}, 9
    s_cmp_ge_u32 s{S_NT}, 28
    s_cselect_b32 s5, s6, s5
    s_lshl_b32 s{S_WSTEP}, s4, 6
    s_mov_b32 s{SRD_X+2}, 0x400000
    s_mov_b32 s{SRD_X+3}, 0x20000
    s_mov_b32 s{SRD_W0+3}, 0x20000
    s_mov_b32 s{SRD_W1+3}, 0x20000
    s_mov_b32 s{SRD_WS+2}, {hx(WS_SIZE)}
    s_mov_b32 s{SRD_WS+3}, 0x20000
    s_mov_b32 s{S_C32}, {hx(XSZ)}
    s_cmp_lt_u32 s{S_WAVE}, 4
    s_cbranch_scc1 {name}_cpro
    """)
    def srd_w(o):
        o(f"""
        s_add_u32 s6, s30, 256
        s_addc_u32 s7, s31, 0
        s_cmp_ge_u32 s{S_NT}, 28
        s_cselect_b32 s{SRD_W0}, s30, s36
        s_cselect_b32 s{SRD_W0+1}, s31, s37
        s_cselect_b32 s{SRD_W1}, s6, s38
        s_cselect_b32 s{SRD_W1+1}, s7, s39
        s_mov_b32 s6, 0x700000
        s_cselect_b32 s{SRD_W0+2}, 0x200000, s6
        s_cselect_b32 s{SRD_W1+2}, 0x1fff00, s6
        s_mov_b32 s{SRD_X}, s28
        s_mov_b32 s{SRD_X+1}, s29
        """)
    def lds_addrs(o):
        o(f"""
        v_and_b32 v{T}, 15, v0
        v_lshrrev_b32 v{T+1}, 4, v0
        s_lshl_b32 s6, s{S_WM}, 14
        v_lshlrev_b32 v{T+2}, 7, v{T}
        v_add_u32 v{T+2}, s6, v{T+2}
        v_lshrrev_b32 v{T+3}, 1, v{T}
        v_xor_b32 v{T+3}, v{T+3}, v{T+1}
        v_lshl_add_u32 v{V_X0}, v{T+3}, 4, v{T+2}
        v_xor_b32 v{V_X1}, 64, v{V_X0}
        v_bfe_u32 v{T+2}, v0, 2, 2
        v_and_b32 v{T+3}, 3, v0
        v_lshl_add_u32 v{T+4}, v{T+1}, 3, v{T+2}
        v_and_b32 v{T+5}, 1, v{T+1}
        v_lshl_or_b32 v{T+6}, v{T+5}, 2, v{T+2}
        s_lshl_b32 s6, s{S_WN}, 1
        v_xor_b32 v{T+6}, s6, v{T+6}
        v_lshlrev_b32 v{T+6}, 5, v{T+6}
        v_lshl_add_u32 v{T+6}, v{T+4}, 8, v{T+6}
        v_lshl_add_u32 v{T+6}, v{T+3}, 3, v{T+6}
        v_add_u32 v{V_W0}, {hx(WB)}, v{T+6}
        v_xor_b32 v{V_W1}, 32, v{V_W0}
        s_and_b32 s6, s{S_WN}, 1
        v_xor_b32 v{T+5}, s6, v{T+5}
        v_lshlrev_b32 v{T+5}, 5, v{T+5}
        v_lshl_add_u32 v{T+5}, v{T+4}, 6, v{T+5}
        v_lshl_add_u32 v{T+5}, v{T+3}, 3, v{T+5}
        s_lshr_b32 s6, s{S_WN}, 1
        s_lshl_b32 s6, s6, 12
        s_add_u32 s6, s6, {hx(KVB)}
        v_add_u32 v{V_KV}, s6, v{T+5}
        s_mov_b32 s{SRD_WS}, s42
        s_mov_b32 s{SRD_WS+1}, s43
        s_mov_b32 s{S_XT1}, {hx(XSZ)}
        s_mov_b32 s{S_XT2}, {hx(2*XSZ)}
        """)
    def dispatch(o, h):
        o(f"""
        s_cmp_lt_u32 s{S_NT}, 28
        s_cbranch_scc1 {name}_F{h}
        s_cmp_lt_u32 s{S_WN}, 2
        s_cbranch_scc1 {name}_K{h}
        s_branch {name}_V{h}
        """)
    a(f"""
    v_lshrrev_b32 v{T}, 3, v0
    v_lshrrev_b32 v{T+1}, 4, v0
    v_and_b32 v{T+2}, 7, v0
    v_lshlrev_b32 v{T}, 11, v{T}
    v_xor_b32 v{T+2}, v{T+1}, v{T+2}
    v_lshl_add_u32 v{V_DX}, v{T+2}, 4, v{T}
    v_xor_b32 v{V_DX+1}, 64, v{V_DX}
    v_add_u32 v{V_DX+1}, 0x4000, v{V_DX+1}
    s_lshl_b32 s6, s{S_WN}, 4
    v_add_u32 v{T+3}, s6, v{T+1}
    v_mul_lo_u32 v{T+3}, v{T+3}, s4
    v_bfe_u32 v{T+2}, v0, 1, 3
    v_xor_b32 v{T}, v{T+1}, v{T+2}
    v_lshlrev_b32 v{T}, 5, v{T}
    v_and_b32 v{T+2}, 1, v0
    v_lshl_add_u32 v{T}, v{T+2}, 4, v{T}
    v_add3_u32 v{V_DW}, v{T}, v{T+3}, s5
    s_lshl_b32 s6, s4, 2
    v_add_u32 v{V_DW+1}, s6, v{V_DW}
    v_xor_b32 v{T}, 0x80, v{T}
    v_add3_u32 v{V_DW+2}, v{T}, v{T+3}, s5
    s_lshl_b32 s7, s4, 3
    v_add_u32 v{V_DW+2}, s7, v{V_DW+2}
    v_add_u32 v{V_DW+3}, s6, v{V_DW+2}
    s_lshl_b32 s6, s{S_WN}, 1
    s_and_b32 s7, s6, 2
    s_add_u32 s7, s7, s{S_Q}
    s_and_b32 s6, s6, 4
    s_lshl_b32 s4, s{S_MT}, 3
    s_add_u32 s6, s6, s4
    s_and_b32 s4, s7, 3
    s_add_u32 s4, s4, s6
    s_lshl_b32 s{S_XA}, s4, 16
    s_add_u32 s7, s7, 1
    s_and_b32 s4, s7, 3
    s_add_u32 s4, s4, s6
    s_lshl_b32 s{S_XA+2}, s4, 16
    s_add_u32 s{S_XA+1}, s{S_XA}, 0x8000
    s_add_u32 s{S_XA+3}, s{S_XA+2}, 0x8000
    s_lshl_b32 s{S_XT}, s{S_WN}, 13
    s_lshl_b32 s{S_WT}, s{S_WN}, 12
    s_add_u32 s{S_WT}, s{S_WT}, {hx(WB)}
    s_lshl_b32 s{S_KVT}, s{S_WN}, 10
    s_add_u32 s{S_KVT}, s{S_KVT}, {hx(KVB)}
    s_mul_i32 s{S_WK}, s{S_WSTEP}, s{S_ROT}
    s_lshl_b32 s{S_KVK}, s{S_ROT}, 12
    s_lshl_b32 s{S_PSTEP}, s{S_WSTEP}, 4
    s_lshl_b32 s{S_PK}, s{S_ROT}, 7
    s_add_u32 s{S_XA}, s{S_XA}, s{S_PK}
    s_add_u32 s{S_XA+1}, s{S_XA+1}, s{S_PK}
    s_add_u32 s{S_XA+2}, s{S_XA+2}, s{S_PK}
    s_add_u32 s{S_XA+3}, s{S_XA+3}, s{S_PK}
    v_lshrrev_b32 v{T}, 2, v0
    s_lshl_b32 s6, s{S_WN}, 4
    v_add_u32 v{T}, s6, v{T}
    v_lshlrev_b32 v{T}, 6, v{T}
    v_lshrrev_b32 v{T+1}, 5, v0
    v_lshlrev_b32 v{T+1}, 1, v{T+1}
    v_and_b32 v{T+2}, 3, v0
    v_xor_b32 v{T+1}, v{T+1}, v{T+2}
    v_lshl_add_u32 v{V_DKV}, v{T+1}, 4, v{T}
    s_mov_b32 s{S_MSK}, {hx(128-2048)}
    s_mov_b32 s{SRD_K+2}, 0x10000
    s_mov_b32 s{SRD_K+3}, 0x20000
    s_mov_b32 s{SRD_V+2}, 0x10000
    s_mov_b32 s{SRD_V+3}, 0x20000
    s_waitcnt lgkmcnt(0)
    """)
    stp(a, 8)
    srd_w(a)
    a(f"""
    s_mov_b32 s{SRD_K}, s32
    s_mov_b32 s{SRD_K+1}, s33
    s_mov_b32 s{SRD_V}, s34
    s_mov_b32 s{SRD_V+1}, s35
    """)
    def dma(o, vo, srd, so, mb, mo):
        if "nodma" in abl and o is not a: return
        o(f"s_add_u32 m0, s{mb}, {hx(mo)}" if mo else f"s_mov_b32 m0, s{mb}")
        o("s_nop 0")
        o(f"buffer_load_dwordx4 v{vo}, s[{srd}:{srd+3}], s{so} offen lds")
    def dW(o, slot):
        for i in range(4):
            dma(o, V_DW+i, SRD_W0, S_WK, S_WT, slot*WSZ + i*1024)
            dma(o, V_DW+i, SRD_W1, S_WK, S_WT, slot*WSZ + 16384 + i*1024)
        o(f"s_add_u32 s{S_WK}, s{S_WK}, s{S_WSTEP}")
        o(f"s_cmp_eq_u32 s{S_WK}, s{S_PSTEP}")
        o(f"s_cselect_b32 s{S_WK}, 0, s{S_WK}")
    def dX(o, off):
        for i in range(8): dma(o, V_DX+(i & 1), SRD_X, S_XA+(i >> 1), S_XT, off + i*1024)
        o(f"s_add_u32 s{S_PK}, s{S_PK}, 128")
        o(f"s_and_b32 s{S_PK}, s{S_PK}, 2047")
        o(f"s_cselect_b32 s{S_D}, 128, s{S_MSK}")
        for i in range(4): o(f"s_add_u32 s{S_XA+i}, s{S_XA+i}, s{S_D}")
    def dKV(o, slot):
        dma(o, V_DKV, SRD_K, S_KVK, S_KVT, slot*KVSZ)
        dma(o, V_DKV, SRD_V, S_KVK, S_KVT, slot*KVSZ+4096)
        o(f"s_add_u32 s{S_KVK}, s{S_KVK}, 4096")
        o(f"s_and_b32 s{S_KVK}, s{S_KVK}, 0xffff")
    dW(a, 0); dX(a, 0)
    stp(a, 9)
    lds_addrs(a)
    dispatch(a, "L")
    a.raw(f"{name}_cpro:")
    if "noprio" not in abl: a("s_setprio 1")
    a(f"""
    """)
    if not uniq:
        a(f"""
    s_and_b32 s6, s{S_MT}, 3
    s_lshl_b32 s6, s6, 4
    v_bfe_u32 v{T}, v0, 2, 4
    v_add_u32 v{T}, s6, v{T}
    v_mul_lo_u32 v{T}, v{T}, s4
    v_bfe_u32 v{T+1}, v0, 1, 1
    v_lshl_add_u32 v{T}, v{T+1}, 7, v{T}
    v_add_u32 v{T}, s5, v{T}
    s_lshl_b32 s5, s{S_MT}, 3
    s_and_b32 s6, s{S_NT}, 7
    s_add_u32 s5, s5, s6
    s_lshl_b32 s5, s5, 16
    v_lshrrev_b32 v{T+1}, 1, v0
    v_lshlrev_b32 v{T+2}, 7, v{T+1}
    v_lshlrev_b32 v{T+1}, 11, v{T+1}
    v_add_u32 v{T+1}, s5, v{T+1}
    """)
    else:
        a(f"""
    s_lshl_b32 s6, s{S_MT}, 3
    v_bfe_u32 v{T}, v0, 3, 3
    v_add_u32 v{T}, s6, v{T}
    v_mul_lo_u32 v{T}, v{T}, s4
    v_bfe_u32 v{T+1}, v0, 2, 1
    v_lshl_add_u32 v{T}, v{T+1}, 7, v{T}
    v_add_u32 v{T}, s5, v{T}
    s_lshl_b32 s5, s{S_MT}, 5
    s_add_u32 s5, s5, s{S_NT}
    s_lshl_b32 s5, s5, 14
    v_lshrrev_b32 v{T+1}, 3, v0
    v_lshlrev_b32 v{T+1}, 11, v{T+1}
    v_add_u32 v{T+1}, s5, v{T+1}
    s_lshr_b32 s5, s{S_MT}, 1
    s_lshl_b32 s5, s5, 2
    s_add_u32 s5, s5, s{S_Q}
    s_lshl_b32 s5, s5, 8
    v_lshrrev_b32 v{T+2}, 5, v0
    v_lshlrev_b32 v{T+2}, 7, v{T+2}
    v_add_u32 v{T+2}, s5, v{T+2}
    """)
    a(f"""
    s_cmp_eq_u32 s{S_WAVE}, 2
    s_cselect_b64 vcc, -1, 0
    s_cselect_b32 s{S_PSTEP}, 128, s{S_WSTEP}
    v_cndmask_b32 v{V_P}, v{T}, v{T+1}, vcc
    s_cmp_eq_u32 s{S_WAVE}, 3
    s_cselect_b64 vcc, -1, 0
    s_cselect_b32 s{S_PSTEP}, 4096, s{S_PSTEP}
    v_cndmask_b32 v{V_P}, v{V_P}, v{T+2}, vcc
    s_add_u32 s4, s{S_ROT}, 2
    s_and_b32 s4, s4, 15
    s_mul_i32 s{S_PK}, s{S_PSTEP}, s4
    s_lshl_b32 s{S_WK}, s{S_PSTEP}, 4
    s_mov_b32 s{SRD_P+3}, 0x20000
    s_mov_b32 s{SRD_G+2}, 0x800
    s_mov_b32 s{SRD_G+3}, 0x20000
    s_lshl_b32 s4, s{S_NT}, 2
    s_add_u32 s4, s4, s{S_WN}
    s_lshl_b32 s4, s4, 1
    v_lshrrev_b32 v{T}, 5, v0
    v_add_u32 v{T}, s4, v{T}
    s_lshl_b32 s5, s{S_Q}, 5
    v_subrev_u32 v{T+1}, s5, v{T}
    v_and_b32 v{T+1}, 127, v{T+1}
    v_and_b32 v{T}, 128, v{T}
    v_or_b32 v{T}, v{T}, v{T+1}
    v_bfe_u32 v{T+1}, v{T}, 1, 3
    v_bfe_u32 v{T+2}, v0, 2, 3
    v_xor_b32 v{T+1}, v{T+1}, v{T+2}
    v_lshlrev_b32 v{T}, 7, v{T}
    v_lshl_add_u32 v{T}, v{T+1}, 4, v{T}
    v_and_b32 v{T+1}, 3, v0
    v_lshl_add_u32 v{V_GA}, v{T+1}, 2, v{T}
    v_and_b32 v{V_GO}, 31, v0
    v_lshlrev_b32 v{V_GO}, 2, v{V_GO}
    v_mov_b32 v{V_GZ}, 0
    v_mov_b32 v{V_GZ+1}, 0
    s_mov_b32 s{S_MSK}, 0xffff0000
    s_lshl_b32 s{S_GK}, s{S_ROT}, 7
    s_mov_b32 s{S_XT}, 0
    s_waitcnt lgkmcnt(0)
    """)
    stp(a, 8)
    srd_w(a)
    a(f"""
    s_mov_b32 s{SRD_G}, s40
    s_mov_b32 s{SRD_G+1}, s41
    s_cmp_eq_u32 s{S_WAVE}, 2
    s_cselect_b32 s{SRD_P}, s{SRD_X}, s{SRD_W0}
    s_cselect_b32 s{SRD_P+1}, s{SRD_X+1}, s{SRD_W0+1}
    s_cselect_b32 s{SRD_P+2}, s{SRD_X+2}, s{SRD_W0+2}
    s_cmp_eq_u32 s{S_WAVE}, 1
    s_cselect_b32 s{SRD_P}, s{SRD_W1}, s{SRD_P}
    s_cselect_b32 s{SRD_P+1}, s{SRD_W1+1}, s{SRD_P+1}
    s_cselect_b32 s{SRD_P+2}, s{SRD_W1+2}, s{SRD_P+2}
    s_and_b32 s5, s{S_MT}, 1
    s_cmp_eq_u32 s5, 1
    s_cselect_b32 s6, s34, s32
    s_cselect_b32 s7, s35, s33
    s_cmp_ge_u32 s{S_NT}, 28
    s_cselect_b32 s5, 0x10000, 0
    s_cmp_eq_u32 s{S_WAVE}, 3
    s_cselect_b32 s{SRD_P}, s6, s{SRD_P}
    s_cselect_b32 s{SRD_P+1}, s7, s{SRD_P+1}
    s_cselect_b32 s{SRD_P+2}, s5, s{SRD_P+2}
    buffer_load_dword v{V_GW}, v{V_GO}, s[{SRD_G}:{SRD_G+3}], s{S_GK} offen
    s_add_u32 s{S_GK}, s{S_GK}, 128
    s_and_b32 s{S_GK}, s{S_GK}, 2047
    """)
    stp(a, 9)
    lds_addrs(a)
    dispatch(a, "C")

    PF = f"buffer_load_dword v{V_PD}, v{V_P}, s[{SRD_P}:{SRD_P+3}], s{S_PK} offen"
    PFA = f"s_add_u32 s{S_PK}, s{S_PK}, s{S_PSTEP}\ns_cmp_eq_u32 s{S_PK}, s{S_WK}\ns_cselect_b32 s{S_PK}, 0, s{S_PK}"
    WORDER = [(0,0),(0,1),(1,1),(1,0),(2,0),(2,1),(3,1),(3,0)]
    def rd_w(st, slot, s, kh, j):
        blk, b = s >> 1, s & 1
        r = wf(st, s, kh) + j*2
        return (f"ds_read_b64_tr_b16 v[{r}:{r+1}], v{V_W0+b} offset:{slot*WSZ + blk*16384 + kh*8192 + j*1024}", ("W", st, s, kh))
    def rd_x(role, slot, u, kh):
        r = xf(u, kh)
        off = u*2048 + (0 if role == "F" else slot*XSZ)
        return (f"ds_read_b128 v[{r}:{r+3}], v{V_X0+kh} offset:{off}", ("x", u, kh))
    def rd_kv(slot, kh, j):
        r = KVW + kh*4 + j*2
        return (f"ds_read_b64_tr_b16 v[{r}:{r+1}], v{V_KV} offset:{slot*KVSZ + kh*2048 + j*256}", ("kv", kh))

    def gate_acc(nvm):
        t = V_GT
        return [f"s_waitcnt vmcnt({nvm})",
                f"v_lshlrev_b32 v{t}, 16, v{V_GX}", f"v_and_b32 v{t+1}, s{S_MSK}, v{V_GX}",
                f"v_lshlrev_b32 v{V_GX}, 16, v{V_GW}", f"v_and_b32 v{V_GW}, s{S_MSK}, v{V_GW}",
                f"v_pk_mul_f32 v[{t}:{t+1}], v[{t}:{t+1}], v[{V_GX}:{V_GW}]",
                f"v_cvt_pk_bf16_f32 v{t+1}, v{t}, v{t+1}",
                f"v_lshlrev_b32 v{t}, 16, v{t+1}", f"v_and_b32 v{t+1}, s{S_MSK}, v{t+1}",
                f"v_pk_add_f32 v[{V_GZ}:{V_GZ+1}], v[{V_GZ}:{V_GZ+1}], v[{t}:{t+1}]"]
    def gate_fin():
        z = V_GZ; t = V_GX
        g = [f"v_add_f32 v{z}, v{z}, v{z+1}"]
        for sh in ("row_shr:1", "row_shr:2", "row_shr:4", "row_shr:8"):
            g += ["s_nop 1", f"v_add_f32_dpp v{z}, v{z}, v{z} {sh} row_mask:0xf bank_mask:0xf bound_ctrl:1"]
        g += ["s_nop 1", f"v_add_f32_dpp v{z}, v{z}, v{z} row_bcast:15 row_mask:0xa bank_mask:0xf",
              f"v_cvt_pk_bf16_f32 v{t}, v{z}, v{z}", f"v_lshlrev_b32 v{t}, 16, v{t}",
              f"v_mul_f32 v{t}, {hx(f2u(-LOG2E))}, v{t}", f"v_exp_f32 v{t}, v{t}",
              f"s_lshl_b32 s4, s{S_MT}, 5", f"v_add_f32 v{t}, 1.0, v{t}",
              f"v_rcp_f32 v{t}, v{t}", f"s_add_u32 s4, s4, s{S_NT}", f"v_cvt_pk_bf16_f32 v{t}, v{t}, v{t}", f"v_lshlrev_b32 v{t}, 16, v{t}",
              f"v_sub_f32 v{t+1}, 1.0, v{t}", f"v_cvt_pk_bf16_f32 v{t+1}, v{t+1}, v{t+1}", f"v_lshlrev_b32 v{t+1}, 16, v{t+1}",
              f"v_lshrrev_b32 v{z}, 5, v0", f"v_lshlrev_b32 v{z}, 3, v{z}",
              "s_lshl_b32 s4, s4, 2", f"s_add_u32 s4, s4, s{S_WN}", "s_lshl_b32 s4, s4, 4", f"s_add_u32 s4, s4, {hx(WS_GATE)}",
              "s_mov_b32 exec_lo, 0x80000000", "s_mov_b32 exec_hi, 0x80000000",
              f"buffer_store_dwordx2 v[{t}:{t+1}], v{z}, s[{SRD_WS}:{SRD_WS+3}], s4 offen",
              "s_mov_b64 exec, -1", f"s_lshl_b32 s4, s2, 3", f"s_add_u32 s4, s4, s{S_WAVE}", "s_cmp_ge_u32 s4, 8", f"s_cbranch_scc1 {name}_fin",
              f"v_lshlrev_b32 v{z}, 2, v0", f"v_mov_b32 v{z+1}, 0", "s_and_b32 s4, s4, 3", "s_lshl_b32 s4, s4, 9", f"s_add_u32 s4, s4, {hx(WS_FLAG)}",
              f"buffer_store_dword v{z+1}, v{z}, s[{SRD_WS}:{SRD_WS+3}], s4 offen",
              f"buffer_store_dword v{z+1}, v{z}, s[{SRD_WS}:{SRD_WS+3}], s4 offen offset:256"]
        return g

    def epi_group(role, u):
        e = []
        TE = WF
        if role == "F":
            G = acc(u, 0); U = acc(u, 2)
            for i in range(4): e.append(f"v_pk_mul_f32 v[{G+2*i}:{G+2*i+1}], v[{G+2*i}:{G+2*i+1}], s[{S_E0}:{S_E1}]")
            for i in range(8): e.append(f"v_exp_f32 v{G+i}, v{G+i}")
            for i in range(4): e.append(f"v_pk_add_f32 v[{G+2*i}:{G+2*i+1}], v[{G+2*i}:{G+2*i+1}], 1.0 op_sel_hi:[1,0]")
            for i in range(8): e.append(f"v_rcp_f32 v{G+i}, v{G+i}")
            for i in range(4): e.append(f"v_pk_mul_f32 v[{U+2*i}:{U+2*i+1}], v[{U+2*i}:{U+2*i+1}], v[{G+2*i}:{G+2*i+1}]")
            o = TE + (u & 1)*4
            for i in range(4): e.append(f"v_cvt_pk_bf16_f32 v{o+i}, v{U+2*i}, v{U+2*i+1}")
            e.append(f"buffer_store_dwordx4 v[{o}:{o+3}], v{V_ST}, s[{SRD_WS}:{SRD_WS+3}], s{S_E2} offen offset:{(u&1)*256}")
            if u & 1 and u < 7: e.append(f"s_add_u32 s{S_E2}, s{S_E2}, {112*2048}")
        else:
            if u % 2 == 0:
                e += [f"s_add_u32 s4, s{S_Q}, {u>>1}", "s_and_b32 s4, s4, 3", f"s_add_u32 s4, s4, s{S_E2}", "s_lshl_b32 s4, s4, 16", f"s_add_u32 s4, s4, s{S_E3}"]
            for blk in range(2):
                R = acc(u, 2*blk)
                for i in range(4): e.append(f"v_pk_mul_f32 v[{R+2*i}:{R+2*i+1}], v[{R+2*i}:{R+2*i+1}], s[{S_E0}:{S_E1}]")
                o = TE + 8 + blk*4
                for i in range(4): e.append(f"v_cvt_pk_bf16_f32 v{o+i}, v{R+2*i}, v{R+2*i+1}")
                e.append(f"buffer_store_dwordx4 v[{o}:{o+3}], v{V_ST if blk == 0 else V_ST2}, s[{SRD_WS}:{SRD_WS+3}], s4 offen offset:{(u&1)*256}")
        return e
    def epi_setup(role):
        TE = WF + 16
        e = [f"v_and_b32 v{TE}, 15, v0", f"v_lshrrev_b32 v{TE+1}, 5, v0", f"v_bfe_u32 v{TE+2}, v0, 4, 1",
             f"v_lshlrev_b32 v{TE+1}, 10, v{TE+1}", f"v_lshl_add_u32 v{TE+1}, v{TE+2}, 9, v{TE+1}", f"v_lshl_add_u32 v{V_ST}, v{TE}, 4, v{TE+1}",
             f"s_lshl_b32 s4, s{S_MT}, 3", f"s_lshl_b32 s5, s{S_WM}, 2", f"s_add_u32 s{S_E2}, s4, s5"]
        if role == "F":
            e += [f"s_mul_i32 s4, s{S_E2}, 112", f"s_lshl_b32 s5, s{S_NT}, 2", "s_add_u32 s4, s4, s5", f"s_add_u32 s4, s4, s{S_WN}",
                  f"s_lshl_b32 s{S_E2}, s4, 11", f"s_mov_b32 s{S_E0}, {hx(f2u(-LOG2E))}", f"s_mov_b32 s{S_E1}, {hx(f2u(-LOG2E))}"]
        else:
            e += [f"s_lshl_b32 s7, s{S_Q}, 3", f"s_add_u32 s7, s7, s{S_WN}", "s_lshl_b32 s7, s7, 11", f"s_add_u32 s{S_E3}, s7, {hx(WS_Q)}",
                  f"s_mov_b32 s{S_E0}, {hx(f2u(QSCALE))}", f"s_mov_b32 s{S_E1}, {hx(f2u(QSCALE))}", f"v_add_u32 v{V_ST2}, 0x2000, v{V_ST}"]
        return e
    def epi_kv(role):
        TE = WF + 16
        e = [f"s_add_u32 s5, s{S_E2}, s{S_Q}", "s_lshl_b32 s5, s5, 12", f"s_and_b32 s6, s{S_WN}, 1"]
        cv = [f"v_cvt_pk_bf16_f32 v{TE+4+i}, v{KVA+2*i}, v{KVA+2*i+1}" for i in range(4)]
        if role == "K":
            e += ["s_lshl_b32 s6, s6, 3", "s_add_u32 s5, s5, s6", f"s_add_u32 s5, s5, {hx(WS_KV)}",
                  f"v_and_b32 v{TE}, 8, v0", f"v_lshl_add_u32 v{TE}, v{TE}, 4, v{V_ST}"] + cv
            e += [f"buffer_store_dwordx2 v[{TE+4}:{TE+5}], v{TE}, s[{SRD_WS}:{SRD_WS+3}], s5 offen",
                  f"buffer_store_dwordx2 v[{TE+6}:{TE+7}], v{TE}, s[{SRD_WS}:{SRD_WS+3}], s5 offen offset:128"]
        else:
            e += ["s_lshl_b32 s6, s6, 8", "s_add_u32 s5, s5, s6", f"s_add_u32 s5, s5, {hx(WS_KV+2048)}"] + cv
            e += [f"buffer_store_dwordx4 v[{TE+4}:{TE+7}], v{V_ST}, s[{SRD_WS}:{SRD_WS+3}], s5 offen"]
        return e

    def stage(o, lq, role, half, par, first=False, dW_on=True, dX_on=True, pf_on=True, nxt_reads=True, vm=None, bar=True, last=False, tail=None, gvm=1):
        cur, nxt = par, 1-par
        kv = role != "F"
        C = half == "C"
        fill = {}
        def put(slot, t):
            txt = t[0] if isinstance(t, tuple) else t
            if "nolds" in abl and txt.startswith("ds_"): return
            fill.setdefault(slot, []).append(t)
        put(0, rd_x(role, cur, 3, 0)); put(1, rd_x(role, cur, 3, 1))
        for u in range(4):
            put(8*u+8, rd_x(role, cur, u+4, 0)); put(8*u+9, rd_x(role, cur, u+4, 1))
        if C:
            put(2 if last else 26, (f"ds_read_b32 v{V_GX}, v{V_GA} offset:{0 if role == 'F' else cur*XSZ}", ("g",)))
        if nxt_reads:
            if role == "F":
                put(34, f"s_cmp_eq_u32 s{S_XT}, s{S_XT2}")
                put(34, f"s_cselect_b32 s{S_D2}, {hx(-2*XSZ)}, s{S_C32}")
                put(35, f"v_add_u32 v{V_X0}, s{S_D2}, v{V_X0}")
                put(36, f"v_add_u32 v{V_X1}, s{S_D2}, v{V_X1}")
                if C: put(37, f"v_add_u32 v{V_GA}, s{S_D2}, v{V_GA}")
                put(44, f"s_add_u32 s{S_XT}, s{S_XT}, s{S_D2}")
            for u in range(3):
                put(8*u+40, rd_x(role, nxt, u, 0)); put(8*u+41, rd_x(role, nxt, u, 1))
            wslots = [42,43,44,45,46,47,50,51,52,53,54,55,58,59,60,61]
            for n, (s, kh) in enumerate(WORDER):
                put(wslots[2*n], rd_w(nxt, nxt, s, kh, 0)); put(wslots[2*n+1], rd_w(nxt, nxt, s, kh, 1))
            if kv:
                put(62, rd_kv(nxt, 0, 0)); put(62, rd_kv(nxt, 0, 1)); put(63, rd_kv(nxt, 1, 0)); put(63, rd_kv(nxt, 1, 1))
        if last:
            off = 0
            if C:
                ga = gate_acc(0)
                put(6, ("WAIT", ("g",)))
                for n, t in enumerate(ga): put(6 + n//4, t)
                off = 9
            es = epi_setup(role)
            for n, t in enumerate(es): put(off + n//(6 if C else 3), t)
            if kv:
                for n, t in enumerate(epi_kv(role)): put(18 + n//3, t)
            for u in range(7):
                e = epi_group(role, u)
                per = -(-len(e)//(8 if u < 6 else 5))
                for n, t in enumerate(e): put(8*u+11 + (1 if u == 0 else 0) + n//per, t)
        if tail:
            for t in tail: put(63, t)
        def need(tags):
            if any(t in lq.q for t in tags): o(f"s_waitcnt lgkmcnt({lq.need(tags)})")
        def emit(t):
            if isinstance(t, tuple):
                if t[0] == "WAIT": need([t[1]])
                else: o(t[0]); lq.push(t[1])
            else: o(t)
        n = 0
        for u in range(8):
            if u == 5 and bar:
                lq.need(lq.q)
                if C:
                    o("s_waitcnt lgkmcnt(0)")
                    for t in gate_acc(gvm): o(t)
                    o(f"buffer_load_dword v{V_GW}, v{V_GO}, s[{SRD_G}:{SRD_G+3}], s{S_GK} offen")
                    o(f"s_add_u32 s{S_GK}, s{S_GK}, 128")
                    o(f"s_and_b32 s{S_GK}, s{S_GK}, 2047")
                    if pf and pf_on: o(PF); o(PFA)
                else:
                    o(f"s_waitcnt vmcnt({vm}) lgkmcnt(0)")
                if "nobar" not in abl: o("s_barrier")
                if not C:
                    if kv and dW_on: dKV(o, cur)
                    if dW_on: dW(o, cur)
                    if dX_on: dX(o, 0 if role == "F" else cur*XSZ)
            for c in range(4):
                s = c if u % 2 == 0 else 3-c
                for e in range(2):
                    kh = e if c % 2 == 0 else 1-e
                    need([("W", cur, s, kh), ("x", u, kh)])
                    d = acc(u, s)
                    cc = "0" if (first and e == 0) else f"v[{d}:{d+3}]"
                    o(f"v_mfma_f32_16x16x32_bf16 v[{d}:{d+3}], {vr(wf(cur,s,kh),4)}, {vr(xf(u,kh),4)}, {cc}")
                    if kv and u < 2 and c == 3 and e == 1:
                        for k2 in range(2):
                            need([("kv", k2)])
                            d = KVA + u*4
                            cc = "0" if (first and k2 == 0) else f"v[{d}:{d+3}]"
                            w = vr(KVW+k2*4, 4); x = vr(xf(u, k2), 4)
                            if role == "K": o(f"v_mfma_f32_16x16x32_bf16 v[{d}:{d+3}], {w}, {x}, {cc}")
                            else: o(f"v_mfma_f32_16x16x32_bf16 v[{d}:{d+3}], {x}, {w}, {cc}")
                    for t in fill.get(n, []): emit(t)
                    n += 1
        if last:
            o("s_nop 7")
            for t in epi_group(role, 7): o(t)
            if C:
                for t in gate_fin(): o(t)

    for role in "FKV":
      for half in "CL":
        kv = role != "F"; C = half == "C"
        rn = f"{name}_{role}{half}"
        a.raw(f"{rn}:")
        lq = LQ(15)
        if not C:
            if role == "F": a(f"s_add_u32 s{S_XT2}, s{S_XT2}, s{S_XT}")
            if kv: dKV(a, 0)
            a("s_waitcnt vmcnt(0)")
        stp(a, 12)
        a("s_barrier")
        stp(a, 10)
        if not C:
            if kv: dKV(a, 1)
            dW(a, 1); dX(a, XSZ)
            if role == "F": dX(a, 2*XSZ)
        elif pf:
            for i in range(PD):
                if "p0" in abl or i >= 1 and "p1" in abl: pass
                else: a(PF)
                a(PFA)
        pro = []
        wi = iter([rd_w(0, 0, s, kh, j) for (s, kh) in WORDER for j in range(2)])
        for u in range(3):
            pro += [rd_x(role, 0, u, 0), rd_x(role, 0, u, 1)] + [next(wi) for _ in range(6 if u < 2 else 4)]
        if kv: pro += [rd_kv(0, 0, 0), rd_kv(0, 0, 1), rd_kv(0, 1, 0), rd_kv(0, 1, 1)]
        for t in pro: a(t[0]); lq.push(t[1])
        a(f"s_mov_b32 s{S_CNT}, {6 if kv else 5}")
        vm = 0 if kv else 8
        gvm = 1 if pf else 0
        stp(a, 4); stp(a, 5, True)
        stage(a, lq, role, half, 0, first=True, vm=vm, gvm=((0 if 'p0' in abl else (1 if 'p1' in abl else PD)) if pf else 0))
        a.raw(".p2align 6")
        a.raw(f"{rn}_loop:")
        b1 = Asm(); q0 = list(lq.q)
        if kv:
            stage(b1, lq, role, half, 1, vm=vm, gvm=gvm, tail=[f"s_cmp_eq_u32 s{S_CNT}, 0", f"s_cbranch_scc1 {rn}_tail"])
            q1 = list(lq.q)
            stage(b1, lq, role, half, 0, vm=vm, gvm=gvm, tail=[f"s_sub_u32 s{S_CNT}, s{S_CNT}, 1", f"s_branch {rn}_loop"])
            assert lq.q == q0
            a.l += b1.l
            a.raw(f"{rn}_tail:")
            lq.q = q1
        else:
            stage(b1, lq, role, half, 1, vm=vm, gvm=gvm)
            stage(b1, lq, role, half, 0, vm=vm, gvm=gvm, tail=[f"s_sub_u32 s{S_CNT}, s{S_CNT}, 1", f"s_cbranch_scc0 {rn}_loop"])
            assert lq.q == q0
            a.l += b1.l
            stage(a, lq, role, half, 1, vm=vm, gvm=gvm, dX_on=False)
        stage(a, lq, role, half, 0, dW_on=False, dX_on=False, pf_on=False, vm=0, gvm=gvm)
        stp(a, 11)
        stage(a, lq, role, half, 1, nxt_reads=False, bar=False, last=True)
        stp(a, 6); stp(a, 7, True)
        a(f"s_branch {name}_fin")
    a.raw(f"{name}_fin:")
    if stamp:
        T = 96
        a("s_waitcnt vmcnt(0)")
        stp(a, 13); stp(a, 14, True)
        a(f"""
        s_lshl_b32 s4, s2, 3
        s_add_u32 s4, s4, s{S_WAVE}
        s_lshl_b32 s4, s4, 6
        s_add_u32 s4, s4, {hx(0x1E00000)}
        s_mov_b64 exec, -1
        v_mov_b32 v14, 0
        """)
        for i, (r, rel) in enumerate([(4,1),(6,1),(13,1),(2,0),(14,0),(0,0),(5,0),(7,0),(8,1),(9,1),(10,1),(11,1),(12,1)]):
            if rel: a(f"s_sub_u32 s{ST+r}, s{ST+r}, s{ST}")
            a(f"v_mov_b32 v{T+i}, s{ST+r}")
        a("s_mov_b64 exec, 1")
        for i in range(4):
            a(f"buffer_store_dwordx4 v[{T+4*i}:{T+4*i+3}], v14, s[{SRD_WS}:{SRD_WS+3}], s4 offen offset:{16*i}")
    a.raw(f"{name}_end:")
    a("s_endpgm")
    return a.text()

if __name__ == "__main__":
    import sys
    stamp = "stamp" in sys.argv
    s = "; @launch kernel=k1_kernel grid=(256,1,1) block=(512,1,1) lds=163840\n"
    s += '.amdgcn_target "amdgcn-amd-amdhsa--gfx950"\n.text\n' + gen_k1(stamp=stamp, abl=sys.argv[2:]) + kernel_desc("k1_kernel")
    open(sys.argv[1], "w").write(s)
```

```python
from common import *

RW = 30
CNT_LDS = 122880
KVB = 131072
K2_LDS = 163840

S_WAVE, S_W = 3, 33
SRD_WS, SRD_WD, SRD_WO, SRD_OUT = 8, 12, 16, 20
S_MI, S_NI, S_MT32 = 34, 35, 36
S_CNT = 37
S_HK, S_WK, S_WM, S_WEND, S_WW, S_KVK, S_KVM, S_RD = 38, 39, 40, 41, 42, 43, 44, 45
S_T = 46
ST = 70

def gen_k2(name="k2_kernel", stamp=False, abl=()):
    a = Asm()
    def stp(o, i, real=False):
        if stamp:
            o(f"{'s_memrealtime' if real else 's_memtime'} s[4:5]\ns_waitcnt lgkmcnt(0)\ns_mov_b32 s{ST+i}, s4")
    prioA = 1; prioG = 0
    for x in abl:
        if x.startswith("pa"): prioA = int(x[2:])
        if x.startswith("pg"): prioG = int(x[2:])
    a.raw(f".globl {name}\n.p2align 8\n.type {name},@function\n{name}:")
    if stamp: a(f"s_memtime s[{ST}:{ST+1}]\ns_memrealtime s[{ST+2}:{ST+3}]")
    a(f"""
    s_load_dwordx2 s[24:25], s[0:1], 96
    s_load_dwordx2 s[26:27], s[0:1], 64
    s_load_dwordx2 s[28:29], s[0:1], 32
    s_load_dwordx2 s[30:31], s[0:1], 80
    s_cmp_ge_u32 s2, 256
    s_cbranch_scc1 {name}_end
    v_lshrrev_b32 v1, 6, v0
    v_and_b32 v0, 63, v0
    v_readfirstlane_b32 s{S_WAVE}, v1
    s_and_b32 s4, s2, 7
    s_lshr_b32 s5, s2, 3
    s_lshr_b32 s6, s4, 1
    s_lshl_b32 s6, s6, 2
    s_and_b32 s7, s5, 3
    s_add_u32 s{S_MI}, s6, s7
    s_and_b32 s4, s4, 1
    s_lshl_b32 s4, s4, 3
    s_lshr_b32 s5, s5, 2
    s_add_u32 s{S_NI}, s4, s5
    s_and_b32 s{S_W}, s{S_WAVE}, 3
    s_lshl_b32 s4, s{S_MI}, 2
    s_add_u32 s{S_MT32}, s4, s{S_W}
    s_mov_b32 s{SRD_WS+2}, {hx(WS_SIZE)}
    s_mov_b32 s{SRD_WS+3}, 0x20000
    v_lshlrev_b32 v1, 4, v0
    s_cmp_ge_u32 s{S_WAVE}, 4
    s_cbranch_scc1 {name}_G
    """)
    VL = 1
    VKV = 2
    VG = 3
    VT = 4
    SEL = 12
    Q = 16
    S = 32
    P = 64
    O = 80
    Ls = 112
    K = 120
    V = 136
    CB = 152
    MX = 184
    def q(a_, ks): return vr(Q + a_*8 + ks*4, 4)
    def kk(par, ks): return vr(K + par*8 + ks*4, 4)
    def vv(par, j): return vr(V + par*8 + j*4, 4)
    if prioA: a(f"s_setprio {prioA}")
    a(f"""
    s_lshl_b32 s4, s{S_MT32}, 5
    s_lshl_b32 s5, s{S_NI}, 1
    s_add_u32 s4, s4, s5
    s_lshl_b32 s4, s4, 11
    s_add_u32 s{S_T}, s4, {hx(WS_Q)}
    s_add_u32 s{S_T+1}, s4, {hx(WS_O)}
    s_lshl_b32 s{S_T+2}, s{S_MT32}, 8
    s_add_u32 s{S_T+2}, s{S_T+2}, {hx(WS_GATE)}
    v_and_b32 v{VT}, 31, v0
    v_lshlrev_b32 v{VT}, 3, v{VT}
    v_add_u32 v{VKV}, {hx(KVB)}, v{VL}
    s_waitcnt lgkmcnt(0)
    s_mov_b32 s{SRD_WS}, s24
    s_mov_b32 s{SRD_WS+1}, s25
    """)
    for i in range(4): a(f"buffer_load_dwordx4 {vr(Q+4*i,4)}, v{VL}, s[{SRD_WS}:{SRD_WS+3}], s{S_T} offen offset:{1024*i}")
    a(f"buffer_load_dword v{VG}, v{VT}, s[{SRD_WS}:{SRD_WS+3}], s{S_T+2} offen")
    a(f"""
    v_lshrrev_b32 v{VT+1}, 2, v0
    v_lshrrev_b32 v{VT+2}, 4, v0
    v_xor_b32 v{VT+1}, v{VT+1}, v{VT+2}
    v_and_b32 v{VT+1}, 1, v{VT+1}
    v_cmp_eq_u32 vcc, 0, v{VT+1}
    v_mov_b32 v{VT+2}, 0x3f803f80
    s_mov_b32 s{S_CNT}, 7
    v_cndmask_b32 v{SEL}, 0, v{VT+2}, vcc
    v_cndmask_b32 v{SEL+1}, 0, v{VT+2}, vcc
    v_cndmask_b32 v{SEL+2}, 0, v{VT+2}, vcc
    v_cndmask_b32 v{SEL+3}, 0, v{VT+2}, vcc
    """)
    for r in list(range(P+8, P+16)) + list(range(O, O+32)) + list(range(Ls, Ls+8)) + list(range(V+8, V+16)): a(f"v_mov_b32 v{r}, 0")
    stp(a, 8)
    a("s_barrier")
    stp(a, 9)
    lq = LQ(15)
    def rdK(o, t, slot):
        for ks in range(2):
            o(f"ds_read_b128 {kk(t & 1, ks)}, v{VKV} offset:{slot*8192 + (t & 1)*4096 + ks*1024}"); lq.push(("K", t & 1))
    def rdV(o, t, slot):
        for j in range(2):
            o(f"ds_read_b128 {vv(t & 1, j)}, v{VKV} offset:{slot*8192 + (t & 1)*4096 + 2048 + j*1024}"); lq.push(("V", t & 1))
    def need(o, tags):
        if any(t in lq.q for t in tags): o(f"s_waitcnt lgkmcnt({lq.need(tags)})")
    rdK(a, 0, 0); rdK(a, 1, 0); rdV(a, 0, 0)
    a("s_waitcnt vmcnt(0)")
    need(a, [("K", 0)])
    a(f"v_mfma_f32_32x32x16_bf16 {vr(S,16)}, {kk(0,0)}, {q(0,0)}, 0")
    a(f"v_mfma_f32_32x32x16_bf16 {vr(S,16)}, {kk(0,1)}, {q(0,1)}, {vr(S,16)}")
    a("s_nop 7\ns_nop 3")
    stp(a, 4); stp(a, 5, True)
    def phase(o, t, h):
        b = 1-h
        tq = t if h == 0 else t+1
        tv = t-1 if h == 0 else t
        Sa, Sb, Pa, Pb = S+16*h, S+16*b, P+8*h, P+8*b
        mf = [
            (f"v_mfma_f32_32x32x16_bf16 {vr(Sb,16)}, {kk(tq&1,0)}, {q(b,0)}, 0", ("K", tq & 1)),
            (f"v_mfma_f32_32x32x16_bf16 {vr(Sb,16)}, {kk(tq&1,1)}, {q(b,1)}, {vr(Sb,16)}", None),
            (f"v_mfma_f32_32x32x16_bf16 {vr(O+16*b,16)}, {vv(tv&1,0)}, {vr(Pb,4)}, {vr(O+16*b,16)}", ("V", tv & 1)),
            (f"v_mfma_f32_32x32x16_bf16 {vr(O+16*b,16)}, {vv(tv&1,1)}, {vr(Pb+4,4)}, {vr(O+16*b,16)}", None),
            (f"v_mfma_f32_16x16x32_bf16 {vr(Ls+4*b,4)}, {vr(SEL,4)}, {vr(Pb,4)}, {vr(Ls+4*b,4)}", None),
            (f"v_mfma_f32_16x16x32_bf16 {vr(Ls+4*b,4)}, {vr(SEL,4)}, {vr(Pb+4,4)}, {vr(Ls+4*b,4)}", None)]
        e = [f"v_exp_f32 v{Sa+i}, v{Sa+i}" for i in range(16)]
        c = [f"v_cvt_pk_bf16_f32 v{Pa+i}, v{Sa+2*i}, v{Sa+2*i+1}" for i in range(8)]
        seq = ["M0", e[0], e[1], e[2], "M1", e[3], e[4], c[0], c[1], "M2", e[5], e[6], e[7], "M3", e[8], e[9], c[2], c[3],
               "M4", e[10], "M5", e[11], c[4], e[12], e[13], c[5], e[14], e[15], c[6], "R", c[7]]
        if "seq1" in abl:
            seq = ["M0", e[0], e[1], "M1", e[2], e[3], e[4], e[5], c[0], c[1], c[2], "M2", e[6], e[7], "M3", e[8], e[9], e[10], e[11], c[3], c[4], c[5],
                   "M4", "M5", e[12], e[13], e[14], e[15], c[6], "R", c[7]]
        if "seq2" in abl:
            seq = ["M0", e[0], e[1], "M1", e[2], e[3], e[4], e[5], c[0], c[1], c[2], e[6], "M2", e[7], e[8], "M3", e[9], e[10], e[11], c[3], e[12], c[4], c[5], e[13],
                   "M4", "M5", e[14], e[15], c[6], "R", c[7]]
        if "seq3" in abl:
            seq = ["M0", e[0], e[1], "M1", "M4", e[2], e[3], e[4], e[5], c[0], c[1], "M2", e[6], e[7], "M3", "M5", e[8], e[9], e[10], e[11], c[2], c[3], c[4], c[5],
                   e[12], e[13], e[14], e[15], c[6], "R", c[7]]
        for x in seq:
            if x == "R":
                if h == 1:
                    rdK(o, t+2, ((t+2) >> 1) & 3); rdV(o, t+1, ((t+1) >> 1) & 3)
            elif x[0] == "M" and len(x) == 2:
                m = mf[int(x[1])]
                if m[1]: need(o, [m[1]])
                o(m[0])
            else: o(x)
    a.raw(".p2align 6")
    a.raw(f"{name}_A_loop:")
    q0 = list(lq.q)
    for c in range(4):
        if "nobar" not in abl: a("s_barrier")
        for t in (2*c, 2*c+1):
            phase(a, t, 0); phase(a, t, 1)
    assert lq.q == q0, (lq.q, q0)
    a(f"s_sub_u32 s{S_CNT}, s{S_CNT}, 1\ns_cbranch_scc0 {name}_A_loop")
    if "nobar" not in abl: a("s_barrier")
    stp(a, 6); stp(a, 7, True)
    a(f"""
    v_mfma_f32_32x32x16_bf16 {vr(O+16,16)}, {vv(1,0)}, {vr(P+8,4)}, {vr(O+16,16)}
    v_mfma_f32_32x32x16_bf16 {vr(O+16,16)}, {vv(1,1)}, {vr(P+12,4)}, {vr(O+16,16)}
    v_mfma_f32_16x16x32_bf16 {vr(Ls+4,4)}, {vr(SEL,4)}, {vr(P+8,4)}, {vr(Ls+4,4)}
    v_mfma_f32_16x16x32_bf16 {vr(Ls+4,4)}, {vr(SEL,4)}, {vr(P+12,4)}, {vr(Ls+4,4)}
    s_waitcnt lgkmcnt(0)
    s_nop 1
    """)
    a(f"v_max3_f32 v{VT}, abs(v{O}), abs(v{O+1}), abs(v{O+2})")
    for i in range(3, 15, 2): a(f"v_max3_f32 v{VT}, v{VT}, abs(v{O+i}), abs(v{O+i+1})")
    a(f"v_max_f32 v{VT}, v{VT}, abs(v{O+15})")
    for i in range(16, 32, 2): a(f"v_max3_f32 v{VT}, v{VT}, abs(v{O+i}), abs(v{O+i+1})")
    a(f"""
    s_mov_b32 s4, {hx(f2u(2.0**-64))}
    s_mov_b32 s5, {hx(f2u(2.0**64))}
    s_mov_b32 s6, {hx(f2u(2.0**120))}
    v_cmp_lt_f32 s[{S_T+4}:{S_T+5}], s4, v{Ls}
    v_cmp_gt_f32 s[{S_T+6}:{S_T+7}], s5, v{Ls}
    v_cmp_lt_f32 s[{S_T+8}:{S_T+9}], s4, v{Ls+4}
    v_cmp_gt_f32 vcc, s5, v{Ls+4}
    s_and_b64 s[{S_T+4}:{S_T+5}], s[{S_T+4}:{S_T+5}], s[{S_T+6}:{S_T+7}]
    s_and_b64 s[{S_T+8}:{S_T+9}], s[{S_T+8}:{S_T+9}], vcc
    v_cmp_gt_f32 vcc, s6, v{VT}
    s_and_b64 s[{S_T+4}:{S_T+5}], s[{S_T+4}:{S_T+5}], s[{S_T+8}:{S_T+9}]
    s_and_b64 vcc, vcc, s[{S_T+4}:{S_T+5}]
    s_cmp_eq_u64 vcc, -1
    {"s_branch" if "forcefb" in abl else "s_cbranch_scc0"} {name}_A_fb
    {name}_A_fin:
    v_rcp_f32 v{VT}, v{Ls}
    v_rcp_f32 v{VT+2}, v{Ls+4}
    s_nop 0
    v_mul_f32 v{VT}, v{VT}, v{VG}
    v_mul_f32 v{VT+2}, v{VT+2}, v{VG}
    """)
    for h in range(2):
        for i in range(8): a(f"v_pk_mul_f32 {vr(O+16*h+2*i,2)}, {vr(O+16*h+2*i,2)}, {vr(VT+2*h,2)} op_sel_hi:[1,0]")
        for i in range(8): a(f"v_cvt_pk_bf16_f32 v{P+8*h+i}, v{O+16*h+2*i}, v{O+16*h+2*i+1}")
        for ks in range(2):
            a(f"buffer_store_dwordx4 {vr(P+8*h+4*ks,4)}, v{VL}, s[{SRD_WS}:{SRD_WS+3}], s{S_T+1} offen offset:{2048*h+1024*ks} sc1")
    a(f"""
    v_mov_b32 v{VT}, {hx(CNT_LDS)}
    v_mov_b32 v{VT+1}, 1
    s_lshl_b32 s4, s{S_MI}, 7
    s_lshl_b32 s5, s{S_NI}, 2
    s_add_u32 s4, s4, s5
    s_add_u32 s4, s4, {hx(WS_FLAG)}
    s_mov_b64 exec, 1
    s_waitcnt vmcnt(0)
    ds_add_rtn_u32 v{VT+2}, v{VT}, v{VT+1}
    v_mov_b32 v{VT+3}, 0
    s_waitcnt lgkmcnt(0)
    v_readfirstlane_b32 s5, v{VT+2}
    s_nop 1
    s_cmp_lg_u32 s5, 3
    s_cbranch_scc1 {name}_fin
    buffer_store_dword v{VT+1}, v{VT+3}, s[{SRD_WS}:{SRD_WS+3}], s4 offen sc1
    s_branch {name}_fin
    """)
    a.raw(f"{name}_A_fb:")
    a(f"""
    v_mov_b32 v{MX}, 0xff800000
    v_mov_b32 v{MX+1}, 0xff800000
    s_mov_b32 s{S_T+3}, {hx(WS_KV)}
    s_mov_b32 s{S_CNT}, 63
    {name}_A_fb1:
    buffer_load_dwordx4 {kk(0,0)}, v{VL}, s[{SRD_WS}:{SRD_WS+3}], s{S_T+3} offen
    buffer_load_dwordx4 {kk(0,1)}, v{VL}, s[{SRD_WS}:{SRD_WS+3}], s{S_T+3} offen offset:1024
    s_add_u32 s{S_T+3}, s{S_T+3}, 4096
    s_waitcnt vmcnt(0)
    """)
    for h in range(2):
        a(f"v_mfma_f32_32x32x16_bf16 {vr(S+16*h,16)}, {kk(0,0)}, {q(h,0)}, 0")
        a(f"v_mfma_f32_32x32x16_bf16 {vr(S+16*h,16)}, {kk(0,1)}, {q(h,1)}, {vr(S+16*h,16)}")
    a("s_nop 7\ns_nop 3")
    for h in range(2):
        for i in range(0, 16, 2): a(f"v_max3_f32 v{MX+h}, v{MX+h}, v{S+16*h+i}, v{S+16*h+i+1}")
    a(f"""
    s_sub_u32 s{S_CNT}, s{S_CNT}, 1
    s_cbranch_scc0 {name}_A_fb1
    v_mov_b32 v{VT}, v{MX}
    v_mov_b32 v{VT+1}, v{MX+1}
    s_nop 1
    v_permlane32_swap_b32 v{VT}, v{MX}
    v_permlane32_swap_b32 v{VT+1}, v{MX+1}
    s_nop 1
    v_max_f32 v{MX}, v{MX}, v{VT}
    v_max_f32 v{MX+1}, v{MX+1}, v{VT+1}
    """)
    for h in range(2):
        for i in range(16): a(f"v_sub_f32 v{CB+16*h+i}, 0, v{MX+h}")
    for r in list(range(O, O+32)) + list(range(Ls, Ls+8)): a(f"v_mov_b32 v{r}, 0")
    a(f"""
    s_mov_b32 s{S_T+3}, {hx(WS_KV)}
    s_mov_b32 s{S_CNT}, 63
    {name}_A_fb2:
    buffer_load_dwordx4 {kk(0,0)}, v{VL}, s[{SRD_WS}:{SRD_WS+3}], s{S_T+3} offen
    buffer_load_dwordx4 {kk(0,1)}, v{VL}, s[{SRD_WS}:{SRD_WS+3}], s{S_T+3} offen offset:1024
    buffer_load_dwordx4 {vv(0,0)}, v{VL}, s[{SRD_WS}:{SRD_WS+3}], s{S_T+3} offen offset:2048
    buffer_load_dwordx4 {vv(0,1)}, v{VL}, s[{SRD_WS}:{SRD_WS+3}], s{S_T+3} offen offset:3072
    s_add_u32 s{S_T+3}, s{S_T+3}, 4096
    s_waitcnt vmcnt(0)
    """)
    for h in range(2):
        a(f"v_mfma_f32_32x32x16_bf16 {vr(S+16*h,16)}, {kk(0,0)}, {q(h,0)}, {vr(CB+16*h,16)}")
        a(f"v_mfma_f32_32x32x16_bf16 {vr(S+16*h,16)}, {kk(0,1)}, {q(h,1)}, {vr(S+16*h,16)}")
    a("s_nop 7\ns_nop 3")
    for h in range(2):
        for i in range(16): a(f"v_exp_f32 v{S+16*h+i}, v{S+16*h+i}")
    a("s_nop 0")
    for h in range(2):
        for i in range(8): a(f"v_cvt_pk_bf16_f32 v{P+8*h+i}, v{S+16*h+2*i}, v{S+16*h+2*i+1}")
    a("s_nop 1")
    for h in range(2):
        for j in range(2): a(f"v_mfma_f32_32x32x16_bf16 {vr(O+16*h,16)}, {vv(0,j)}, {vr(P+8*h+4*j,4)}, {vr(O+16*h,16)}")
        for j in range(2): a(f"v_mfma_f32_16x16x32_bf16 {vr(Ls+4*h,4)}, {vr(SEL,4)}, {vr(P+8*h+4*j,4)}, {vr(Ls+4*h,4)}")
    a(f"""
    s_sub_u32 s{S_CNT}, s{S_CNT}, 1
    s_cbranch_scc0 {name}_A_fb2
    s_nop 7
    s_nop 7
    s_branch {name}_A_fin
    """)

    VA0, VA1 = 2, 3
    VDW = 4
    VDO = 5
    V1G = 6
    VT = 8
    ACC = 16
    H = 48
    WF = 96
    def wf(par, ks, t): return WF + par*16 + ks*8 + t*4
    a.raw(f"{name}_G:")
    if prioG: a(f"s_setprio {prioG}")
    a(f"""
    v_lshrrev_b32 v{VT}, 3, v0
    v_and_b32 v{VT+1}, 7, v0
    v_bfe_u32 v{VT+2}, v0, 4, 1
    v_lshlrev_b32 v{VT+2}, 2, v{VT+2}
    v_xor_b32 v{VT+1}, v{VT+1}, v{VT+2}
    v_lshlrev_b32 v{VT}, 11, v{VT}
    v_lshl_add_u32 v{VT}, v{VT+1}, 4, v{VT}
    s_lshl_b32 s4, s{S_NI}, 7
    s_lshl_b32 s5, s{S_W}, 14
    s_add_u32 s5, s5, s4
    v_add_u32 v{VDW}, s5, v{VT}
    s_lshl_b32 s5, s{S_W}, 1
    s_lshr_b32 s6, s{S_W}, 1
    s_or_b32 s5, s5, s6
    s_and_b32 s5, s5, 3
    s_lshl_b32 s5, s5, 14
    s_add_u32 s5, s5, s4
    v_add_u32 v{VDO}, s5, v{VT}
    s_mul_i32 s{S_HK}, s{S_MT32}, {112*2048}
    s_mov_b32 s{S_WK}, 0
    s_lshl_b32 s{S_WW}, s{S_W}, 10
    s_mov_b32 s{S_WM}, s{S_WW}
    s_add_u32 s{S_WEND}, s{S_WW}, {hx(RW*4096)}
    s_lshl_b32 s4, s{S_W}, 11
    s_add_u32 s{S_KVK}, s4, {hx(WS_KV)}
    s_add_u32 s{S_KVM}, s4, {hx(KVB)}
    s_mov_b32 s{SRD_WD+2}, 0x700000
    s_mov_b32 s{SRD_WD+3}, 0x20000
    s_mov_b32 s{SRD_WO+2}, 0x200000
    s_mov_b32 s{SRD_WO+3}, 0x20000
    s_mov_b32 s{SRD_OUT+2}, 0x400000
    s_mov_b32 s{SRD_OUT+3}, 0x20000
    s_lshl_b32 s{S_T+2}, s{S_MT32}, 8
    s_add_u32 s{S_T+2}, s{S_T+2}, {hx(WS_GATE+4)}
    v_and_b32 v{VT+3}, 31, v0
    v_lshlrev_b32 v{VT+3}, 3, v{VT+3}
    s_waitcnt lgkmcnt(0)
    s_mov_b32 s{SRD_WS}, s24
    s_mov_b32 s{SRD_WS+1}, s25
    s_mov_b32 s{SRD_WD}, s26
    s_mov_b32 s{SRD_WD+1}, s27
    """)
    vq = LQ(63); lq = LQ(15)
    def dKV(o):
        r = []
        for i in range(2):
            r.append(f"s_add_u32 m0, s{S_KVM}, {1024*i}" if i else f"s_mov_b32 m0, s{S_KVM}")
            r.append(f"s_nop 0")
            r.append((f"buffer_load_dwordx4 v{VL}, s[{SRD_WS}:{SRD_WS+3}], s{S_KVK} offen lds" if i == 0 else
                      f"buffer_load_dwordx4 v{VL}, s[{SRD_WS}:{SRD_WS+3}], s{S_T} offen lds", "vm", "KV"))
            if i == 0: r.insert(len(r)-2, f"s_add_u32 s{S_T}, s{S_KVK}, 1024"); r.pop(-2)
        r += [f"s_add_u32 s{S_KVK}, s{S_KVK}, 8192", f"s_add_u32 s{S_KVM}, s{S_KVM}, 8192", f"s_and_b32 s{S_KVM}, s{S_KVM}, {hx(KVB | 0x7fff)}"]
        return r
    def dW(wo):
        return [f"s_mov_b32 m0, s{S_WM}", f"s_add_u32 s{S_WM}, s{S_WM}, 4096",
                (f"buffer_load_dwordx4 v{VDO if wo else VDW}, s[{SRD_WO if wo else SRD_WD}:{(SRD_WO if wo else SRD_WD)+3}], s{S_WK} offen lds", "vm", "W"),
                f"s_add_u32 s{S_WK}, s{S_WK}, 65536",
                f"s_cmp_eq_u32 s{S_WM}, s{S_WEND}", f"s_cselect_b32 s{S_WM}, s{S_WW}, s{S_WM}"]
    def ldH(p, ks, ofrag):
        return (f"buffer_load_dwordx4 {vr(H+p*8+ks*4,4)}, v{VL}, s[{SRD_WS}:{SRD_WS+3}], s{S_HK} offen offset:{(p&1)*2048+ks*1024}" + (" sc1" if ofrag else ""), "vm", ("H", p, ks))
    def rdW(p, ks, t, j, nextblk):
        r = wf(p & 1, ks, t) + 2*j
        off = (0 if p == 6 else p*4096) + j*2048 + ks*1024
        return (f"ds_read_b64_tr_b16 {vr(r,2)}, v{VA0+t} offset:{off}", "lg", ("W", p & 1, ks, t))
    def emit(o, t):
        if isinstance(t, tuple):
            o(t[0]); (vq if t[1] == "vm" else lq).push(t[2])
        else: o(t)
    for t in dKV(a): emit(a, t)
    for t in dW(False): emit(a, t)
    nfirst = len(vq.q)
    for p in range(2):
        for ks in range(2): emit(a, ldH(p, ks, False))
    a(f"""
    s_add_u32 s{S_HK}, s{S_HK}, 4096
    s_mov_b32 s{SRD_WO}, s28
    s_mov_b32 s{SRD_WO+1}, s29
    s_mov_b32 s{SRD_OUT}, s30
    s_mov_b32 s{SRD_OUT+1}, s31
    v_bfe_u32 v{VT}, v0, 2, 2
    v_lshrrev_b32 v{VT+1}, 5, v0
    v_lshl_add_u32 v{VT+1}, v{VT+1}, 2, v{VT}
    v_lshlrev_b32 v{VT+1}, 7, v{VT+1}
    v_lshrrev_b32 v{VT}, 1, v{VT}
    v_lshl_add_u32 v{VT+1}, v{VT}, 6, v{VT+1}
    v_bfe_u32 v{VT}, v0, 4, 1
    v_lshl_add_u32 v{VT+1}, v{VT}, 5, v{VT+1}
    v_and_b32 v{VT}, 3, v0
    v_lshl_add_u32 v{VA0}, v{VT}, 3, v{VT+1}
    v_xor_b32 v{VA1}, 64, v{VA0}
    v_mov_b32 v{VT}, {hx(CNT_LDS)}
    v_mov_b32 v{VT+1}, 0
    ds_write_b32 v{VT}, v{VT+1}
    s_mov_b32 s{S_RD}, 0
    """)
    for t in dKV(a): emit(a, t)
    for i in range(3):
        for t in dW(False): emit(a, t)
    nsecond = len(vq.q)
    for i in range(32): a(f"v_mov_b32 v{ACC+i}, 0")
    stp(a, 8)
    n = len(vq.q) - nfirst; vq.q = vq.q[nfirst:]
    a(f"s_waitcnt vmcnt({n}) lgkmcnt(0)\ns_barrier")
    stp(a, 9)
    for ks in range(2):
        for t in range(2):
            for j in range(2): emit(a, rdW(0, ks, t, j, False))
    for p in range(2, 6):
        for ks in range(2): emit(a, ldH(p, ks, False))
        if p & 1: a(f"s_add_u32 s{S_HK}, s{S_HK}, 4096")
    for t in dKV(a): emit(a, t)
    for i in range(3):
        for t in dW(False): emit(a, t)
    emit(a, (f"buffer_load_dword v{V1G}, v{VT+3}, s[{SRD_WS}:{SRD_WS+3}], s{S_T+2} offen", "vm", "g"))
    stp(a, 4); stp(a, 5, True)
    mark = {"n": len(vq.q) - (nsecond - nfirst)}
    def barrier(o):
        n = min(mark["n"], len(vq.q))
        vq.q = vq.q[len(vq.q)-n:]
        o(f"s_waitcnt vmcnt({n})")
        if "nobar" not in abl: o("s_barrier")
        mark["base"] = None
    def block(o, bars=(), extra=None, hsrc=lambda p: "H", peek=True, scale_after=None, pre=None, tail=None):
        extra = extra or {}; pre = pre or {}
        for p in range(6):
            if p in bars:
                barrier(o)
                cnt0 = len(vq.q)
                mark["cnt0"] = 0
            if p in pre: pre[p](o)
            fill = {0: [], 1: [], 2: [], 3: []}
            if p == 5 and peek:
                fill[0] += [f"s_cmp_eq_u32 s{S_RD}, {hx((RW-6)*4096)}", f"s_cselect_b32 s{S_T+1}, {hx(-(RW-6)*4096)}, s{S_T+3}",
                            f"v_add_u32 v{VA0}, s{S_T+1}, v{VA0}", f"v_add_u32 v{VA1}, s{S_T+1}, v{VA1}", f"s_add_u32 s{S_RD}, s{S_RD}, s{S_T+1}"]
            if p < 5 or peek:
                rs = [rdW(p+1, ks, t, j, False) for ks in range(2) for t in range(2) for j in range(2)]
                for i, r in enumerate(rs): fill[i//2].append(r)
            src = hsrc(p)
            if src:
                fill[1].append(ldH(p, 0, src == "O")); fill[3].append(ldH(p, 1, src == "O"))
                if p & 1: fill[3].append(f"s_add_u32 s{S_HK}, s{S_HK}, 4096")
            for i, ex in enumerate(extra.get(p, [])): fill[(2*i) % 4] += ex
            m = 0
            for ks in range(2):
                for t in range(2):
                    w = []
                    if ("H", p, ks) in vq.q: w.append(f"vmcnt({vq.need([('H', p, ks)])})")
                    if ("W", p & 1, ks, t) in lq.q: w.append(f"lgkmcnt({lq.need([('W', p & 1, ks, t)])})")
                    if w: o("s_waitcnt " + " ".join(w))
                    o(f"v_mfma_f32_32x32x16_bf16 {vr(ACC+16*t,16)}, {vr(wf(p&1,ks,t),4)}, {vr(H+p*8+ks*4,4)}, {vr(ACC+16*t,16)}")
                    before = len(vq.q)
                    for x in fill[m]: emit(o, x)
                    mark["cnt0"] = mark.get("cnt0", 0) + len(vq.q) - before
                    mark["n"] = mark["cnt0"]
                    m += 1
            if scale_after == p:
                if "g" in vq.q: o(f"s_waitcnt vmcnt({vq.need(['g'])})")
                o("s_nop 7\ns_nop 7")
                for i in range(16): o(f"v_pk_mul_f32 {vr(ACC+2*i,2)}, {vr(ACC+2*i,2)}, {vr(V1G,2)} op_sel_hi:[1,0]")
                o("s_nop 1")
        if tail:
            for t in tail: o(t)
    a(f"s_mov_b32 s{S_T+3}, {hx(6*4096)}")
    W_, KV_ = (lambda wo=False: dW(wo)), (lambda: dKV(None))
    mainx = {0: [KV_(), W_()], 1: [W_()], 2: [W_()], 3: [KV_(), W_()], 4: [W_(), W_()], 5: [W_()]}
    b0 = Asm(); block(b0, bars=(0, 3), extra=mainx)
    sq = (list(vq.q), list(lq.q), dict(mark))
    b1 = Asm(); block(b1, bars=(0, 3), extra=mainx)
    assert (list(vq.q), list(lq.q)) == sq[:2]
    a.l += b0.l
    a(f"s_mov_b32 s{S_CNT}, 13")
    a.raw(".p2align 6")
    a.raw(f"{name}_G_loop:")
    a.l += b1.l
    a(f"s_sub_u32 s{S_CNT}, s{S_CNT}, 1\ns_cbranch_scc0 {name}_G_loop")
    a(f"s_mov_b32 s{S_WK}, 0")
    WO_ = lambda: dW(True)
    block(a, bars=(0, 3), extra={0: [WO_()], 1: [WO_()], 2: [WO_()], 3: [WO_()], 4: [WO_(), WO_()], 5: [WO_()]})
    stp(a, 6); stp(a, 7, True)
    block(a, bars=(0,), extra={0: [WO_(), WO_()], 1: [WO_()], 2: [WO_()], 3: [WO_()], 4: [WO_()], 5: [WO_()]})
    def flagwait(o):
        stp(o, 10)
        o(f"""
        s_lshl_b32 s4, s{S_MI}, 7
        s_add_u32 s4, s4, {hx(WS_FLAG)}
        v_and_b32 v{VT}, 15, v0
        v_lshlrev_b32 v{VT}, 2, v{VT}
        s_mov_b32 s5, 0x400000
        s_lshl_b32 s{S_HK}, s{S_MT32}, 16
        s_add_u32 s{S_HK}, s{S_HK}, {hx(WS_O)}
        {name}_G_poll:
        buffer_load_dword v{VT+1}, v{VT}, s[{SRD_WS}:{SRD_WS+3}], s4 offen sc1
        s_sub_u32 s5, s5, 1
        s_cbranch_scc1 {name}_G_go
        s_waitcnt vmcnt(0)
        v_cmp_ne_u32 vcc, 0, v{VT+1}
        s_nop 1
        s_cmp_eq_u64 vcc, -1
        s_cbranch_scc1 {name}_G_go
        s_sleep 2
        s_branch {name}_G_poll
        {name}_G_go:
        s_waitcnt vmcnt(0)
        """)
        stp(o, 11)
        vq.q = []
    block(a, hsrc=lambda p: "H" if p < 4 else "O", pre={4: flagwait})
    block(a, bars=(0,), hsrc=lambda p: "O", scale_after=3, extra={p: [WO_(), WO_()] for p in range(6)})
    block(a, bars=(0,), hsrc=lambda p: "O", extra={p: [WO_()] for p in range(6)})
    b0 = Asm(); block(b0, bars=(0,), hsrc=lambda p: "O")
    sq = (list(vq.q), list(lq.q))
    b1 = Asm(); block(b1, bars=(0,), hsrc=lambda p: "O")
    assert (list(vq.q), list(lq.q)) == sq
    a.l += b0.l
    a(f"s_mov_b32 s{S_CNT}, 1")
    a.raw(f"{name}_G_loop2:")
    a.l += b1.l
    a(f"s_sub_u32 s{S_CNT}, s{S_CNT}, 1\ns_cbranch_scc0 {name}_G_loop2")
    block(a, hsrc=lambda p: None, peek=False)
    stp(a, 12)
    a(f"""
    v_and_b32 v{VT}, 31, v0
    v_lshlrev_b32 v{VT}, 11, v{VT}
    v_lshrrev_b32 v{VT+1}, 5, v0
    v_lshl_add_u32 v{VT}, v{VT+1}, 4, v{VT}
    s_lshl_b32 s4, s{S_MT32}, 16
    s_lshl_b32 s5, s{S_NI}, 7
    s_add_u32 s4, s4, s5
    s_nop 4
    """)
    for t in range(2):
        for p in range(2):
            r = H + (t*2+p)*4
            for i in range(4): a(f"v_cvt_pk_bf16_f32 v{r+i}, v{ACC+16*t+8*p+2*i}, v{ACC+16*t+8*p+2*i+1}")
            a("s_nop 1")
            a(f"v_permlane32_swap_b32 v{r}, v{r+2}\nv_permlane32_swap_b32 v{r+1}, v{r+3}")
            a(f"buffer_store_dwordx4 {vr(r,4)}, v{VT}, s[{SRD_OUT}:{SRD_OUT+3}], s4 offen offset:{64*t+32*p}")
    a.raw(f"{name}_fin:")
    if stamp:
        T = 200
        a("s_waitcnt vmcnt(0)")
        stp(a, 13); stp(a, 14, True)
        a(f"""
        s_lshl_b32 s4, s2, 3
        s_add_u32 s4, s4, s{S_WAVE}
        s_lshl_b32 s4, s4, 6
        s_add_u32 s4, s4, {hx(0x1E80000)}
        s_mov_b64 exec, -1
        v_mov_b32 v199, 0
        """)
        for i, (r, rel) in enumerate([(4,1),(6,1),(13,1),(2,0),(14,0),(0,0),(5,0),(7,0),(8,1),(9,1),(10,1),(11,1),(12,1)]):
            if rel: a(f"s_sub_u32 s{ST+r}, s{ST+r}, s{ST}")
            a(f"v_mov_b32 v{T+i}, s{ST+r}")
        a("s_mov_b64 exec, 1")
        for i in range(4):
            a(f"buffer_store_dwordx4 v[{T+4*i}:{T+4*i+3}], v199, s[{SRD_WS}:{SRD_WS+3}], s4 offen offset:{16*i}")
    a.raw(f"{name}_end:")
    a("s_endpgm")
    return a.text()
```

```python
import sys
from common import *
import k1v6 as k1v3, k2v7 as k2
def build(stamp=False, o1=(), o2=()):
    s = open("gated_mix__grouped_kv_mqa__glu_gated_glu__prompt.s.ref").read().split("; Override launch")[0]
    s += "; @launch kernel=k1_kernel grid=(256,1,1) block=(512,1,1) lds=163840\n"
    s += "; @launch kernel=k2_kernel grid=(256,1,1) block=(512,1,1) lds=163840\n"
    s += '.amdgcn_target "amdgcn-amd-amdhsa--gfx950"\n.text\n'
    s += k1v3.gen_k1(stamp=stamp, abl=o1) + k2.gen_k2(stamp=stamp, abl=o2)
    s += kernel_desc("k1_kernel") + kernel_desc("k2_kernel")
    return s
if __name__ == "__main__":
    args = sys.argv[2:]
    o1 = [x[2:] for x in args if x.startswith("1:")]; o2 = [x[2:] for x in args if x.startswith("2:")]
    open(sys.argv[1], "w").write(build("stamp" in args, o1, o2))
```

```python
from common import *

XSZ = 32768
WB = 98304; WSZ = 32768
KVB = 65536; KVSZ = 8192
K1_LDS = 163840

V_X0, V_X1, V_W0, V_W1, V_KV = 1, 2, 3, 4, 5
V_DX = 6
V_DW = 8
V_DKV = 12
V_P, V_PD, V_GA, V_GO, V_GX, V_GW, V_GZ = 6, 7, 8, 9, 10, 11, 12
V_GT = 14
V_ST, V_ST2 = 14, 15
KVW = 16
KVA = 24
WF = 32
XF = 96
ACC = 128
def acc(u, s): return ACC + (u*4+s)*4
def wf(st, s, kh): return WF + st*32 + s*8 + kh*4
def xf(u, kh): return XF + (u & 3)*8 + kh*4

S_WAVE = 3
SRD_X, SRD_W0, SRD_W1, SRD_K, SRD_V, SRD_WS, SRD_G, SRD_P = 8, 12, 16, 20, 24, 44, 48, 52
S_MT, S_NT, S_Q, S_WM, S_WN = 56, 57, 58, 59, 60
S_XA = 61
S_WK, S_KVK, S_WSTEP = 65, 66, 67
S_XT, S_XT1, S_XT2 = 68, 69, 70
S_WT, S_KVT = 71, 72
S_D, S_D2, S_CNT, S_C32 = 73, 74, 75, 76
S_PK, S_PSTEP, S_GK, S_MSK = 77, 78, 79, 80
S_ROT = 81
S_E0, S_E1, S_E2, S_E3 = 82, 83, 84, 85
ST = 86

def gen_k1(name="k1_kernel", stamp=False, abl=()):
    PD = 1
    for x in abl:
        if x.startswith("pd"): PD = int(x[2:])
    pf = "nopf" not in abl
    NUPF = 10; NUPQ = 14
    for x in abl:
        if x.startswith("upf"): NUPF = int(x[3:])
        if x.startswith("upq"): NUPQ = int(x[3:])
    uniq = "uniq" in abl
    SC = (" sc0" if "ssc0" in abl else "") + (" sc1" if "ssc1" in abl else "") + (" nt" if "snt" in abl else "")
    a = Asm()
    def stp(o, i, real=False):
        if stamp:
            o(f"{'s_memrealtime' if real else 's_memtime'} s[4:5]\ns_waitcnt lgkmcnt(0)\ns_mov_b32 s{ST+i}, s4")
    T = 96
    a.raw(f".globl {name}\n.p2align 8\n.type {name},@function\n{name}:")
    if stamp: a(f"s_memtime s[{ST}:{ST+1}]\ns_memrealtime s[{ST+2}:{ST+3}]")
    a(f"""
    s_load_dwordx4 s[28:31], s[0:1], 0
    s_load_dwordx4 s[36:39], s[0:1], 48
    s_load_dwordx4 s[32:35], s[0:1], 16
    s_load_dwordx2 s[40:41], s[0:1], 72
    s_load_dwordx2 s[42:43], s[0:1], 96
    s_cmp_ge_u32 s2, 256
    s_cbranch_scc1 {name}_end
    v_lshrrev_b32 v1, 6, v0
    v_and_b32 v0, 63, v0
    v_readfirstlane_b32 s{S_WAVE}, v1
    s_and_b32 s4, s2, 7
    s_lshr_b32 s5, s2, 3
    s_and_b32 s6, s4, 1
    s_lshl_b32 s6, s6, 2
    s_and_b32 s7, s5, 3
    s_add_u32 s{S_MT}, s6, s7
    s_lshr_b32 s4, s4, 1
    s_lshl_b32 s4, s4, 3
    s_lshr_b32 s5, s5, 2
    s_add_u32 s{S_NT}, s4, s5
    s_lshr_b32 s{S_WM}, s{S_WAVE}, 2
    s_and_b32 s{S_WN}, s{S_WAVE}, 3
    s_sub_u32 s{S_Q}, s{S_NT}, 28
    s_cselect_b32 s{S_Q}, 0, s{S_Q}
    s_cselect_b32 s4, 7168, 0
    s_cselect_b32 s5, 0, 2048
    s_add_u32 s4, s4, s5
    s_lshl_b32 s5, s{S_NT}, 8
    s_lshl_b32 s6, s{S_Q}, 9
    s_cmp_ge_u32 s{S_NT}, 28
    s_cselect_b32 s5, s6, s5
    s_lshl_b32 s{S_WSTEP}, s4, 6
    s_mov_b32 s{SRD_X+2}, 0x400000
    s_mov_b32 s{SRD_X+3}, 0x20000
    s_mov_b32 s{SRD_W0+3}, 0x20000
    s_mov_b32 s{SRD_W1+3}, 0x20000
    s_mov_b32 s{SRD_WS+2}, {hx(WS_SIZE)}
    s_mov_b32 s{SRD_WS+3}, 0x20000
    s_mov_b32 s{S_C32}, {hx(XSZ)}
    s_cmp_lt_u32 s{S_WAVE}, 4
    s_cbranch_scc1 {name}_cpro
    """)
    def srd_w(o):
        o(f"""
        s_add_u32 s6, s30, 256
        s_addc_u32 s7, s31, 0
        s_cmp_ge_u32 s{S_NT}, 28
        s_cselect_b32 s{SRD_W0}, s30, s36
        s_cselect_b32 s{SRD_W0+1}, s31, s37
        s_cselect_b32 s{SRD_W1}, s6, s38
        s_cselect_b32 s{SRD_W1+1}, s7, s39
        s_mov_b32 s6, 0x700000
        s_cselect_b32 s{SRD_W0+2}, 0x200000, s6
        s_cselect_b32 s{SRD_W1+2}, 0x1fff00, s6
        s_mov_b32 s{SRD_X}, s28
        s_mov_b32 s{SRD_X+1}, s29
        """)
    def lds_addrs(o):
        o(f"""
        v_and_b32 v{T}, 15, v0
        v_lshrrev_b32 v{T+1}, 4, v0
        s_lshl_b32 s6, s{S_WM}, 14
        v_lshlrev_b32 v{T+2}, 7, v{T}
        v_add_u32 v{T+2}, s6, v{T+2}
        v_lshrrev_b32 v{T+3}, 1, v{T}
        v_xor_b32 v{T+3}, v{T+3}, v{T+1}
        v_lshl_add_u32 v{V_X0}, v{T+3}, 4, v{T+2}
        v_xor_b32 v{V_X1}, 64, v{V_X0}
        v_bfe_u32 v{T+2}, v0, 2, 2
        v_and_b32 v{T+3}, 3, v0
        v_lshl_add_u32 v{T+4}, v{T+1}, 3, v{T+2}
        v_and_b32 v{T+5}, 1, v{T+1}
        v_lshl_or_b32 v{T+6}, v{T+5}, 2, v{T+2}
        s_lshl_b32 s6, s{S_WN}, 1
        v_xor_b32 v{T+6}, s6, v{T+6}
        v_lshlrev_b32 v{T+6}, 5, v{T+6}
        v_lshl_add_u32 v{T+6}, v{T+4}, 8, v{T+6}
        v_lshl_add_u32 v{T+6}, v{T+3}, 3, v{T+6}
        v_add_u32 v{V_W0}, {hx(WB)}, v{T+6}
        v_xor_b32 v{V_W1}, 32, v{V_W0}
        s_and_b32 s6, s{S_WN}, 1
        v_xor_b32 v{T+5}, s6, v{T+5}
        v_lshlrev_b32 v{T+5}, 5, v{T+5}
        v_lshl_add_u32 v{T+5}, v{T+4}, 6, v{T+5}
        v_lshl_add_u32 v{T+5}, v{T+3}, 3, v{T+5}
        s_lshr_b32 s6, s{S_WN}, 1
        s_lshl_b32 s6, s6, 12
        s_add_u32 s6, s6, {hx(KVB)}
        v_add_u32 v{V_KV}, s6, v{T+5}
        s_mov_b32 s{SRD_WS}, s42
        s_mov_b32 s{SRD_WS+1}, s43
        s_mov_b32 s{S_XT1}, {hx(XSZ)}
        s_mov_b32 s{S_XT2}, {hx(2*XSZ)}
        """)
    def dispatch(o, h):
        o(f"""
        s_cmp_lt_u32 s{S_NT}, 28
        s_cbranch_scc1 {name}_F{h}
        s_cmp_lt_u32 s{S_WN}, 2
        s_cbranch_scc1 {name}_K{h}
        s_branch {name}_V{h}
        """)
    a(f"""
    v_lshrrev_b32 v{T}, 3, v0
    v_lshrrev_b32 v{T+1}, 4, v0
    v_and_b32 v{T+2}, 7, v0
    v_lshlrev_b32 v{T}, 11, v{T}
    v_xor_b32 v{T+2}, v{T+1}, v{T+2}
    v_lshl_add_u32 v{V_DX}, v{T+2}, 4, v{T}
    v_xor_b32 v{V_DX+1}, 64, v{V_DX}
    v_add_u32 v{V_DX+1}, 0x4000, v{V_DX+1}
    s_lshl_b32 s6, s{S_WN}, 4
    v_add_u32 v{T+3}, s6, v{T+1}
    v_mul_lo_u32 v{T+3}, v{T+3}, s4
    v_bfe_u32 v{T+2}, v0, 1, 3
    v_xor_b32 v{T}, v{T+1}, v{T+2}
    v_lshlrev_b32 v{T}, 5, v{T}
    v_and_b32 v{T+2}, 1, v0
    v_lshl_add_u32 v{T}, v{T+2}, 4, v{T}
    v_add3_u32 v{V_DW}, v{T}, v{T+3}, s5
    s_lshl_b32 s6, s4, 2
    v_add_u32 v{V_DW+1}, s6, v{V_DW}
    v_xor_b32 v{T}, 0x80, v{T}
    v_add3_u32 v{V_DW+2}, v{T}, v{T+3}, s5
    s_lshl_b32 s7, s4, 3
    v_add_u32 v{V_DW+2}, s7, v{V_DW+2}
    v_add_u32 v{V_DW+3}, s6, v{V_DW+2}
    s_lshl_b32 s6, s{S_WN}, 1
    s_and_b32 s7, s6, 2
    s_add_u32 s7, s7, s{S_Q}
    s_and_b32 s6, s6, 4
    s_lshl_b32 s4, s{S_MT}, 3
    s_add_u32 s6, s6, s4
    s_and_b32 s4, s7, 3
    s_add_u32 s4, s4, s6
    s_lshl_b32 s{S_XA}, s4, 16
    s_add_u32 s7, s7, 1
    s_and_b32 s4, s7, 3
    s_add_u32 s4, s4, s6
    s_lshl_b32 s{S_XA+2}, s4, 16
    s_add_u32 s{S_XA+1}, s{S_XA}, 0x8000
    s_add_u32 s{S_XA+3}, s{S_XA+2}, 0x8000
    s_lshl_b32 s{S_XT}, s{S_WN}, 13
    s_lshl_b32 s{S_WT}, s{S_WN}, 12
    s_add_u32 s{S_WT}, s{S_WT}, {hx(WB)}
    s_lshl_b32 s{S_KVT}, s{S_WN}, 10
    s_add_u32 s{S_KVT}, s{S_KVT}, {hx(KVB)}
    s_mov_b32 s{S_WK}, 0
    s_mov_b32 s{S_KVK}, 0
    v_lshrrev_b32 v{T}, 2, v0
    s_lshl_b32 s6, s{S_WN}, 4
    v_add_u32 v{T}, s6, v{T}
    v_lshlrev_b32 v{T}, 6, v{T}
    v_lshrrev_b32 v{T+1}, 5, v0
    v_lshlrev_b32 v{T+1}, 1, v{T+1}
    v_and_b32 v{T+2}, 3, v0
    v_xor_b32 v{T+1}, v{T+1}, v{T+2}
    v_lshl_add_u32 v{V_DKV}, v{T+1}, 4, v{T}
    s_mov_b32 s{SRD_K+2}, 0x10000
    s_mov_b32 s{SRD_K+3}, 0x20000
    s_mov_b32 s{SRD_V+2}, 0x10000
    s_mov_b32 s{SRD_V+3}, 0x20000
    s_waitcnt lgkmcnt(0)
    """)
    stp(a, 8)
    srd_w(a)
    a(f"""
    s_mov_b32 s{SRD_K}, s32
    s_mov_b32 s{SRD_K+1}, s33
    s_mov_b32 s{SRD_V}, s34
    s_mov_b32 s{SRD_V+1}, s35
    """)
    def dma(vo, srd, so, mb, mo, post=()):
        return [f"s_add_u32 m0, s{mb}, {hx(mo)}" if mo else f"s_mov_b32 m0, s{mb}",
                f"buffer_load_dwordx4 v{vo}, s[{srd}:{srd+3}], s{so} offen lds"] + list(post)
    def dWl(slot):
        r = []
        for i in range(4):
            r.append(dma(V_DW+i, SRD_W0, S_WK, S_WT, slot*WSZ + i*1024))
            r.append(dma(V_DW+i, SRD_W1, S_WK, S_WT, slot*WSZ + 16384 + i*1024))
        r[-1] += [f"s_add_u32 s{S_WK}, s{S_WK}, s{S_WSTEP}"]
        return r
    def dXl(off):
        return [dma(V_DX+(i & 1), SRD_X, S_XA+(i >> 1), S_XT, off + i*1024,
                    post=([f"s_add_u32 s{S_XA+(i>>1)}, s{S_XA+(i>>1)}, 128"] if i & 1 else [])) for i in range(8)]
    def dKVl(slot):
        return [dma(V_DKV, SRD_K, S_KVK, S_KVT, slot*KVSZ),
                dma(V_DKV, SRD_V, S_KVK, S_KVT, slot*KVSZ+4096, post=[f"s_add_u32 s{S_KVK}, s{S_KVK}, 4096"])]
    def burst(o, l):
        for g in l:
            o(g[0]); o("s_nop 0")
            for t in g[1:]: o(t)
    def dW(o, slot): burst(o, dWl(slot))
    def dX(o, off): burst(o, dXl(off))
    def dKV(o, slot): burst(o, dKVl(slot))
    dW(a, 0); dX(a, 0)
    stp(a, 9)
    if stamp: a(f"s_mov_b32 s{ST+15}, 0")
    lds_addrs(a)
    dispatch(a, "L")
    a.raw(f"{name}_cpro:")
    if "noprio" not in abl: a("s_setprio 1")
    a(f"""
    s_mov_b32 s{SRD_G+2}, 0x800
    s_mov_b32 s{SRD_G+3}, 0x20000
    s_lshl_b32 s4, s{S_NT}, 2
    s_add_u32 s4, s4, s{S_WN}
    s_lshl_b32 s4, s4, 1
    v_lshrrev_b32 v{T}, 5, v0
    v_add_u32 v{T}, s4, v{T}
    s_lshl_b32 s5, s{S_Q}, 5
    v_subrev_u32 v{T+1}, s5, v{T}
    v_and_b32 v{T+1}, 127, v{T+1}
    v_and_b32 v{T}, 128, v{T}
    v_or_b32 v{T}, v{T}, v{T+1}
    v_bfe_u32 v{T+1}, v{T}, 1, 3
    v_bfe_u32 v{T+2}, v0, 2, 3
    v_xor_b32 v{T+1}, v{T+1}, v{T+2}
    v_lshlrev_b32 v{T}, 7, v{T}
    v_lshl_add_u32 v{T}, v{T+1}, 4, v{T}
    v_and_b32 v{T+1}, 3, v0
    v_lshl_add_u32 v{V_GA}, v{T+1}, 2, v{T}
    v_and_b32 v{V_GO}, 31, v0
    v_lshlrev_b32 v{V_GO}, 2, v{V_GO}
    v_mov_b32 v{V_GZ}, 0
    v_mov_b32 v{V_GZ+1}, 0
    s_mov_b32 s{S_MSK}, 0xffff0000
    s_mov_b32 s{S_GK}, 0
    s_mov_b32 s{S_XT}, 0
    s_waitcnt lgkmcnt(0)
    """)
    stp(a, 8)
    a(f"""
    s_mov_b32 s{SRD_G}, s40
    s_mov_b32 s{SRD_G+1}, s41
    buffer_load_dword v{V_GW}, v{V_GO}, s[{SRD_G}:{SRD_G+3}], s{S_GK} offen
    s_add_u32 s{S_GK}, s{S_GK}, 128
    """)
    stp(a, 9)
    lds_addrs(a)
    dispatch(a, "C")

    w2 = "now2" not in abl
    VP, VP2, VPD = 16, 17, 18
    PFL = [[f"s_nop 0", f"buffer_load_dword v{VPD}, v{VP}, s[{SRD_P}:{SRD_P+3}], s{S_PK} offen", f"s_add_u32 s{S_PK}, s{S_PK}, s{S_PSTEP}"]]
    if w2: PFL.append([f"s_nop 0", f"buffer_load_dword v{VPD}, v{VP2}, s[{SRD_K}:{SRD_K+3}], s{S_KVT} offen", f"s_add_u32 s{S_KVT}, s{S_KVT}, s{S_KVK}"])
    NPF = len(PFL) if pf else 0
    def p_setup(o):
        T = 20
        o(f"""
        s_load_dwordx2 s[24:25], s[0:1], 64
        s_load_dwordx2 s[26:27], s[0:1], 32
        s_mul_i32 s6, s{S_MT}, 28
        s_add_u32 s6, s6, s{S_NT}
        v_lshrrev_b32 v{T}, 2, v0
        v_lshlrev_b32 v{T}, 7, v{T}
        s_lshl_b32 s7, s6, 11
        v_add_u32 v{T}, s7, v{T}
        v_min_u32 v{T+1}, 9, v0
        s_mul_i32 s7, s6, 10
        v_add_u32 v{T+1}, s7, v{T+1}
        v_min_u32 v{T+1}, 2047, v{T+1}
        v_lshlrev_b32 v{T+1}, 11, v{T+1}
        v_lshrrev_b32 v{VP2}, 3, v0
        v_lshlrev_b32 v{VP2}, 7, v{VP2}
        s_cmp_ge_u32 s6, 128
        s_cselect_b32 s7, 3, 127
        s_and_b32 s7, s7, s6
        s_lshl_b32 s7, s7, 10
        v_add_u32 v{T+2}, s7, v{VP2}
        s_cmp_ge_u32 s6, 128
        s_cselect_b32 s7, 1, 32
        s_lshl_b32 s7, s7, 12
        s_cmp_eq_u32 s{S_WN}, 2
        s_cselect_b64 vcc, -1, 0
        s_cselect_b32 s{S_PSTEP}, 128, s{S_WSTEP}
        v_cndmask_b32 v{VP}, v{T}, v{T+1}, vcc
        s_cselect_b32 s{SRD_P}, s{SRD_X}, s{SRD_W0}
        s_cselect_b32 s{SRD_P+1}, s{SRD_X+1}, s{SRD_W0+1}
        s_cselect_b32 s{SRD_P+2}, s{SRD_X+2}, s{SRD_W0+2}
        s_cmp_eq_u32 s{S_WN}, 1
        s_cselect_b32 s{SRD_P}, s{SRD_W1}, s{SRD_P}
        s_cselect_b32 s{SRD_P+1}, s{SRD_W1+1}, s{SRD_P+1}
        s_cmp_eq_u32 s{S_WN}, 3
        s_cselect_b64 vcc, -1, 0
        s_cselect_b32 s{S_PSTEP}, s7, s{S_PSTEP}
        v_cndmask_b32 v{VP}, v{VP}, v{T+2}, vcc
        s_mul_i32 s{S_PK}, s{S_PSTEP}, {2+PD}
        s_cmp_ge_u32 s6, 132
        s_cselect_b32 s4, s34, s32
        s_cselect_b32 s7, s35, s33
        s_cmp_ge_u32 s6, 136
        s_cselect_b32 s5, 0, 0x10000
        s_cmp_lt_u32 s6, 128
        s_cselect_b32 s4, s30, s4
        s_cselect_b32 s7, s31, s7
        s_cselect_b32 s5, 0x200000, s5
        s_cmp_eq_u32 s{S_WN}, 3
        s_cselect_b32 s{SRD_P}, s4, s{SRD_P}
        s_cselect_b32 s{SRD_P+1}, s7, s{SRD_P+1}
        s_cselect_b32 s{SRD_P+2}, s5, s{SRD_P+2}
        s_mov_b32 s{SRD_P+3}, 0x20000
        s_mul_i32 s4, s6, 3
        s_add_u32 s4, s4, s{S_WN}
        s_mov_b32 s5, 0x700000
        s_mov_b32 s7, {672*1024}
        s_waitcnt lgkmcnt(0)
        s_cmp_eq_u32 s{S_WN}, 3
        s_cselect_b32 s4, s6, s4
        s_cselect_b32 s{SRD_K}, s26, s24
        s_cselect_b32 s{SRD_K+1}, s27, s25
        s_cselect_b32 s{SRD_K+2}, 0x200000, s5
        s_cselect_b32 s{S_KVK}, {224*1024}, s7
        s_lshl_b32 s{S_KVT}, s4, 10
        """)
    WORDER = [(0,0),(0,1),(1,1),(1,0),(2,0),(2,1),(3,1),(3,0)]
    def rd_w(st, slot, s, kh, j):
        blk, b = s >> 1, s & 1
        r = wf(st, s, kh) + j*2
        return (f"ds_read_b64_tr_b16 v[{r}:{r+1}], v{V_W0+b} offset:{slot*WSZ + blk*16384 + kh*8192 + j*1024}", ("W", st, s, kh))
    def rd_x(role, slot, u, kh):
        r = xf(u, kh)
        off = u*2048 + (0 if role == "F" else slot*XSZ)
        return (f"ds_read_b128 v[{r}:{r+3}], v{V_X0+kh} offset:{off}", ("x", u, kh))
    def rd_kv(slot, kh, j):
        r = KVW + kh*4 + j*2
        return (f"ds_read_b64_tr_b16 v[{r}:{r+1}], v{V_KV} offset:{slot*KVSZ + kh*2048 + j*256}", ("kv", kh))

    def gate_acc(nvm):
        t = V_GT
        return [f"s_waitcnt vmcnt({nvm})",
                f"v_lshlrev_b32 v{t}, 16, v{V_GX}", f"v_and_b32 v{t+1}, s{S_MSK}, v{V_GX}",
                f"v_lshlrev_b32 v{V_GX}, 16, v{V_GW}", f"v_and_b32 v{V_GW}, s{S_MSK}, v{V_GW}",
                f"v_pk_mul_f32 v[{t}:{t+1}], v[{t}:{t+1}], v[{V_GX}:{V_GW}]",
                f"v_cvt_pk_bf16_f32 v{t+1}, v{t}, v{t+1}",
                f"v_lshlrev_b32 v{t}, 16, v{t+1}", f"v_and_b32 v{t+1}, s{S_MSK}, v{t+1}",
                f"v_pk_add_f32 v[{V_GZ}:{V_GZ+1}], v[{V_GZ}:{V_GZ+1}], v[{t}:{t+1}]"]
    def gate_fin():
        z = V_GZ; t = V_GX
        g = [f"v_add_f32 v{z}, v{z}, v{z+1}"]
        for sh in ("row_shr:1", "row_shr:2", "row_shr:4", "row_shr:8"):
            g += ["s_nop 1", f"v_add_f32_dpp v{z}, v{z}, v{z} {sh} row_mask:0xf bank_mask:0xf bound_ctrl:1"]
        g += ["s_nop 1", f"v_add_f32_dpp v{z}, v{z}, v{z} row_bcast:15 row_mask:0xa bank_mask:0xf",
              f"v_cvt_pk_bf16_f32 v{t}, v{z}, v{z}", f"v_lshlrev_b32 v{t}, 16, v{t}",
              f"v_mul_f32 v{t}, {hx(f2u(-LOG2E))}, v{t}", f"v_exp_f32 v{t}, v{t}",
              f"s_lshl_b32 s4, s{S_MT}, 5", f"v_add_f32 v{t}, 1.0, v{t}",
              f"v_rcp_f32 v{t}, v{t}", f"s_add_u32 s4, s4, s{S_NT}", f"v_cvt_pk_bf16_f32 v{t}, v{t}, v{t}", f"v_lshlrev_b32 v{t}, 16, v{t}",
              f"v_sub_f32 v{t+1}, 1.0, v{t}", f"v_cvt_pk_bf16_f32 v{t+1}, v{t+1}, v{t+1}", f"v_lshlrev_b32 v{t+1}, 16, v{t+1}",
              f"v_lshrrev_b32 v{z}, 5, v0", f"v_lshlrev_b32 v{z}, 3, v{z}",
              "s_lshl_b32 s4, s4, 2", f"s_add_u32 s4, s4, s{S_WN}", "s_lshl_b32 s4, s4, 4", f"s_add_u32 s4, s4, {hx(WS_GATE)}",
              "s_mov_b32 exec_lo, 0x80000000", "s_mov_b32 exec_hi, 0x80000000",
              f"buffer_store_dwordx2 v[{t}:{t+1}], v{z}, s[{SRD_WS}:{SRD_WS+3}], s4 offen",
              "s_mov_b64 exec, -1", f"s_lshl_b32 s4, s2, 3", f"s_add_u32 s4, s4, s{S_WAVE}", "s_cmp_ge_u32 s4, 8", f"s_cbranch_scc1 {name}_fin",
              f"v_lshlrev_b32 v{z}, 2, v0", f"v_mov_b32 v{z+1}, 0", "s_and_b32 s4, s4, 3", "s_lshl_b32 s4, s4, 9", f"s_add_u32 s4, s4, {hx(WS_FLAG)}",
              f"buffer_store_dword v{z+1}, v{z}, s[{SRD_WS}:{SRD_WS+3}], s4 offen",
              f"buffer_store_dword v{z+1}, v{z}, s[{SRD_WS}:{SRD_WS+3}], s4 offen offset:256"]
        return g

    def epi_group(role, u):
        e = []
        TE = WF
        if role == "F":
            G = acc(u, 0); U = acc(u, 2)
            for i in range(4): e.append(f"v_pk_mul_f32 v[{G+2*i}:{G+2*i+1}], v[{G+2*i}:{G+2*i+1}], s[{S_E0}:{S_E1}]")
            for i in range(8): e.append(f"v_exp_f32 v{G+i}, v{G+i}")
            for i in range(4): e.append(f"v_pk_add_f32 v[{G+2*i}:{G+2*i+1}], v[{G+2*i}:{G+2*i+1}], 1.0 op_sel_hi:[1,0]")
            for i in range(8): e.append(f"v_rcp_f32 v{G+i}, v{G+i}")
            for i in range(4): e.append(f"v_pk_mul_f32 v[{U+2*i}:{U+2*i+1}], v[{U+2*i}:{U+2*i+1}], v[{G+2*i}:{G+2*i+1}]")
            o = TE + (u & 1)*4
            for i in range(4): e.append(f"v_cvt_pk_bf16_f32 v{o+i}, v{U+2*i}, v{U+2*i+1}")
            e.append(f"buffer_store_dwordx4 v[{o}:{o+3}], v{V_ST}, s[{SRD_WS}:{SRD_WS+3}], s{S_E2} offen offset:{(u&1)*1024}" + SC)
            if u & 1 and u < 7: e.append(f"s_add_u32 s{S_E2}, s{S_E2}, {112*2048}")
        else:
            if u % 2 == 0:
                e += [f"s_add_u32 s4, s{S_Q}, {u>>1}", "s_and_b32 s4, s4, 3", f"s_add_u32 s4, s4, s{S_E2}", "s_lshl_b32 s4, s4, 16", f"s_add_u32 s4, s4, s{S_E3}"]
            for blk in range(2):
                R = acc(u, 2*blk)
                for i in range(4): e.append(f"v_pk_mul_f32 v[{R+2*i}:{R+2*i+1}], v[{R+2*i}:{R+2*i+1}], s[{S_E0}:{S_E1}]")
                o = TE + 8 + blk*4
                for i in range(4): e.append(f"v_cvt_pk_bf16_f32 v{o+i}, v{R+2*i}, v{R+2*i+1}")
                e.append(f"buffer_store_dwordx4 v[{o}:{o+3}], v{V_ST if blk == 0 else V_ST2}, s[{SRD_WS}:{SRD_WS+3}], s4 offen offset:{(u&1)*1024}" + SC)
        return e
    def epi_setup(role):
        TE = WF + 16
        e = [f"v_lshlrev_b32 v{V_ST}, 4, v0",
             f"s_lshl_b32 s4, s{S_MT}, 3", f"s_lshl_b32 s5, s{S_WM}, 2", f"s_add_u32 s{S_E2}, s4, s5"]
        if role == "F":
            e += [f"s_mul_i32 s4, s{S_E2}, 112", f"s_lshl_b32 s5, s{S_NT}, 2", "s_add_u32 s4, s4, s5", f"s_add_u32 s4, s4, s{S_WN}",
                  f"s_lshl_b32 s{S_E2}, s4, 11", f"s_mov_b32 s{S_E0}, {hx(f2u(-LOG2E))}", f"s_mov_b32 s{S_E1}, {hx(f2u(-LOG2E))}"]
        else:
            e += [f"s_lshl_b32 s7, s{S_Q}, 3", f"s_add_u32 s7, s7, s{S_WN}", "s_lshl_b32 s7, s7, 11", f"s_add_u32 s{S_E3}, s7, {hx(WS_Q)}",
                  f"s_mov_b32 s{S_E0}, {hx(f2u(QSCALE))}", f"s_mov_b32 s{S_E1}, {hx(f2u(QSCALE))}", f"v_add_u32 v{V_ST2}, 0x2000, v{V_ST}"]
        return e
    def epi_kv(role):
        TE = WF + 16
        e = [f"s_add_u32 s5, s{S_E2}, s{S_Q}", "s_lshl_b32 s5, s5, 12", f"s_and_b32 s6, s{S_WN}, 1"]
        cv = [f"v_cvt_pk_bf16_f32 v{TE+4+i}, v{KVA+2*i}, v{KVA+2*i+1}" for i in range(4)]
        if role == "K":
            e += ["s_lshl_b32 s6, s6, 3", "s_add_u32 s5, s5, s6", f"s_add_u32 s5, s5, {hx(WS_KV)}"] + cv
            e += [f"buffer_store_dwordx2 v[{TE+4}:{TE+5}], v{V_ST}, s[{SRD_WS}:{SRD_WS+3}], s5 offen",
                  f"buffer_store_dwordx2 v[{TE+6}:{TE+7}], v{V_ST}, s[{SRD_WS}:{SRD_WS+3}], s5 offen offset:1024"]
        else:
            e += ["s_lshl_b32 s6, s6, 10", "s_add_u32 s5, s5, s6", f"s_add_u32 s5, s5, {hx(WS_KV+2048)}"] + cv
            e += [f"buffer_store_dwordx4 v[{TE+4}:{TE+7}], v{V_ST}, s[{SRD_WS}:{SRD_WS+3}], s5 offen"]
        return e

    def stage(o, lq, role, half, par, first=False, dW_on=True, dX_on=True, pf_on=True, nxt_reads=True, vm=None, bar=True, last=False, tail=None, gvm=1, w2pf=False, xstop=False):
        cur, nxt = par, 1-par
        kv = role != "F"
        C = half == "C"
        fill = {}
        def put(slot, t):
            txt = t[0] if isinstance(t, tuple) else t
            if "nolds" in abl and txt.startswith("ds_"): return
            fill.setdefault(slot, []).append(t)
        put(0, rd_x(role, cur, 3, 0)); put(1, rd_x(role, cur, 3, 1))
        for u in range(4):
            put(8*u+8, rd_x(role, cur, u+4, 0)); put(8*u+9, rd_x(role, cur, u+4, 1))
        if C:
            put(2 if last else 26, (f"ds_read_b32 v{V_GX}, v{V_GA} offset:{0 if role == 'F' else cur*XSZ}", ("g",)))
        if nxt_reads:
            if role == "F":
                put(34, f"s_cmp_eq_u32 s{S_XT}, s{S_XT2}")
                put(34, f"s_cselect_b32 s{S_D2}, {hx(-2*XSZ)}, s{S_C32}")
                put(35, f"v_add_u32 v{V_X0}, s{S_D2}, v{V_X0}")
                put(36, f"v_add_u32 v{V_X1}, s{S_D2}, v{V_X1}")
                if C: put(37, f"v_add_u32 v{V_GA}, s{S_D2}, v{V_GA}")
                put(62, f"s_add_u32 s{S_XT}, s{S_XT}, s{S_D2}")
            for u in range(3):
                put(8*u+40, rd_x(role, nxt, u, 0)); put(8*u+41, rd_x(role, nxt, u, 1))
            wslots = [42,43,44,45,46,47,50,51,52,53,54,55,58,59,60,61]
            for n, (s, kh) in enumerate(WORDER):
                put(wslots[2*n], rd_w(nxt, nxt, s, kh, 0)); put(wslots[2*n+1], rd_w(nxt, nxt, s, kh, 1))
            if kv:
                put(62, rd_kv(nxt, 0, 0)); put(62, rd_kv(nxt, 0, 1)); put(63, rd_kv(nxt, 1, 0)); put(63, rd_kv(nxt, 1, 1))
        dl = []; NUP = NUPQ if kv else NUPF
        if not C:
            if kv and dW_on: dl += dKVl(cur)
            if dW_on: dl += dWl(cur)
            if pf and pf_on and not kv: dl += PFL
            if dX_on: dl += dXl(0 if role == "F" else cur*XSZ)
            for n, g in enumerate(dl[NUP:]):
                put(40 + 2*n, g[0])
                for t in g[1:]: put(41 + 2*n, t)
            if first and role == "F":
                for n, g in enumerate(dXl(2*XSZ)):
                    put(2 + 3*n, g[0])
                    for t in g[1:]: put(3 + 3*n, t)
        if last:
            off = 0
            if C:
                ga = gate_acc(0)
                put(6, ("WAIT", ("g",)))
                for n, t in enumerate(ga): put(6 + n//4, t)
                off = 9
            es = epi_setup(role)
            for n, t in enumerate(es): put(off + n//(6 if C else 3), t)
            if kv:
                for n, t in enumerate(epi_kv(role)): put(18 + n//3, t)
            for u in range(7):
                e = epi_group(role, u)
                per = -(-len(e)//(8 if u < 6 else 5))
                for n, t in enumerate(e): put(8*u+11 + (1 if u == 0 else 0) + n//per, t)
        if tail:
            for t in tail: put(63, t)
        def need(tags):
            if any(t in lq.q for t in tags): o(f"s_waitcnt lgkmcnt({lq.need(tags)})")
        def emit(t):
            if isinstance(t, tuple):
                if t[0] == "WAIT": need([t[1]])
                else: o(t[0]); lq.push(t[1])
            else: o(t)
        n = 0
        for u in range(8):
            if u == 5 and bar:
                lq.need(lq.q)
                if C:
                    o("s_waitcnt lgkmcnt(0)")
                    for t in gate_acc(gvm): o(t)
                    o(f"buffer_load_dword v{V_GW}, v{V_GO}, s[{SRD_G}:{SRD_G+3}], s{S_GK} offen")
                    o(f"s_add_u32 s{S_GK}, s{S_GK}, 128")
                else:
                    o(f"s_waitcnt vmcnt({vm}) lgkmcnt(0)")
                if "nobar" not in abl: o("s_barrier")
                if stamp and not C:
                    o(f"s_memtime s[4:5]\ns_waitcnt lgkmcnt(0)\ns_mov_b32 m0, s{ST+15}\nv_writelane_b32 v13, s4, m0\ns_add_u32 s{ST+15}, s{ST+15}, 1")
                if not C: burst(o, dl[:NUP])
            for c in range(4):
                s = c if u % 2 == 0 else 3-c
                for e in range(2):
                    kh = e if c % 2 == 0 else 1-e
                    need([("W", cur, s, kh), ("x", u, kh)])
                    d = acc(u, s)
                    cc = "0" if (first and e == 0) else f"v[{d}:{d+3}]"
                    o(f"v_mfma_f32_16x16x32_bf16 v[{d}:{d+3}], {vr(wf(cur,s,kh),4)}, {vr(xf(u,kh),4)}, {cc}")
                    if kv and u < 2 and c == 3 and e == 1:
                        for k2 in range(2):
                            need([("kv", k2)])
                            d = KVA + u*4
                            cc = "0" if (first and k2 == 0) else f"v[{d}:{d+3}]"
                            w = vr(KVW+k2*4, 4); x = vr(xf(u, k2), 4)
                            if role == "K": o(f"v_mfma_f32_16x16x32_bf16 v[{d}:{d+3}], {w}, {x}, {cc}")
                            else: o(f"v_mfma_f32_16x16x32_bf16 v[{d}:{d+3}], {x}, {w}, {cc}")
                    for t in fill.get(n, []): emit(t)
                    n += 1
        if last:
            o("s_nop 7")
            for t in epi_group(role, 7): o(t)
            if C:
                for t in gate_fin(): o(t)

    for role in "FKV":
      for half in "CL":
        kv = role != "F"; C = half == "C"
        rn = f"{name}_{role}{half}"
        a.raw(f"{rn}:")
        lq = LQ(15)
        if not C:
            if role == "F": a(f"s_add_u32 s{S_XT2}, s{S_XT2}, s{S_XT}")
            if kv: dKV(a, 0)
            dW(a, 1)
            if pf and not kv: p_setup(a)
            a("s_waitcnt vmcnt(8)")
        stp(a, 12)
        a("s_barrier")
        stp(a, 10)
        if not C:
            if kv: dKV(a, 1)
            dX(a, XSZ)
        pro = []
        wi = iter([rd_w(0, 0, s, kh, j) for (s, kh) in WORDER for j in range(2)])
        for u in range(3):
            pro += [rd_x(role, 0, u, 0), rd_x(role, 0, u, 1)] + [next(wi) for _ in range(6 if u < 2 else 4)]
        if kv: pro += [rd_kv(0, 0, 0), rd_kv(0, 0, 1), rd_kv(0, 1, 0), rd_kv(0, 1, 1)]
        for t in pro: a(t[0]); lq.push(t[1])
        a(f"s_mov_b32 s{S_CNT}, {6 if kv else 5}")
        vm = 0 if kv else 8 + NPF
        gvm = 0
        stp(a, 4); stp(a, 5, True)
        stage(a, lq, role, half, 0, first=True, vm=(0 if kv else 8), gvm=0)
        a.raw(".p2align 6")
        a.raw(f"{rn}_loop:")
        b1 = Asm(); q0 = list(lq.q)
        if kv:
            stage(b1, lq, role, half, 1, vm=vm, gvm=gvm, tail=[f"s_cmp_eq_u32 s{S_CNT}, 0", f"s_cbranch_scc1 {rn}_tail"])
            q1 = list(lq.q)
            stage(b1, lq, role, half, 0, vm=vm, gvm=gvm, tail=[f"s_sub_u32 s{S_CNT}, s{S_CNT}, 1", f"s_branch {rn}_loop"])
            assert lq.q == q0
            a.l += b1.l
            a.raw(f"{rn}_tail:")
            lq.q = q1
        else:
            stage(b1, lq, role, half, 1, vm=vm, gvm=gvm)
            stage(b1, lq, role, half, 0, vm=vm, gvm=gvm, xstop=True, tail=[f"s_sub_u32 s{S_CNT}, s{S_CNT}, 1", f"s_cbranch_scc0 {rn}_loop"])
            assert lq.q == q0
            a.l += b1.l
            stage(a, lq, role, half, 1, vm=vm, gvm=gvm, dX_on=False, pf_on=False)
        stage(a, lq, role, half, 0, dW_on=False, dX_on=False, pf_on=False, vm=0, gvm=gvm, w2pf=("now2" not in abl))
        stp(a, 11)
        stage(a, lq, role, half, 1, dW_on=False, dX_on=False, nxt_reads=False, bar=False, last=True)
        stp(a, 6); stp(a, 7, True)
        a(f"s_branch {name}_fin")
    a.raw(f"{name}_fin:")
    if stamp:
        T = 96
        a("s_waitcnt vmcnt(0)")
        stp(a, 13); stp(a, 14, True)
        a(f"""
        s_lshl_b32 s4, s2, 3
        s_add_u32 s4, s4, s{S_WAVE}
        s_lshl_b32 s4, s4, 6
        s_add_u32 s4, s4, {hx(0x1E00000)}
        s_mov_b64 exec, -1
        v_mov_b32 v14, 0
        """)
        for i, (r, rel) in enumerate([(4,1),(6,1),(13,1),(2,0),(14,0),(0,0),(5,0),(7,0),(8,1),(9,1),(10,1),(11,1),(12,1)]):
            if rel: a(f"s_sub_u32 s{ST+r}, s{ST+r}, s{ST}")
            a(f"v_mov_b32 v{T+i}, s{ST+r}")
        a(f"v_lshlrev_b32 v15, 2, v0\ns_add_u32 s5, s4, 0x40000\ns_mov_b64 exec, 0xffff\nbuffer_store_dword v13, v15, s[{SRD_WS}:{SRD_WS+3}], s5 offen")
        a("s_mov_b64 exec, 1")
        for i in range(4):
            a(f"buffer_store_dwordx4 v[{T+4*i}:{T+4*i+3}], v14, s[{SRD_WS}:{SRD_WS+3}], s4 offen offset:{16*i}")
    a.raw(f"{name}_end:")
    a("s_endpgm")
    return a.text()

if __name__ == "__main__":
    import sys
    stamp = "stamp" in sys.argv
    s = "; @launch kernel=k1_kernel grid=(256,1,1) block=(512,1,1) lds=163840\n"
    s += '.amdgcn_target "amdgcn-amd-amdhsa--gfx950"\n.text\n' + gen_k1(stamp=stamp, abl=sys.argv[2:]) + kernel_desc("k1_kernel")
    open(sys.argv[1], "w").write(s)
```

```python
from common import *

RW = 30
PROG = 122880
CNT_LDS = PROG + 2048
KVB = 131072
K2_LDS = 163840

S_WAVE, S_W = 3, 33
SRD_WS, SRD_WD, SRD_WO, SRD_OUT = 8, 12, 16, 20
S_MI, S_NI, S_MT32 = 34, 35, 36
S_CNT = 37
S_HK, S_WK, S_WM, S_WEND, S_WW, S_KVK, S_KVM, S_RD = 38, 39, 40, 41, 42, 43, 44, 45
S_T = 46
S_NEED, S_CU = 56, 57
ST = 70
def m16(d, x, y, c=True): return f"v_mfma_f32_16x16x32_bf16 {vr(d,4)}, {vr(x,4)}, {vr(y,4)}, " + (vr(d,4) if c is True else ("0" if c is False else vr(c,4)))

def gen_k2(name="k2_kernel", stamp=False, abl=()):
    a = Asm()
    def stp(o, i, real=False):
        if stamp:
            o(f"{'s_memrealtime' if real else 's_memtime'} s[4:5]\ns_waitcnt lgkmcnt(0)\ns_mov_b32 s{ST+i}, s4")
    prioA = 1; prioG = 0; HD = 10; FLAGU = 106
    for x in abl:
        if x.startswith("pa"): prioA = int(x[2:])
        if x.startswith("pg"): prioG = int(x[2:])
        if x.startswith("fu"): FLAGU = int(x[2:])
    nosync = "nosync" in abl
    a.raw(f".globl {name}\n.p2align 8\n.type {name},@function\n{name}:")
    if stamp: a(f"s_memtime s[{ST}:{ST+1}]\ns_memrealtime s[{ST+2}:{ST+3}]")
    a(f"""
    s_load_dwordx2 s[24:25], s[0:1], 96
    s_load_dwordx2 s[26:27], s[0:1], 64
    s_load_dwordx2 s[28:29], s[0:1], 32
    s_load_dwordx2 s[30:31], s[0:1], 80
    s_cmp_ge_u32 s2, 256
    s_cbranch_scc1 {name}_end
    v_lshrrev_b32 v1, 6, v0
    v_and_b32 v0, 63, v0
    v_readfirstlane_b32 s{S_WAVE}, v1
    s_and_b32 s4, s2, 7
    s_lshr_b32 s5, s2, 3
    s_lshr_b32 s6, s4, 1
    s_lshl_b32 s6, s6, 2
    s_and_b32 s7, s5, 3
    s_add_u32 s{S_MI}, s6, s7
    s_and_b32 s4, s4, 1
    s_lshl_b32 s4, s4, 3
    s_lshr_b32 s5, s5, 2
    s_add_u32 s{S_NI}, s4, s5
    s_and_b32 s{S_W}, s{S_WAVE}, 3
    s_lshl_b32 s4, s{S_MI}, 2
    s_add_u32 s{S_MT32}, s4, s{S_W}
    s_mov_b32 s{SRD_WS+2}, {hx(WS_SIZE)}
    s_mov_b32 s{SRD_WS+3}, 0x20000
    v_lshlrev_b32 v1, 4, v0
    s_cmp_ge_u32 s{S_WAVE}, 4
    s_cbranch_scc1 {name}_G
    """)
    VL = 1; VKV = 2
    VG = 4
    VT = 6
    SEL = 12
    Q = 16
    S = 32
    P = 64
    O = 80
    Ls = 112
    K = 128
    V = 144
    CB = 160
    MX = 176
    VSIG, VCHK, VONE, VCNT = 186, 187, 188, 189
    if prioA: a(f"s_setprio {prioA}")
    a(f"""
    s_lshl_b32 s4, s{S_MT32}, 5
    s_lshl_b32 s5, s{S_NI}, 1
    s_add_u32 s4, s4, s5
    s_lshl_b32 s4, s4, 11
    s_add_u32 s{S_T}, s4, {hx(WS_Q)}
    s_add_u32 s{S_T+1}, s4, {hx(WS_O)}
    s_lshl_b32 s{S_T+2}, s{S_MT32}, 8
    s_add_u32 s{S_T+2}, s{S_T+2}, {hx(WS_GATE)}
    v_and_b32 v{VT}, 15, v0
    v_lshlrev_b32 v{VT}, 3, v{VT}
    v_add_u32 v{VKV}, {hx(KVB)}, v{VL}
    s_waitcnt lgkmcnt(0)
    s_mov_b32 s{SRD_WS}, s24
    s_mov_b32 s{SRD_WS+1}, s25
    """)
    for i in range(4): a(f"buffer_load_dwordx4 {vr(Q+4*i,4)}, v{VL}, s[{SRD_WS}:{SRD_WS+3}], s{S_T} offen offset:{1024*i}")
    for i in range(2): a(f"buffer_load_dword v{VG+i}, v{VT}, s[{SRD_WS}:{SRD_WS+3}], s{S_T+2} offen offset:{128*i}")
    a(f"""
    v_and_b32 v{VT+1}, 3, v0
    v_cmp_eq_u32 vcc, 0, v{VT+1}
    v_mov_b32 v{VT+2}, 0x3f803f80
    s_mov_b32 s{S_CNT}, 7
    v_cndmask_b32 v{SEL}, 0, v{VT+2}, vcc
    v_cndmask_b32 v{SEL+1}, 0, v{VT+2}, vcc
    v_cndmask_b32 v{SEL+2}, 0, v{VT+2}, vcc
    v_cndmask_b32 v{SEL+3}, 0, v{VT+2}, vcc
    s_lshl_b32 s4, s{S_W}, 8
    s_add_u32 s4, s4, {hx(PROG+1024)}
    v_lshl_add_u32 v{VSIG}, v0, 2, s4
    v_lshlrev_b32 v{VCHK}, 8, v{VT+1}
    v_add_u32 v{VCHK}, {hx(PROG)}, v{VCHK}
    v_mov_b32 v{VONE}, 1
    s_mov_b32 s{S_NEED}, 2
    ds_write_b32 v{VSIG}, v{VONE}
    """)
    for r in list(range(P+8, P+16)) + list(range(O, O+48)) + list(range(V+8, V+16)): a(f"v_mov_b32 v{r}, 0")
    stp(a, 8)
    a("s_waitcnt lgkmcnt(0)\ns_barrier")
    stp(a, 9)
    lq = LQ(15)
    def rdK(o, t, u):
        o(f"ds_read_b128 {vr(K+(t&1)*8+u*4,4)}, v{VKV} offset:{((t >> 1) & 3)*8192 + (t & 1)*4096 + u*1024}"); lq.push(("K", t & 1))
    def rdV(o, t, s):
        o(f"ds_read_b128 {vr(V+(t&1)*8+s*4,4)}, v{VKV} offset:{((t >> 1) & 3)*8192 + (t & 1)*4096 + 2048 + s*1024}"); lq.push(("V", t & 1))
    def need(o, tags):
        if any(t in lq.q for t in tags): o(f"s_waitcnt lgkmcnt({lq.need(tags)})")
    def qk(h, par, c=False):
        return [m16(S+16*h+8*qs+4*u, K+8*par+4*u, Q+8*h+4*qs, c if c is False else c+8*h+4*qs) for (u, qs) in ((0,0),(0,1),(1,1),(1,0))]
    def pv(h, par):
        f = lambda s, qs: m16(O+16*h+8*qs+4*s, V+8*par+4*s, P+8*h+4*qs)
        g = lambda qs: m16(Ls+8*h+4*qs, SEL, P+8*h+4*qs)
        return [f(0,0), g(0), f(1,0), f(1,1), g(1), f(0,1)]
    rdK(a, 0, 0); rdK(a, 0, 1); rdK(a, 1, 0); rdK(a, 1, 1)
    a("s_waitcnt vmcnt(0)")
    need(a, [("K", 0)])
    for t in qk(0, 0): a(t)
    a("s_nop 7")
    stp(a, 4); stp(a, 5, True)
    SEQS = {
     "t1": "M e M e e M e M e e c c M e M e e M e M e c c M e M e c e e c e c c",
     "t2": "M e e M e e M e c c M e e M e c c M e e M e e M e c M e c M e e c c",
     "t3": "M e M e M e M e M e M e M e M e M e M e e e c c c e e c c e e c c c",
     "t4": "M e M e e e M e M e c c c M e M e e M e M e c c M e M e c e e e c c",
     "t5": "M e M e M e M e e e c c c M e M e M e e e c c M e M e M e e c e c c",
    }
    seqn = "t1"
    for x in abl:
        if x in SEQS: seqn = x
    slow = Asm()
    def phase(o, t, h):
        b = 1-h
        tq = t if h == 0 else t+1
        tv = t-1 if h == 0 else t
        mf = qk(b, tq & 1) + pv(b, tv & 1)
        Sa, Pa = S+16*h, P+8*h
        e = iter([f"v_exp_f32 v{Sa+i}, v{Sa+i}" for i in range(16)])
        c = iter([f"v_cvt_pk_bf16_f32 v{Pa+i}, v{Sa+2*i}, v{Sa+2*i+1}" for i in range(8)])
        first = (t % 2 == 0 and h == 0); lastp = (t % 2 == 1 and h == 1)
        m = 0
        for x in SEQS[seqn].split():
            if x == "e": o(next(e))
            elif x == "c": o(next(c))
            else:
                if m == 9 and first and not nosync: o(f"v_cmp_gt_u32 vcc, s{S_NEED}, v{VCNT}")
                o(mf[m])
                if m in (0, 4):
                    if h == 0: rdV(o, t, m >> 2)
                    else: rdK(o, t+2, m >> 2)
                if m == 3 and h == 1: need(o, [("V", t & 1)])
                if m == 9 and h == 0 and not first: need(o, [("K", (t+1) & 1)])
                if m == 7 and first: need(o, [("K", (t+1) & 1), "cnt"])
                if not nosync:
                    if m == 2 and first:
                        o(f"ds_read_b32 v{VCNT}, v{VCHK}"); lq.push("cnt")
                    if m == 9 and first:
                        lab = f"{name}_A_w{t}"
                        o(f"s_cbranch_vccnz {lab}"); o.lab(lab + "r")
                        slow(f"""
                        {lab}:
                        s_sleep 1
                        ds_read_b32 v{VCNT}, v{VCHK}
                        s_waitcnt lgkmcnt(0)
                        v_cmp_gt_u32 vcc, s{S_NEED}, v{VCNT}
                        s_nop 4
                        s_cbranch_vccnz {lab}
                        s_branch {lab}r
                        """)
                    if m == 6 and lastp:
                        o(f"ds_add_u32 v{VSIG}, v{VONE}"); lq.push("sig")
                    if m == 8 and lastp: o(f"s_add_u32 s{S_NEED}, s{S_NEED}, 1")
                m += 1
        assert m == 10 and next(e, None) is None and next(c, None) is None
    tmp = Asm(); lq.q = []
    for t in range(8): phase(tmp, t, 0); phase(tmp, t, 1)
    slow.l = []
    q0 = list(lq.q)
    a.raw(".p2align 6")
    a.raw(f"{name}_A_loop:")
    for t in range(8): phase(a, t, 0); phase(a, t, 1)
    assert lq.q == q0
    if stamp:
        a(f"s_memtime s[4:5]\ns_waitcnt lgkmcnt(0)\ns_mov_b32 m0, s{S_CNT}\nv_writelane_b32 v198, s4, m0")
    a(f"s_sub_u32 s{S_CNT}, s{S_CNT}, 1\ns_cbranch_scc0 {name}_A_loop")
    stp(a, 6); stp(a, 7, True)
    a("s_nop 0")
    for t in pv(1, 1): a(t)
    a("s_waitcnt lgkmcnt(0)")
    a(f"v_max3_f32 v{VT}, abs(v{O}), abs(v{O+1}), abs(v{O+2})")
    for i in range(3, 31, 2): a(f"v_max3_f32 v{VT}, v{VT}, abs(v{O+i}), abs(v{O+i+1})")
    a(f"""
    v_max_f32 v{VT}, v{VT}, abs(v{O+31})
    s_mov_b32 s4, {hx(f2u(2.0**-64))}
    s_mov_b32 s5, {hx(f2u(2.0**64))}
    s_mov_b32 s6, {hx(f2u(2.0**120))}
    v_cmp_gt_f32 s[{S_T+4}:{S_T+5}], s6, v{VT}
    """)
    for i in range(4):
        a(f"""
        v_cmp_lt_f32 s[{S_T+6}:{S_T+7}], s4, v{Ls+4*i}
        v_cmp_gt_f32 vcc, s5, v{Ls+4*i}
        v_rcp_f32 v{VT+i}, v{Ls+4*i}
        s_and_b64 s[{S_T+4}:{S_T+5}], s[{S_T+4}:{S_T+5}], s[{S_T+6}:{S_T+7}]
        s_and_b64 s[{S_T+4}:{S_T+5}], s[{S_T+4}:{S_T+5}], vcc
        """)
    a(f"""
    s_cmp_eq_u64 s[{S_T+4}:{S_T+5}], -1
    {"s_branch" if "forcefb" in abl else "s_cbranch_scc0"} {name}_A_fb
    {name}_A_fin:
    """)
    for i in range(4):
        r = S + 2*i
        a(f"v_mul_f32 v{r}, v{VT+i}, v{VG+(i&1)}")
        for j in range(4): a(f"v_pk_mul_f32 {vr(O+8*i+2*j,2)}, {vr(O+8*i+2*j,2)}, {vr(r,2)} op_sel_hi:[1,0]")
        for j in range(4): a(f"v_cvt_pk_bf16_f32 v{P+4*i+j}, v{O+8*i+2*j}, v{O+8*i+2*j+1}")
        a(f"buffer_store_dwordx4 {vr(P+4*i,4)}, v{VL}, s[{SRD_WS}:{SRD_WS+3}], s{S_T+1} offen offset:{1024*i} sc1")
    a(f"""
    v_mov_b32 v{VT}, {hx(CNT_LDS)}
    s_lshl_b32 s4, s{S_MI}, 7
    s_lshl_b32 s5, s{S_NI}, 2
    s_add_u32 s4, s4, s5
    s_add_u32 s4, s4, {hx(WS_FLAG)}
    v_mov_b32 v{VT+3}, 0
    s_mov_b64 exec, 1
    s_waitcnt vmcnt(0)
    ds_add_rtn_u32 v{VT+2}, v{VT}, v{VONE}
    s_waitcnt lgkmcnt(0)
    v_readfirstlane_b32 s5, v{VT+2}
    s_nop 1
    s_cmp_lg_u32 s5, 3
    s_cbranch_scc1 {name}_fin
    buffer_store_dword v{VONE}, v{VT+3}, s[{SRD_WS}:{SRD_WS+3}], s4 offen sc1
    s_branch {name}_fin
    """)
    a.l += slow.l
    a.raw(f"{name}_A_fb:")
    for i in range(4): a(f"v_mov_b32 v{MX+i}, 0xff800000")
    a(f"""
    s_mov_b32 s{S_T+3}, {hx(WS_KV)}
    s_mov_b32 s{S_CNT}, 63
    {name}_A_fb1:
    buffer_load_dwordx4 {vr(K,4)}, v{VL}, s[{SRD_WS}:{SRD_WS+3}], s{S_T+3} offen
    buffer_load_dwordx4 {vr(K+4,4)}, v{VL}, s[{SRD_WS}:{SRD_WS+3}], s{S_T+3} offen offset:1024
    s_add_u32 s{S_T+3}, s{S_T+3}, 4096
    s_waitcnt vmcnt(0)
    """)
    for h in range(2):
        for t in qk(h, 0): a(t)
    a("s_nop 7")
    for i in range(4):
        for j in range(0, 8, 2): a(f"v_max3_f32 v{MX+i}, v{MX+i}, v{S+8*i+j}, v{S+8*i+j+1}")
    a(f"s_sub_u32 s{S_CNT}, s{S_CNT}, 1\ns_cbranch_scc0 {name}_A_fb1")
    for op in ("v_permlane32_swap_b32", "v_permlane16_swap_b32"):
        for i in range(4): a(f"v_mov_b32 v{VT+i}, v{MX+i}")
        a("s_nop 1")
        for i in range(4): a(f"{op} v{VT+i}, v{MX+i}")
        a("s_nop 1")
        for i in range(4): a(f"v_max_f32 v{MX+i}, v{MX+i}, v{VT+i}")
    for i in range(16): a(f"v_sub_f32 v{CB+i}, 0, v{MX+(i>>2)}")
    for r in range(O, O+48): a(f"v_mov_b32 v{r}, 0")
    a(f"""
    s_mov_b32 s{S_T+3}, {hx(WS_KV)}
    s_mov_b32 s{S_CNT}, 63
    {name}_A_fb2:
    """)
    for i in range(2): a(f"buffer_load_dwordx4 {vr(K+4*i,4)}, v{VL}, s[{SRD_WS}:{SRD_WS+3}], s{S_T+3} offen offset:{1024*i}")
    for i in range(2): a(f"buffer_load_dwordx4 {vr(V+4*i,4)}, v{VL}, s[{SRD_WS}:{SRD_WS+3}], s{S_T+3} offen offset:{2048+1024*i}")
    a(f"s_add_u32 s{S_T+3}, s{S_T+3}, 4096\ns_waitcnt vmcnt(0)")
    for h in range(2):
        for t in qk(h, 0, CB): a(t)
    a("s_nop 7")
    for i in range(32): a(f"v_exp_f32 v{S+i}, v{S+i}")
    a("s_nop 0")
    for i in range(16): a(f"v_cvt_pk_bf16_f32 v{P+i}, v{S+2*i}, v{S+2*i+1}")
    a("s_nop 1")
    for h in range(2):
        for t in pv(h, 0): a(t)
    a(f"s_sub_u32 s{S_CNT}, s{S_CNT}, 1\ns_cbranch_scc0 {name}_A_fb2\ns_nop 7")
    for i in range(4): a(f"v_rcp_f32 v{VT+i}, v{Ls+4*i}")
    a(f"s_nop 0\ns_branch {name}_A_fin")

    VA = 2
    VDW = 6
    V1G = 10
    VT = 14
    VSIG, VCHK, VONE, VCNT, VNEED = 20, 21, 22, 23, 24
    ACC = 32
    WF = 64
    H = 128
    U = 10
    def wf(par, e, ns): return WF + par*32 + e*16 + ns*4
    def hf(n, ts): return H + (n % HD)*8 + ts*4
    a.raw(f"{name}_G:")
    if prioG: a(f"s_setprio {prioG}")
    a(f"""
    v_lshrrev_b32 v{VT}, 3, v0
    v_bfe_u32 v{VT+1}, v0, 1, 2
    v_lshrrev_b32 v{VT+2}, 4, v0
    v_xor_b32 v{VT+1}, v{VT+1}, v{VT+2}
    v_lshlrev_b32 v{VT}, 11, v{VT}
    v_lshl_add_u32 v{VT}, v{VT+1}, 5, v{VT}
    v_and_b32 v{VT+1}, 1, v0
    v_lshl_add_u32 v{VT}, v{VT+1}, 4, v{VT}
    s_lshl_b32 s4, s{S_NI}, 7
    s_lshl_b32 s5, s{S_W}, 14
    s_add_u32 s5, s5, s4
    v_add_u32 v{VDW}, s5, v{VT}
    v_add_u32 v{VDW+1}, 0x10000, v{VDW}
    v_add_u32 v{VDW+2}, 0x20000, v{VDW}
    s_mul_i32 s{S_HK}, s{S_MT32}, {112*2048}
    s_mov_b32 s{S_WK}, 0
    s_lshl_b32 s{S_WW}, s{S_W}, 10
    s_mov_b32 s{S_WM}, s{S_WW}
    s_add_u32 s{S_WEND}, s{S_WW}, {hx(RW*4096)}
    s_lshl_b32 s4, s{S_W}, 11
    s_add_u32 s{S_KVK}, s4, {hx(WS_KV)}
    s_add_u32 s{S_KVM}, s4, {hx(KVB)}
    s_mov_b32 s{SRD_WD+2}, 0x700000
    s_mov_b32 s{SRD_WD+3}, 0x20000
    s_mov_b32 s{SRD_WO+2}, 0x200000
    s_mov_b32 s{SRD_WO+3}, 0x20000
    s_mov_b32 s{SRD_OUT+2}, 0x400000
    s_mov_b32 s{SRD_OUT+3}, 0x20000
    s_lshl_b32 s{S_T+2}, s{S_MT32}, 8
    s_add_u32 s{S_T+2}, s{S_T+2}, {hx(WS_GATE+4)}
    s_mov_b32 m0, s{S_KVM}
    s_waitcnt lgkmcnt(0)
    s_mov_b32 s{SRD_WS}, s24
    s_mov_b32 s{SRD_WS+1}, s25
    s_mov_b32 s{SRD_WD}, s26
    s_mov_b32 s{SRD_WD+1}, s27
    """)
    vq = LQ(63); lq = LQ(15); mainflag = {}; mark = {"n": 0}
    def dKV():
        return [f"s_mov_b32 m0, s{S_KVM}", f"s_add_u32 s{S_KVM}, s{S_KVM}, 8192",
                (f"buffer_load_dwordx4 v{VL}, s[{SRD_WS}:{SRD_WS+3}], s{S_KVK} offen lds", "vm", "KV"),
                (f"buffer_load_dwordx4 v{VL}, s[{SRD_WS}:{SRD_WS+3}], s{S_KVK} offen offset:1024 lds", "vm", "KV"),
                f"s_add_u32 s{S_KVK}, s{S_KVK}, 8192", f"s_and_b32 s{S_KVM}, s{S_KVM}, {hx(KVB | 0x7fff)}"]
    def dW3():
        ld = lambda i: (f"buffer_load_dwordx4 v{VDW+i}, s[{SRD_WD}:{SRD_WD+3}], s{S_WK} offen lds", "vm", "W")
        return [f"s_mov_b32 m0, s{S_WM}", "NOP", ld(0), f"s_add_u32 m0, s{S_WM}, 4096", "NOP", ld(1), f"s_add_u32 m0, s{S_WM}, 8192",
                f"s_add_u32 s{S_WM}, s{S_WM}, 12288", ld(2), f"s_add_u32 s{S_WK}, s{S_WK}, {hx(3*65536)}",
                f"s_cmp_eq_u32 s{S_WM}, s{S_WEND}", f"s_cselect_b32 s{S_WM}, s{S_WW}, s{S_WM}"]
    def dW1(n):
        wo = n >= 112; k = n - 112 if wo else n
        srd = SRD_WO if wo else SRD_WD
        r = [f"s_add_u32 m0, s{S_WW}, {hx((n % RW)*4096)}", f"s_mov_b32 s{S_WK}, {hx(k*65536)}",
             (f"buffer_load_dwordx4 v{VDW}, s[{srd}:{srd+3}], s{S_WK} offen lds", "vm", "W")]
        return r
    def ldH(n, ts, ofrag):
        return (f"buffer_load_dwordx4 {vr(hf(n,ts),4)}, v{VL}, s[{SRD_WS}:{SRD_WS+3}], s{S_HK} offen offset:{(n&1)*2048+ts*1024}" + (" sc1" if ofrag else ""), "vm", ("H", n % HD, ts))
    HADD = f"s_add_u32 s{S_HK}, s{S_HK}, 4096"
    def rdW(p, ns, j):
        r = wf((p >> 1) & 1, p & 1, ns) + 2*j
        return (f"ds_read_b64_tr_b16 {vr(r,2)}, v{VA+ns} offset:{(p % U)*4096 + j*2048}", "lg", ("W", (p >> 1) & 1, p & 1, ns))
    def emit(o, t):
        if t == "NOP": t = "s_nop 0"
        if isinstance(t, tuple) and t[1] == "vm" and mainflag.get("on"):
            if "noH" in abl and t[2][0] == "H": return
            if "noW" in abl and t[2] == "W": return
        if isinstance(t, tuple):
            o(t[0]); (vq if t[1] == "vm" else lq).push(t[2])
            if t[1] == "vm": mark["n"] += 1
        else: o(t)
    for t in dKV()[1:]: emit(a, t)
    nfirst = len(vq.q)
    for t in dW3(): emit(a, t)
    for n in range(2):
        for ts in range(2): emit(a, ldH(n, ts, False))
    a(HADD)
    for t in dW3() + dKV(): emit(a, t)
    a(f"""
    s_mov_b32 s{SRD_WO}, s28
    s_mov_b32 s{SRD_WO+1}, s29
    s_mov_b32 s{SRD_OUT}, s30
    s_mov_b32 s{SRD_OUT+1}, s31
    v_lshrrev_b32 v{VT}, 2, v0
    v_bfe_u32 v{VT+1}, v0, 3, 2
    v_lshlrev_b32 v{VT}, 7, v{VT}
    v_lshl_add_u32 v{VT}, v{VT+1}, 5, v{VT}
    v_and_b32 v{VT+1}, 3, v0
    v_lshl_add_u32 v{VA}, v{VT+1}, 3, v{VT}
    v_xor_b32 v{VA+1}, 32, v{VA}
    v_xor_b32 v{VA+2}, 64, v{VA}
    v_xor_b32 v{VA+3}, 0x60, v{VA}
    v_mov_b32 v{VT}, {hx(CNT_LDS)}
    v_mov_b32 v{VT+1}, 0
    ds_write_b32 v{VT}, v{VT+1}
    s_lshl_b32 s4, s{S_W}, 8
    s_add_u32 s4, s4, {hx(PROG)}
    v_lshl_add_u32 v{VSIG}, v0, 2, s4
    ds_write_b32 v{VSIG}, v{VT+1}
    v_and_b32 v{VCHK}, 7, v0
    v_lshlrev_b32 v{VCHK}, 8, v{VCHK}
    v_add_u32 v{VCHK}, {hx(PROG)}, v{VCHK}
    v_mov_b32 v{VONE}, 1
    v_bfe_u32 v{VNEED}, v0, 2, 1
    v_sub_u32 v{VNEED}, 0, v{VNEED}
    v_and_b32 v{VT+3}, 15, v0
    v_lshlrev_b32 v{VT+3}, 3, v{VT+3}
    s_mov_b32 s{S_RD}, 0
    s_mov_b32 s{S_CU}, {hx(U*4096)}
    """)
    stp(a, 8)
    n = len(vq.q) - nfirst; vq.q = vq.q[nfirst:]
    a(f"s_waitcnt vmcnt({n}) lgkmcnt(0)\ns_barrier")
    stp(a, 9)
    mark["n"] = 0
    for n in range(2, 4):
        for ts in range(2): emit(a, ldH(n, ts, False))
    a(HADD)
    for i in range(32): a(f"v_mov_b32 v{ACC+i}, 0")
    gslow = Asm(); sites = [0]
    def sync_signal(o):
        n = min(mark["n"], len(vq.q))
        vq.q = vq.q[len(vq.q)-n:]
        o(f"s_waitcnt vmcnt({n})")
        mark["n"] = 0
        if nosync: return
        emit(o, (f"ds_add_u32 v{VSIG}, v{VONE}", "lg", "sig"))
        o(f"v_add_u32 v{VNEED}, 1, v{VNEED}")
    CNTRD = (f"ds_read_b32 v{VCNT}, v{VCHK}", "lg", "cnt")
    def sync_check(o):
        if nosync: return
        if "cnt" in lq.q: o(f"s_waitcnt lgkmcnt({lq.need(['cnt'])})")
        lab = f"{name}_G_w{sites[0]}"; sites[0] += 1
        o(f"v_cmp_gt_i32 vcc, v{VNEED}, v{VCNT}\ns_nop 0\ns_cbranch_vccnz {lab}"); o.lab(lab + "r")
        gslow(f"""
        {lab}:
        s_sleep 1
        ds_read_b32 v{VCNT}, v{VCHK}
        s_waitcnt lgkmcnt(0)
        v_cmp_gt_i32 vcc, v{VNEED}, v{VCNT}
        s_nop 4
        s_cbranch_vccnz {lab}
        s_branch {lab}r
        """)
    sync_signal(a)
    if not nosync: emit(a, CNTRD)
    for t in dKV() + dW3(): emit(a, t)
    sync_check(a)
    NSO = (0, 1, 2, 3)
    for ns in NSO:
        for e in range(2):
            for j in range(2): emit(a, rdW(e, ns, j))
    for n in range(4, HD):
        for ts in range(2): emit(a, ldH(n, ts, False))
        if n & 1: a(HADD)
    for ts in range(2):
        emit(a, (f"buffer_load_dword v{V1G+2*ts}, v{VT+3}, s[{SRD_WS}:{SRD_WS+3}], s{S_T+2} offen offset:{128*ts}", "vm", "g"))
    if "nocpf" not in abl:
        a(f"""
        s_getpc_b64 s[4:5]
        {name}_pc:
        s_sub_u32 s4, s4, {name}_pc-{name}
        s_subb_u32 s5, s5, 0
        s_lshl_b32 s6, s{S_W}, 13
        v_lshl_add_u32 v{VT}, v0, 7, s6
        v_min_u32 v{VT}, {name}_end-{name}, v{VT}
        """)
        emit(a, (f"global_load_dword v{VT+1}, v{VT}, s[4:5]", "vm", "c"))
    stp(a, 4); stp(a, 5, True)

    def block(o, n0, par0, nun=U, syncs=(0, 20, 40, 60), extra=None, loads=None, scale_after=None, pre=None):
        extra = extra or {}; pre = pre or {}
        loads = loads or (lambda n, ts: ldH(n+HD, ts, False))
        fill = {}
        def put(m, t): fill.setdefault(m, []).append(t)
        for pp in range(nun//2):
            p = 2*pp; n = n0 + p; m0 = 16*pp
            if p == U-2:
                put(m0-2, f"s_cmp_eq_u32 s{S_RD}, {hx((RW-U)*4096)}"); put(m0-2, f"s_cselect_b32 s{S_T+1}, {hx(-(RW-U)*4096)}, s{S_CU}")
                put(m0-1, "ADV"); put(m0, f"s_add_u32 s{S_RD}, s{S_RD}, s{S_T+1}")
            if n + 2 < 144:
                i = 0
                for ns in NSO:
                    for e in range(2):
                        for j in range(2):
                            r = rdW(p+2+e + (2*U if False else 0), ns, j)
                            par = (par0 + pp + 1) & 1
                            reg = wf(par, e, ns) + 2*j
                            put(m0 + i, (f"ds_read_b64_tr_b16 {vr(reg,2)}, v{VA+ns} offset:{((p+2+e) % U)*4096 + j*2048}", "lg", ("W", par, e, ns)))
                            i += 1
            any_l = False
            for ts in range(2):
                for e in range(2):
                    l = loads(n+e, ts)
                    if l: put(m0 + (8+e if ts == 0 else 15), l); any_l = True
            if any_l: put(m0 + 15, HADD)
        for s_ in syncs:
            if not nosync: put(s_ + 4, CNTRD)
            put(s_ + 7, "CHECK")
        for m, l in extra.items():
            k = m
            for t in l:
                if t == "NOP": k += 1; continue
                put(k, t)
                if isinstance(t, tuple): k += 1
        for pp in range(nun//2):
            p = 2*pp; n = n0 + p; par = (par0 + pp) & 1
            if n in pre: pre[n](o)
            i = 0
            for ts in range(2):
                for c in range(4):
                    ns = c if ts == 0 else 3-c
                    for e0 in range(2):
                        e = e0 if c % 2 == 0 else 1-e0
                        m = 16*pp + i
                        if m in syncs: sync_signal(o)
                        w = []
                        tg = [("H", (n+e) % HD, ts)]
                        if any(t in vq.q for t in tg): w.append(f"vmcnt({vq.need(tg)})")
                        tg = [("W", par, 0, ns), ("W", par, 1, ns)]
                        if any(t in lq.q for t in tg): w.append(f"lgkmcnt({lq.need(tg)})")
                        if w: o("s_waitcnt " + " ".join(w))
                        if not ("noGM" in abl and mainflag.get("on")):
                            o(m16(ACC + 16*ts + 4*ns, wf(par, e, ns), hf(n+e, ts)))
                        for x in fill.get(m, []):
                            if x == "CHECK": sync_check(o)
                            elif x == "ADV":
                                for k in range(4): o(f"v_add_u32 v{VA+k}, s{S_T+1}, v{VA+k}")
                            else: emit(o, x)
                        i += 1
            if scale_after == n+1:
                if "g" in vq.q: o(f"s_waitcnt vmcnt({vq.need(['g'])})")
                o("s_nop 7")
                for i in range(16): o(f"v_pk_mul_f32 {vr(ACC+2*i,2)}, {vr(ACC+2*i,2)}, {vr(V1G+2*(i>>3),2)} op_sel_hi:[1,0]")
                o("s_nop 1")
    mainx = lambda: {s_+8: dKV() + dW3() for s_ in (0, 20, 40, 60)}
    mainflag['on'] = True
    keep = list(gslow.l)
    b0 = Asm(); block(b0, 0, 0, extra=mainx()); block(b0, 10, 1, extra=mainx())
    if 'peel' not in abl: gslow.l = keep
    sq = (list(vq.q), list(lq.q), mark["n"])
    b1 = Asm(); block(b1, 20, 0, extra=mainx()); block(b1, 30, 1, extra=mainx())
    assert (list(vq.q), list(lq.q), mark["n"]) == sq
    if "peel" in abl:
        a.l += b0.l
        a(f"s_mov_b32 s{S_CNT}, 2")
    else:
        w0 = [l for l in b0.l if "s_waitcnt" in l]; w1 = [l for l in b1.l if "s_waitcnt" in l]
        a(f"s_mov_b32 s{S_CNT}, 3")
    a.raw(".p2align 6")
    a.raw(f"{name}_G_loop:")
    a.l += b1.l
    a(f"s_sub_u32 s{S_CNT}, s{S_CNT}, 1\ns_cbranch_scc0 {name}_G_loop")
    mainflag['on'] = False
    stp(a, 6); stp(a, 7, True)
    a(f"v_and_b32 v{VCHK}, {hx(~0x400)}, v{VCHK}")
    def flagwait(o):
        stp(o, 10)
        o(f"""
        s_lshl_b32 s4, s{S_MI}, 7
        s_add_u32 s4, s4, {hx(WS_FLAG)}
        v_and_b32 v{VT}, 15, v0
        v_lshlrev_b32 v{VT}, 2, v{VT}
        s_mov_b32 s5, 0x400000
        s_lshl_b32 s{S_HK}, s{S_MT32}, 16
        s_add_u32 s{S_HK}, s{S_HK}, {hx(WS_O)}
        {name}_G_poll:
        buffer_load_dword v{VT+1}, v{VT}, s[{SRD_WS}:{SRD_WS+3}], s4 offen sc1
        s_sub_u32 s5, s5, 1
        s_cbranch_scc1 {name}_G_go
        s_waitcnt vmcnt(0)
        v_cmp_ne_u32 vcc, 0, v{VT+1}
        s_nop 1
        s_cmp_eq_u64 vcc, -1
        s_cbranch_scc1 {name}_G_go
        s_sleep 1
        s_branch {name}_G_poll
        {name}_G_go:
        s_waitcnt vmcnt(0)
        """)
        stp(o, 11)
        vq.q = []
        for m in range(112, FLAGU + HD):
            for ts in range(2): emit(o, ldH(m, ts, True))
            if m & 1: o(HADD)
    def tl(n, ts):
        m = n + HD
        if m < 112: return ldH(m, ts, False)
        if n < FLAGU or m > 143: return None
        return ldH(m, ts, True)
    nxt = [105]
    def wd(k):
        r = []
        for _ in range(k):
            if nxt[0] > 143: break
            r += dW1(nxt[0]) + ["NOP"]*4; nxt[0] += 1
        return r
    for i, n0 in enumerate(range(80, 144, 10)):
        block(a, n0, i & 1, nun=min(U, 144-n0), syncs=((0, 40) if n0 < 140 else ()), extra={8: wd(5), 48: wd(5)}, loads=tl, scale_after=111, pre={FLAGU: flagwait})
    stp(a, 12)
    a(f"""
    v_and_b32 v{VT}, 15, v0
    v_lshlrev_b32 v{VT}, 11, v{VT}
    v_bfe_u32 v{VT+1}, v0, 4, 1
    v_lshl_add_u32 v{VT}, v{VT+1}, 5, v{VT}
    v_lshrrev_b32 v{VT+1}, 5, v0
    v_lshl_add_u32 v{VT}, v{VT+1}, 4, v{VT}
    v_add_u32 v{VT+1}, 0x8000, v{VT}
    s_lshl_b32 s4, s{S_MT32}, 16
    s_lshl_b32 s5, s{S_NI}, 7
    s_add_u32 s4, s4, s5
    """)
    for ts in (1, 0):
        for p in (1, 0):
            r = WF + (ts*2+p)*4
            for i in range(4): a(f"v_cvt_pk_bf16_f32 v{r+i}, v{ACC+16*ts+8*p+2*i}, v{ACC+16*ts+8*p+2*i+1}")
            a("s_nop 1")
            a(f"v_permlane16_swap_b32 v{r}, v{r+2}\nv_permlane16_swap_b32 v{r+1}, v{r+3}")
            a(f"buffer_store_dwordx4 {vr(r,4)}, v{VT+ts}, s[{SRD_OUT}:{SRD_OUT+3}], s4 offen offset:{64*p}")
    a(f"s_branch {name}_fin")
    a.l += gslow.l
    a.raw(f"{name}_fin:")
    if stamp:
        T = 220
        a("s_waitcnt vmcnt(0)")
        stp(a, 13); stp(a, 14, True)
        a(f"""
        s_lshl_b32 s4, s2, 3
        s_add_u32 s4, s4, s{S_WAVE}
        s_lshl_b32 s4, s4, 6
        s_add_u32 s4, s4, {hx(0x1E80000)}
        s_mov_b64 exec, -1
        v_mov_b32 v219, 0
        """)
        for i, (r, rel) in enumerate([(4,1),(6,1),(13,1),(2,0),(14,0),(0,0),(5,0),(7,0),(8,1),(9,1),(10,1),(11,1),(12,1)]):
            if rel: a(f"s_sub_u32 s{ST+r}, s{ST+r}, s{ST}")
            a(f"v_mov_b32 v{T+i}, s{ST+r}")
        a(f"v_lshlrev_b32 v218, 2, v0\ns_add_u32 s5, s4, 0x40000\ns_mov_b64 exec, 0xffff\nbuffer_store_dword v198, v218, s[{SRD_WS}:{SRD_WS+3}], s5 offen")
        a("s_mov_b64 exec, 1")
        for i in range(4):
            a(f"buffer_store_dwordx4 v[{T+4*i}:{T+4*i+3}], v219, s[{SRD_WS}:{SRD_WS+3}], s4 offen offset:{16*i}")
    a.raw(f"{name}_end:")
    a("s_endpgm")
    return a.text()
```

```python
from common import *

XSZ = 32768
WB = 98304; WSZ = 32768
KVB = 65536; KVSZ = 8192
K1_LDS = 163840

V_X0, V_X1, V_W0, V_W1, V_KV = 1, 2, 3, 4, 5
V_DX = 6
V_DW = 8
V_DKV = 12
V_P, V_PD, V_GA, V_GO, V_GX, V_GW, V_GZ = 6, 7, 8, 9, 10, 11, 12
V_GT = 14
V_ST, V_ST2 = 14, 15
KVW = 16
KVA = 24
WF = 32
XF = 96
ACC = 128
def acc(u, s): return ACC + (u*4+s)*4
def wf(st, s, kh): return WF + st*32 + s*8 + kh*4
def xf(u, kh): return XF + (u & 3)*8 + kh*4

S_WAVE = 3
SRD_X, SRD_W0, SRD_W1, SRD_K, SRD_V, SRD_WS, SRD_G, SRD_P = 8, 12, 16, 20, 24, 44, 48, 52
S_MT, S_NT, S_Q, S_WM, S_WN = 56, 57, 58, 59, 60
S_XA = 61
S_WK, S_KVK, S_WSTEP = 65, 66, 67
S_XT, S_XT1, S_XT2 = 68, 69, 70
S_WT, S_KVT = 71, 72
S_D, S_D2, S_CNT, S_C32 = 73, 74, 75, 76
S_PK, S_PSTEP, S_GK, S_MSK = 77, 78, 79, 80
S_ROT = 81
S_E0, S_E1, S_E2, S_E3 = 82, 83, 84, 85
ST = 86

def gen_k1(name="k1_kernel", stamp=False, abl=()):
    PD = 1
    for x in abl:
        if x.startswith("pd"): PD = int(x[2:])
    pf = "nopf" not in abl
    NUPF = 10; NUPQ = 14
    for x in abl:
        if x.startswith("upf"): NUPF = int(x[3:])
        if x.startswith("upq"): NUPQ = int(x[3:])
    uniq = "uniq" in abl
    SC = (" sc0" if "ssc0" in abl else "") + (" sc1" if "ssc1" in abl else "") + (" nt" if "snt" in abl else "")
    a = Asm()
    def stp(o, i, real=False):
        if stamp:
            o(f"{'s_memrealtime' if real else 's_memtime'} s[4:5]\ns_waitcnt lgkmcnt(0)\ns_mov_b32 s{ST+i}, s4")
    T = 96
    a.raw(f".globl {name}\n.p2align 8\n.type {name},@function\n{name}:")
    if stamp: a(f"s_memtime s[{ST}:{ST+1}]\ns_memrealtime s[{ST+2}:{ST+3}]")
    a(f"""
    s_load_dwordx4 s[28:31], s[0:1], 0
    s_load_dwordx4 s[36:39], s[0:1], 48
    s_load_dwordx4 s[32:35], s[0:1], 16
    s_load_dwordx2 s[40:41], s[0:1], 72
    s_load_dwordx2 s[42:43], s[0:1], 96
    """)
    CW = 8
    for x in abl:
        if x.startswith("cw"): CW = int(x[2:])
    if "nocpf" not in abl:
        a(f"""
        s_cmp_ge_u32 s2, {CW}
        s_cbranch_scc1 {name}_nocpf
        s_getpc_b64 s[4:5]
        {name}_pc:
        s_sub_u32 s4, s4, {name}_pc-{name}
        s_subb_u32 s5, s5, 0
        v_lshlrev_b32 v2, 7, v0
        v_min_u32 v3, k2_kernel_end-{name}, v2
        global_load_dword v255, v3, s[4:5]
        v_add_u32 v2, 0x10000, v2
        v_min_u32 v3, k2_kernel_end-{name}, v2
        global_load_dword v255, v3, s[4:5]
        {name}_nocpf:
        """)
    a(f"""
    s_cmp_ge_u32 s2, 256
    s_cbranch_scc1 {name}_end
    v_lshrrev_b32 v1, 6, v0
    v_and_b32 v0, 63, v0
    v_readfirstlane_b32 s{S_WAVE}, v1
    s_and_b32 s4, s2, 7
    s_lshr_b32 s5, s2, 3
    s_and_b32 s6, s4, 1
    s_lshl_b32 s6, s6, 2
    s_and_b32 s7, s5, 3
    s_add_u32 s{S_MT}, s6, s7
    s_lshr_b32 s4, s4, 1
    s_lshr_b32 s5, s5, 2
    """)
    if "qpack" in abl:
        a(f"s_lshl_b32 s4, s4, 3\ns_add_u32 s{S_NT}, s4, s5")
    else:
        a(f"""
        s_add_u32 s6, s4, 28
        s_mul_i32 s4, s4, 7
        s_add_u32 s4, s4, s5
        s_cmp_eq_u32 s5, 7
        s_cselect_b32 s{S_NT}, s6, s4
        """)
    a(f"""
    s_lshr_b32 s{S_WM}, s{S_WAVE}, 2
    s_and_b32 s{S_WN}, s{S_WAVE}, 3
    s_sub_u32 s{S_Q}, s{S_NT}, 28
    s_cselect_b32 s{S_Q}, 0, s{S_Q}
    s_cselect_b32 s4, 7168, 0
    s_cselect_b32 s5, 0, 2048
    s_add_u32 s4, s4, s5
    s_lshl_b32 s5, s{S_NT}, 8
    s_lshl_b32 s6, s{S_Q}, 9
    s_cmp_ge_u32 s{S_NT}, 28
    s_cselect_b32 s5, s6, s5
    s_lshl_b32 s{S_WSTEP}, s4, 6
    s_mov_b32 s{SRD_X+2}, 0x400000
    s_mov_b32 s{SRD_X+3}, 0x20000
    s_mov_b32 s{SRD_W0+3}, 0x20000
    s_mov_b32 s{SRD_W1+3}, 0x20000
    s_mov_b32 s{SRD_WS+2}, {hx(WS_SIZE)}
    s_mov_b32 s{SRD_WS+3}, 0x20000
    s_mov_b32 s{S_C32}, {hx(XSZ)}
    s_cmp_lt_u32 s{S_WAVE}, 4
    s_cbranch_scc1 {name}_cpro
    """)
    def srd_w(o):
        o(f"""
        s_add_u32 s6, s30, 256
        s_addc_u32 s7, s31, 0
        s_cmp_ge_u32 s{S_NT}, 28
        s_cselect_b32 s{SRD_W0}, s30, s36
        s_cselect_b32 s{SRD_W0+1}, s31, s37
        s_cselect_b32 s{SRD_W1}, s6, s38
        s_cselect_b32 s{SRD_W1+1}, s7, s39
        s_mov_b32 s6, 0x700000
        s_cselect_b32 s{SRD_W0+2}, 0x200000, s6
        s_cselect_b32 s{SRD_W1+2}, 0x1fff00, s6
        s_mov_b32 s{SRD_X}, s28
        s_mov_b32 s{SRD_X+1}, s29
        """)
    def lds_addrs(o):
        o(f"""
        v_and_b32 v{T}, 15, v0
        v_lshrrev_b32 v{T+1}, 4, v0
        s_lshl_b32 s6, s{S_WM}, 14
        v_lshlrev_b32 v{T+2}, 7, v{T}
        v_add_u32 v{T+2}, s6, v{T+2}
        v_lshrrev_b32 v{T+3}, 1, v{T}
        v_xor_b32 v{T+3}, v{T+3}, v{T+1}
        v_lshl_add_u32 v{V_X0}, v{T+3}, 4, v{T+2}
        v_xor_b32 v{V_X1}, 64, v{V_X0}
        v_bfe_u32 v{T+2}, v0, 2, 2
        v_and_b32 v{T+3}, 3, v0
        v_lshl_add_u32 v{T+4}, v{T+1}, 3, v{T+2}
        v_and_b32 v{T+5}, 1, v{T+1}
        v_lshl_or_b32 v{T+6}, v{T+5}, 2, v{T+2}
        s_lshl_b32 s6, s{S_WN}, 1
        v_xor_b32 v{T+6}, s6, v{T+6}
        v_lshlrev_b32 v{T+6}, 5, v{T+6}
        v_lshl_add_u32 v{T+6}, v{T+4}, 8, v{T+6}
        v_lshl_add_u32 v{T+6}, v{T+3}, 3, v{T+6}
        v_add_u32 v{V_W0}, {hx(WB)}, v{T+6}
        v_xor_b32 v{V_W1}, 32, v{V_W0}
        s_and_b32 s6, s{S_WN}, 1
        v_xor_b32 v{T+5}, s6, v{T+5}
        v_lshlrev_b32 v{T+5}, 5, v{T+5}
        v_lshl_add_u32 v{T+5}, v{T+4}, 6, v{T+5}
        v_lshl_add_u32 v{T+5}, v{T+3}, 3, v{T+5}
        s_lshr_b32 s6, s{S_WN}, 1
        s_lshl_b32 s6, s6, 12
        s_add_u32 s6, s6, {hx(KVB)}
        v_add_u32 v{V_KV}, s6, v{T+5}
        s_mov_b32 s{SRD_WS}, s42
        s_mov_b32 s{SRD_WS+1}, s43
        s_mov_b32 s{S_XT1}, {hx(XSZ)}
        s_mov_b32 s{S_XT2}, {hx(2*XSZ)}
        """)
    def dispatch(o, h):
        o(f"""
        s_cmp_lt_u32 s{S_NT}, 28
        s_cbranch_scc1 {name}_F{h}
        s_cmp_lt_u32 s{S_WN}, 2
        s_cbranch_scc1 {name}_K{h}
        s_branch {name}_V{h}
        """)
    a(f"""
    v_lshrrev_b32 v{T}, 3, v0
    v_lshrrev_b32 v{T+1}, 4, v0
    v_and_b32 v{T+2}, 7, v0
    v_lshlrev_b32 v{T}, 11, v{T}
    v_xor_b32 v{T+2}, v{T+1}, v{T+2}
    v_lshl_add_u32 v{V_DX}, v{T+2}, 4, v{T}
    v_xor_b32 v{V_DX+1}, 64, v{V_DX}
    v_add_u32 v{V_DX+1}, 0x4000, v{V_DX+1}
    s_lshl_b32 s6, s{S_WN}, 4
    v_add_u32 v{T+3}, s6, v{T+1}
    v_mul_lo_u32 v{T+3}, v{T+3}, s4
    v_bfe_u32 v{T+2}, v0, 1, 3
    v_xor_b32 v{T}, v{T+1}, v{T+2}
    v_lshlrev_b32 v{T}, 5, v{T}
    v_and_b32 v{T+2}, 1, v0
    v_lshl_add_u32 v{T}, v{T+2}, 4, v{T}
    v_add3_u32 v{V_DW}, v{T}, v{T+3}, s5
    s_lshl_b32 s6, s4, 2
    v_add_u32 v{V_DW+1}, s6, v{V_DW}
    v_xor_b32 v{T}, 0x80, v{T}
    v_add3_u32 v{V_DW+2}, v{T}, v{T+3}, s5
    s_lshl_b32 s7, s4, 3
    v_add_u32 v{V_DW+2}, s7, v{V_DW+2}
    v_add_u32 v{V_DW+3}, s6, v{V_DW+2}
    s_lshl_b32 s6, s{S_WN}, 1
    s_and_b32 s7, s6, 2
    s_add_u32 s7, s7, s{S_Q}
    s_and_b32 s6, s6, 4
    s_lshl_b32 s4, s{S_MT}, 3
    s_add_u32 s6, s6, s4
    s_and_b32 s4, s7, 3
    s_add_u32 s4, s4, s6
    s_lshl_b32 s{S_XA}, s4, 16
    s_add_u32 s7, s7, 1
    s_and_b32 s4, s7, 3
    s_add_u32 s4, s4, s6
    s_lshl_b32 s{S_XA+2}, s4, 16
    s_add_u32 s{S_XA+1}, s{S_XA}, 0x8000
    s_add_u32 s{S_XA+3}, s{S_XA+2}, 0x8000
    s_lshl_b32 s{S_XT}, s{S_WN}, 13
    s_lshl_b32 s{S_WT}, s{S_WN}, 12
    s_add_u32 s{S_WT}, s{S_WT}, {hx(WB)}
    s_lshl_b32 s{S_KVT}, s{S_WN}, 10
    s_add_u32 s{S_KVT}, s{S_KVT}, {hx(KVB)}
    s_mov_b32 s{S_WK}, 0
    s_mov_b32 s{S_KVK}, 0
    v_lshrrev_b32 v{T}, 2, v0
    s_lshl_b32 s6, s{S_WN}, 4
    v_add_u32 v{T}, s6, v{T}
    v_lshlrev_b32 v{T}, 6, v{T}
    v_lshrrev_b32 v{T+1}, 5, v0
    v_lshlrev_b32 v{T+1}, 1, v{T+1}
    v_and_b32 v{T+2}, 3, v0
    v_xor_b32 v{T+1}, v{T+1}, v{T+2}
    v_lshl_add_u32 v{V_DKV}, v{T+1}, 4, v{T}
    s_mov_b32 s{SRD_K+2}, 0x10000
    s_mov_b32 s{SRD_K+3}, 0x20000
    s_mov_b32 s{SRD_V+2}, 0x10000
    s_mov_b32 s{SRD_V+3}, 0x20000
    s_waitcnt lgkmcnt(0)
    """)
    stp(a, 8)
    srd_w(a)
    a(f"""
    s_mov_b32 s{SRD_K}, s32
    s_mov_b32 s{SRD_K+1}, s33
    s_mov_b32 s{SRD_V}, s34
    s_mov_b32 s{SRD_V+1}, s35
    """)
    def dma(vo, srd, so, mb, mo, post=()):
        return [f"s_add_u32 m0, s{mb}, {hx(mo)}" if mo else f"s_mov_b32 m0, s{mb}",
                f"buffer_load_dwordx4 v{vo}, s[{srd}:{srd+3}], s{so} offen lds"] + list(post)
    def dWl(slot):
        r = []
        for i in range(4):
            r.append(dma(V_DW+i, SRD_W0, S_WK, S_WT, slot*WSZ + i*1024))
            r.append(dma(V_DW+i, SRD_W1, S_WK, S_WT, slot*WSZ + 16384 + i*1024))
        r[-1] += [f"s_add_u32 s{S_WK}, s{S_WK}, s{S_WSTEP}"]
        return r
    def dXl(off):
        return [dma(V_DX+(i & 1), SRD_X, S_XA+(i >> 1), S_XT, off + i*1024,
                    post=([f"s_add_u32 s{S_XA+(i>>1)}, s{S_XA+(i>>1)}, 128"] if i & 1 else [])) for i in range(8)]
    def dKVl(slot):
        return [dma(V_DKV, SRD_K, S_KVK, S_KVT, slot*KVSZ),
                dma(V_DKV, SRD_V, S_KVK, S_KVT, slot*KVSZ+4096, post=[f"s_add_u32 s{S_KVK}, s{S_KVK}, 4096"])]
    def burst(o, l):
        for g in l:
            o(g[0]); o("s_nop 0")
            for t in g[1:]: o(t)
    def dW(o, slot): burst(o, dWl(slot))
    def dX(o, off): burst(o, dXl(off))
    def dKV(o, slot): burst(o, dKVl(slot))
    dW(a, 0); dX(a, 0)
    stp(a, 9)
    if stamp: a(f"s_mov_b32 s{ST+15}, 0")
    lds_addrs(a)
    dispatch(a, "L")
    a.raw(f"{name}_cpro:")
    if "noprio" not in abl: a("s_setprio 1")
    a(f"""
    s_mov_b32 s{SRD_G+2}, 0x800
    s_mov_b32 s{SRD_G+3}, 0x20000
    s_lshl_b32 s4, s{S_NT}, 2
    s_add_u32 s4, s4, s{S_WN}
    s_lshl_b32 s4, s4, 1
    v_lshrrev_b32 v{T}, 5, v0
    v_add_u32 v{T}, s4, v{T}
    s_lshl_b32 s5, s{S_Q}, 5
    v_subrev_u32 v{T+1}, s5, v{T}
    v_and_b32 v{T+1}, 127, v{T+1}
    v_and_b32 v{T}, 128, v{T}
    v_or_b32 v{T}, v{T}, v{T+1}
    v_bfe_u32 v{T+1}, v{T}, 1, 3
    v_bfe_u32 v{T+2}, v0, 2, 3
    v_xor_b32 v{T+1}, v{T+1}, v{T+2}
    v_lshlrev_b32 v{T}, 7, v{T}
    v_lshl_add_u32 v{T}, v{T+1}, 4, v{T}
    v_and_b32 v{T+1}, 3, v0
    v_lshl_add_u32 v{V_GA}, v{T+1}, 2, v{T}
    v_and_b32 v{V_GO}, 31, v0
    v_lshlrev_b32 v{V_GO}, 2, v{V_GO}
    v_mov_b32 v{V_GZ}, 0
    v_mov_b32 v{V_GZ+1}, 0
    s_mov_b32 s{S_MSK}, 0xffff0000
    s_mov_b32 s{S_GK}, 0
    s_mov_b32 s{S_XT}, 0
    s_waitcnt lgkmcnt(0)
    """)
    stp(a, 8)
    a(f"""
    s_mov_b32 s{SRD_G}, s40
    s_mov_b32 s{SRD_G+1}, s41
    buffer_load_dword v{V_GW}, v{V_GO}, s[{SRD_G}:{SRD_G+3}], s{S_GK} offen
    s_add_u32 s{S_GK}, s{S_GK}, 128
    """)
    if "tlb" in abl:
        srd_w(a)
        a(f"""
        s_mov_b32 s{SRD_WS}, s42
        s_mov_b32 s{SRD_WS+1}, s43
        s_mov_b32 s{SRD_W0}, s36
        s_mov_b32 s{SRD_W0+1}, s37
        s_mov_b32 s{SRD_W0+2}, 0x700000
        s_mov_b32 s{SRD_W1}, s38
        s_mov_b32 s{SRD_W1+1}, s39
        s_mov_b32 s{SRD_W1+2}, 0x700000
        v_and_b32 v{T}, 15, v0
        v_lshlrev_b32 v{T}, 21, v{T}
        s_cmp_eq_u32 s{S_WAVE}, 0
        s_cbranch_scc0 {name}_notlb
        buffer_load_dword v{T+1}, v{T}, s[{SRD_W0}:{SRD_W0+3}], 0 offen
        buffer_load_dword v{T+1}, v{T}, s[{SRD_W1}:{SRD_W1+3}], 0 offen
        buffer_load_dword v{T+1}, v{T}, s[{SRD_X}:{SRD_X+3}], 0 offen
        buffer_load_dword v{T+1}, v{T}, s[{SRD_WS}:{SRD_WS+3}], 0 offen
        s_waitcnt vmcnt(0)
        {name}_notlb:
        """)
    stp(a, 9)
    lds_addrs(a)
    dispatch(a, "C")

    w2 = "now2" not in abl
    VP, VP2, VPD = 16, 17, 18
    PFL = [[f"s_nop 0", f"buffer_load_dword v{VPD}, v{VP}, s[{SRD_P}:{SRD_P+3}], s{S_PK} offen", f"s_add_u32 s{S_PK}, s{S_PK}, s{S_PSTEP}"]]
    if w2: PFL.append([f"s_nop 0", f"buffer_load_dword v{VPD}, v{VP2}, s[{SRD_K}:{SRD_K+3}], s{S_KVT} offen", f"s_add_u32 s{S_KVT}, s{S_KVT}, s{S_KVK}"])
    NPF = len(PFL) if pf else 0
    def p_setup(o):
        T = 20
        o(f"""
        s_load_dwordx2 s[24:25], s[0:1], 64
        s_load_dwordx2 s[26:27], s[0:1], 32
        s_mul_i32 s6, s{S_MT}, 28
        s_add_u32 s6, s6, s{S_NT}
        v_lshrrev_b32 v{T}, 2, v0
        v_lshlrev_b32 v{T}, 7, v{T}
        s_lshl_b32 s7, s6, 11
        v_add_u32 v{T}, s7, v{T}
        v_min_u32 v{T+1}, 9, v0
        s_mul_i32 s7, s6, 10
        v_add_u32 v{T+1}, s7, v{T+1}
        v_min_u32 v{T+1}, 2047, v{T+1}
        v_lshlrev_b32 v{T+1}, 11, v{T+1}
        v_lshrrev_b32 v{VP2}, 3, v0
        v_lshlrev_b32 v{VP2}, 7, v{VP2}
        s_cmp_ge_u32 s6, 128
        s_cselect_b32 s7, 3, 127
        s_and_b32 s7, s7, s6
        s_lshl_b32 s7, s7, 10
        v_add_u32 v{T+2}, s7, v{VP2}
        s_cmp_ge_u32 s6, 128
        s_cselect_b32 s7, 1, 32
        s_lshl_b32 s7, s7, 12
        s_cmp_eq_u32 s{S_WN}, 2
        s_cselect_b64 vcc, -1, 0
        s_cselect_b32 s{S_PSTEP}, 128, s{S_WSTEP}
        v_cndmask_b32 v{VP}, v{T}, v{T+1}, vcc
        s_cselect_b32 s{SRD_P}, s{SRD_X}, s{SRD_W0}
        s_cselect_b32 s{SRD_P+1}, s{SRD_X+1}, s{SRD_W0+1}
        s_cselect_b32 s{SRD_P+2}, s{SRD_X+2}, s{SRD_W0+2}
        s_cmp_eq_u32 s{S_WN}, 1
        s_cselect_b32 s{SRD_P}, s{SRD_W1}, s{SRD_P}
        s_cselect_b32 s{SRD_P+1}, s{SRD_W1+1}, s{SRD_P+1}
        s_cmp_eq_u32 s{S_WN}, 3
        s_cselect_b64 vcc, -1, 0
        s_cselect_b32 s{S_PSTEP}, s7, s{S_PSTEP}
        v_cndmask_b32 v{VP}, v{VP}, v{T+2}, vcc
        s_mul_i32 s{S_PK}, s{S_PSTEP}, {2+PD}
        s_cmp_ge_u32 s6, 132
        s_cselect_b32 s4, s34, s32
        s_cselect_b32 s7, s35, s33
        s_cmp_ge_u32 s6, 136
        s_cselect_b32 s5, 0, 0x10000
        s_cmp_lt_u32 s6, 128
        s_cselect_b32 s4, s30, s4
        s_cselect_b32 s7, s31, s7
        s_cselect_b32 s5, 0x200000, s5
        s_cmp_eq_u32 s{S_WN}, 3
        s_cselect_b32 s{SRD_P}, s4, s{SRD_P}
        s_cselect_b32 s{SRD_P+1}, s7, s{SRD_P+1}
        s_cselect_b32 s{SRD_P+2}, s5, s{SRD_P+2}
        s_mov_b32 s{SRD_P+3}, 0x20000
        s_mul_i32 s4, s6, 3
        s_add_u32 s4, s4, s{S_WN}
        s_mov_b32 s5, 0x700000
        s_mov_b32 s7, {672*1024}
        s_waitcnt lgkmcnt(0)
        s_cmp_eq_u32 s{S_WN}, 3
        s_cselect_b32 s4, s6, s4
        s_cselect_b32 s{SRD_K}, s26, s24
        s_cselect_b32 s{SRD_K+1}, s27, s25
        s_cselect_b32 s{SRD_K+2}, 0x200000, s5
        s_cselect_b32 s{S_KVK}, {224*1024}, s7
        s_lshl_b32 s{S_KVT}, s4, 10
        """)
    WORDER = [(0,0),(0,1),(1,1),(1,0),(2,0),(2,1),(3,1),(3,0)]
    def rd_w(st, slot, s, kh, j):
        blk, b = s >> 1, s & 1
        r = wf(st, s, kh) + j*2
        return (f"ds_read_b64_tr_b16 v[{r}:{r+1}], v{V_W0+b} offset:{slot*WSZ + blk*16384 + kh*8192 + j*1024}", ("W", st, s, kh))
    def rd_x(role, slot, u, kh):
        r = xf(u, kh)
        off = u*2048 + (0 if role == "F" else slot*XSZ)
        return (f"ds_read_b128 v[{r}:{r+3}], v{V_X0+kh} offset:{off}", ("x", u, kh))
    def rd_kv(slot, kh, j):
        r = KVW + kh*4 + j*2
        return (f"ds_read_b64_tr_b16 v[{r}:{r+1}], v{V_KV} offset:{slot*KVSZ + kh*2048 + j*256}", ("kv", kh))

    def gate_acc(nvm):
        t = V_GT
        return [f"s_waitcnt vmcnt({nvm})",
                f"v_lshlrev_b32 v{t}, 16, v{V_GX}", f"v_and_b32 v{t+1}, s{S_MSK}, v{V_GX}",
                f"v_lshlrev_b32 v{V_GX}, 16, v{V_GW}", f"v_and_b32 v{V_GW}, s{S_MSK}, v{V_GW}",
                f"v_pk_mul_f32 v[{t}:{t+1}], v[{t}:{t+1}], v[{V_GX}:{V_GW}]",
                f"v_cvt_pk_bf16_f32 v{t+1}, v{t}, v{t+1}",
                f"v_lshlrev_b32 v{t}, 16, v{t+1}", f"v_and_b32 v{t+1}, s{S_MSK}, v{t+1}",
                f"v_pk_add_f32 v[{V_GZ}:{V_GZ+1}], v[{V_GZ}:{V_GZ+1}], v[{t}:{t+1}]"]
    def gate_fin():
        z = V_GZ; t = V_GX
        g = [f"v_add_f32 v{z}, v{z}, v{z+1}"]
        for sh in ("row_shr:1", "row_shr:2", "row_shr:4", "row_shr:8"):
            g += ["s_nop 1", f"v_add_f32_dpp v{z}, v{z}, v{z} {sh} row_mask:0xf bank_mask:0xf bound_ctrl:1"]
        g += ["s_nop 1", f"v_add_f32_dpp v{z}, v{z}, v{z} row_bcast:15 row_mask:0xa bank_mask:0xf",
              f"v_cvt_pk_bf16_f32 v{t}, v{z}, v{z}", f"v_lshlrev_b32 v{t}, 16, v{t}",
              f"v_mul_f32 v{t}, {hx(f2u(-LOG2E))}, v{t}", f"v_exp_f32 v{t}, v{t}",
              f"s_lshl_b32 s4, s{S_MT}, 5", f"v_add_f32 v{t}, 1.0, v{t}",
              f"v_rcp_f32 v{t}, v{t}", f"s_add_u32 s4, s4, s{S_NT}", f"v_cvt_pk_bf16_f32 v{t}, v{t}, v{t}", f"v_lshlrev_b32 v{t}, 16, v{t}",
              f"v_sub_f32 v{t+1}, 1.0, v{t}", f"v_cvt_pk_bf16_f32 v{t+1}, v{t+1}, v{t+1}", f"v_lshlrev_b32 v{t+1}, 16, v{t+1}",
              f"v_lshrrev_b32 v{z}, 5, v0", f"v_lshlrev_b32 v{z}, 3, v{z}",
              "s_lshl_b32 s4, s4, 2", f"s_add_u32 s4, s4, s{S_WN}", "s_lshl_b32 s4, s4, 4", f"s_add_u32 s4, s4, {hx(WS_GATE)}",
              "s_mov_b32 exec_lo, 0x80000000", "s_mov_b32 exec_hi, 0x80000000",
              f"buffer_store_dwordx2 v[{t}:{t+1}], v{z}, s[{SRD_WS}:{SRD_WS+3}], s4 offen",
              "s_mov_b64 exec, -1", f"s_lshl_b32 s4, s2, 3", f"s_add_u32 s4, s4, s{S_WAVE}", "s_cmp_ge_u32 s4, 8", f"s_cbranch_scc1 {name}_fin",
              f"v_lshlrev_b32 v{z}, 2, v0", f"v_mov_b32 v{z+1}, 0", "s_and_b32 s4, s4, 3", "s_lshl_b32 s4, s4, 9", f"s_add_u32 s4, s4, {hx(WS_FLAG)}",
              f"buffer_store_dword v{z+1}, v{z}, s[{SRD_WS}:{SRD_WS+3}], s4 offen",
              f"buffer_store_dword v{z+1}, v{z}, s[{SRD_WS}:{SRD_WS+3}], s4 offen offset:256"]
        return g

    def epi_group(role, u):
        e = []
        TE = WF
        if role == "F":
            G = acc(u, 0); U = acc(u, 2)
            for i in range(4): e.append(f"v_pk_mul_f32 v[{G+2*i}:{G+2*i+1}], v[{G+2*i}:{G+2*i+1}], s[{S_E0}:{S_E1}]")
            for i in range(8): e.append(f"v_exp_f32 v{G+i}, v{G+i}")
            for i in range(4): e.append(f"v_pk_add_f32 v[{G+2*i}:{G+2*i+1}], v[{G+2*i}:{G+2*i+1}], 1.0 op_sel_hi:[1,0]")
            for i in range(8): e.append(f"v_rcp_f32 v{G+i}, v{G+i}")
            for i in range(4): e.append(f"v_pk_mul_f32 v[{U+2*i}:{U+2*i+1}], v[{U+2*i}:{U+2*i+1}], v[{G+2*i}:{G+2*i+1}]")
            o = TE + (u & 1)*4
            for i in range(4): e.append(f"v_cvt_pk_bf16_f32 v{o+i}, v{U+2*i}, v{U+2*i+1}")
            e.append(f"buffer_store_dwordx4 v[{o}:{o+3}], v{V_ST}, s[{SRD_WS}:{SRD_WS+3}], s{S_E2} offen offset:{(u&1)*1024}" + SC)
            if u & 1 and u < 7: e.append(f"s_add_u32 s{S_E2}, s{S_E2}, 2048")
        else:
            if u % 2 == 0:
                e += [f"s_add_u32 s4, s{S_Q}, {u>>1}", "s_and_b32 s4, s4, 3", f"s_add_u32 s4, s4, s{S_E2}", "s_lshl_b32 s4, s4, 16", f"s_add_u32 s4, s4, s{S_E3}"]
            for blk in range(2):
                R = acc(u, 2*blk)
                for i in range(4): e.append(f"v_pk_mul_f32 v[{R+2*i}:{R+2*i+1}], v[{R+2*i}:{R+2*i+1}], s[{S_E0}:{S_E1}]")
                o = TE + 8 + blk*4
                for i in range(4): e.append(f"v_cvt_pk_bf16_f32 v{o+i}, v{R+2*i}, v{R+2*i+1}")
                e.append(f"buffer_store_dwordx4 v[{o}:{o+3}], v{V_ST if blk == 0 else V_ST2}, s[{SRD_WS}:{SRD_WS+3}], s4 offen offset:{(u&1)*1024}" + ("" if "qplain" in abl else SC))
        return e
    def epi_setup(role):
        TE = WF + 16
        e = [f"v_lshlrev_b32 v{V_ST}, 4, v0",
             f"s_lshl_b32 s4, s{S_MT}, 3", f"s_lshl_b32 s5, s{S_WM}, 2", f"s_add_u32 s{S_E2}, s4, s5"]
        if role == "F":
            e += [f"s_lshl_b32 s5, s{S_NT}, 2", f"s_add_u32 s5, s5, s{S_WN}", "s_lshl_b32 s5, s5, 6", f"s_add_u32 s4, s5, s{S_E2}",
                  f"s_lshl_b32 s{S_E2}, s4, 11", f"s_mov_b32 s{S_E0}, {hx(f2u(-LOG2E))}", f"s_mov_b32 s{S_E1}, {hx(f2u(-LOG2E))}"]
        else:
            e += [f"s_lshl_b32 s7, s{S_Q}, 3", f"s_add_u32 s7, s7, s{S_WN}", "s_lshl_b32 s7, s7, 11", f"s_add_u32 s{S_E3}, s7, {hx(WS_Q)}",
                  f"s_mov_b32 s{S_E0}, {hx(f2u(QSCALE))}", f"s_mov_b32 s{S_E1}, {hx(f2u(QSCALE))}", f"v_add_u32 v{V_ST2}, 0x2000, v{V_ST}"]
        return e
    def epi_kv(role):
        TE = WF + 16
        e = [f"s_add_u32 s5, s{S_E2}, s{S_Q}", "s_lshl_b32 s5, s5, 12", f"s_and_b32 s6, s{S_WN}, 1"]
        cv = [f"v_cvt_pk_bf16_f32 v{TE+4+i}, v{KVA+2*i}, v{KVA+2*i+1}" for i in range(4)]
        if role == "K":
            e += ["s_lshl_b32 s6, s6, 3", "s_add_u32 s5, s5, s6", f"s_add_u32 s5, s5, {hx(WS_KV)}"] + cv
            e += [f"buffer_store_dwordx2 v[{TE+4}:{TE+5}], v{V_ST}, s[{SRD_WS}:{SRD_WS+3}], s5 offen",
                  f"buffer_store_dwordx2 v[{TE+6}:{TE+7}], v{V_ST}, s[{SRD_WS}:{SRD_WS+3}], s5 offen offset:1024"]
        else:
            e += ["s_lshl_b32 s6, s6, 10", "s_add_u32 s5, s5, s6", f"s_add_u32 s5, s5, {hx(WS_KV+2048)}"] + cv
            e += [f"buffer_store_dwordx4 v[{TE+4}:{TE+7}], v{V_ST}, s[{SRD_WS}:{SRD_WS+3}], s5 offen"]
        return e

    def stage(o, lq, role, half, par, first=False, dW_on=True, dX_on=True, pf_on=True, nxt_reads=True, vm=None, bar=True, last=False, tail=None, gvm=1, w2pf=False, xstop=False):
        cur, nxt = par, 1-par
        kv = role != "F"
        C = half == "C"
        fill = {}
        def put(slot, t):
            txt = t[0] if isinstance(t, tuple) else t
            if "nolds" in abl and txt.startswith("ds_"): return
            fill.setdefault(slot, []).append(t)
        put(0, rd_x(role, cur, 3, 0)); put(1, rd_x(role, cur, 3, 1))
        for u in range(4):
            put(8*u+8, rd_x(role, cur, u+4, 0)); put(8*u+9, rd_x(role, cur, u+4, 1))
        if C:
            put(2 if last else 26, (f"ds_read_b32 v{V_GX}, v{V_GA} offset:{0 if role == 'F' else cur*XSZ}", ("g",)))
        if nxt_reads:
            if role == "F":
                put(34, f"s_cmp_eq_u32 s{S_XT}, s{S_XT2}")
                put(34, f"s_cselect_b32 s{S_D2}, {hx(-2*XSZ)}, s{S_C32}")
                put(35, f"v_add_u32 v{V_X0}, s{S_D2}, v{V_X0}")
                put(36, f"v_add_u32 v{V_X1}, s{S_D2}, v{V_X1}")
                if C: put(37, f"v_add_u32 v{V_GA}, s{S_D2}, v{V_GA}")
                put(62, f"s_add_u32 s{S_XT}, s{S_XT}, s{S_D2}")
            for u in range(3):
                put(8*u+40, rd_x(role, nxt, u, 0)); put(8*u+41, rd_x(role, nxt, u, 1))
            wslots = [42,43,44,45,46,47,50,51,52,53,54,55,58,59,60,61]
            for n, (s, kh) in enumerate(WORDER):
                put(wslots[2*n], rd_w(nxt, nxt, s, kh, 0)); put(wslots[2*n+1], rd_w(nxt, nxt, s, kh, 1))
            if kv:
                put(62, rd_kv(nxt, 0, 0)); put(62, rd_kv(nxt, 0, 1)); put(63, rd_kv(nxt, 1, 0)); put(63, rd_kv(nxt, 1, 1))
        dl = []; NUP = NUPQ if kv else NUPF
        if not C:
            if kv and dW_on: dl += dKVl(cur)
            if dW_on: dl += dWl(cur)
            if pf and pf_on and not kv: dl += PFL
            if dX_on: dl += dXl(0 if role == "F" else cur*XSZ)
            for n, g in enumerate(dl[NUP:]):
                put(40 + 2*n, g[0])
                for t in g[1:]: put(41 + 2*n, t)
            if first and role == "F":
                for n, g in enumerate(dXl(2*XSZ)):
                    put(2 + 3*n, g[0])
                    for t in g[1:]: put(3 + 3*n, t)
        if last:
            off = 0
            if C:
                ga = gate_acc(0)
                put(6, ("WAIT", ("g",)))
                for n, t in enumerate(ga): put(6 + n//4, t)
                off = 9
            es = epi_setup(role)
            for n, t in enumerate(es): put(off + n//(6 if C else 3), t)
            if kv:
                for n, t in enumerate(epi_kv(role)): put(18 + n//3, t)
            for u in range(7 if ("ilv" in abl or (kv and "ilvQ" in abl)) else 0):
                e = epi_group(role, u)
                per = -(-len(e)//(8 if u < 6 else 5))
                for n, t in enumerate(e): put(8*u+11 + (1 if u == 0 else 0) + n//per, t)
        if last and not C and not ("ilv" in abl or (kv and "ilvQ" in abl)): put(0, "s_setprio 1")
        if tail:
            for t in tail: put(63, t)
        def need(tags):
            if any(t in lq.q for t in tags): o(f"s_waitcnt lgkmcnt({lq.need(tags)})")
        def emit(t):
            if isinstance(t, tuple):
                if t[0] == "WAIT": need([t[1]])
                else: o(t[0]); lq.push(t[1])
            else: o(t)
        n = 0
        for u in range(8):
            if u == 5 and bar:
                lq.need(lq.q)
                if C:
                    o("s_waitcnt lgkmcnt(0)")
                    for t in gate_acc(gvm): o(t)
                    o(f"buffer_load_dword v{V_GW}, v{V_GO}, s[{SRD_G}:{SRD_G+3}], s{S_GK} offen")
                    o(f"s_add_u32 s{S_GK}, s{S_GK}, 128")
                else:
                    o(f"s_waitcnt vmcnt({vm}) lgkmcnt(0)")
                if "nobar" not in abl: o("s_barrier")
                if stamp and not C:
                    o(f"s_memtime s[4:5]\ns_waitcnt lgkmcnt(0)\ns_mov_b32 m0, s{ST+15}\nv_writelane_b32 v13, s4, m0\ns_add_u32 s{ST+15}, s{ST+15}, 1")
                if not C: burst(o, dl[:NUP])
            for c in range(4):
                s = c if u % 2 == 0 else 3-c
                for e in range(2):
                    kh = e if c % 2 == 0 else 1-e
                    need([("W", cur, s, kh), ("x", u, kh)])
                    d = acc(u, s)
                    cc = "0" if (first and e == 0) else f"v[{d}:{d+3}]"
                    o(f"v_mfma_f32_16x16x32_bf16 v[{d}:{d+3}], {vr(wf(cur,s,kh),4)}, {vr(xf(u,kh),4)}, {cc}")
                    if kv and u < 2 and c == 3 and e == 1:
                        for k2 in range(2):
                            need([("kv", k2)])
                            d = KVA + u*4
                            cc = "0" if (first and k2 == 0) else f"v[{d}:{d+3}]"
                            w = vr(KVW+k2*4, 4); x = vr(xf(u, k2), 4)
                            if role == "K": o(f"v_mfma_f32_16x16x32_bf16 v[{d}:{d+3}], {w}, {x}, {cc}")
                            else: o(f"v_mfma_f32_16x16x32_bf16 v[{d}:{d+3}], {x}, {w}, {cc}")
                    for t in fill.get(n, []): emit(t)
                    n += 1
        if last:
            ilv = "ilv" in abl or (kv and "ilvQ" in abl)
            if C and not ilv: o("s_setprio 0")
            if ilv: o("s_nop 7")
            for u in range(7 if ilv else 0, 8):
                for t in epi_group(role, u): o(t)
            if C:
                for t in gate_fin(): o(t)

    for role in "FKV":
      for half in "CL":
        kv = role != "F"; C = half == "C"
        rn = f"{name}_{role}{half}"
        a.raw(f"{rn}:")
        lq = LQ(15)
        if not C:
            if role == "F": a(f"s_add_u32 s{S_XT2}, s{S_XT2}, s{S_XT}")
            if kv: dKV(a, 0)
            dW(a, 1)
            if pf and not kv: p_setup(a)
            a("s_waitcnt vmcnt(8)")
        stp(a, 12)
        a("s_barrier")
        stp(a, 10)
        if not C:
            if kv: dKV(a, 1)
            dX(a, XSZ)
        pro = []
        wi = iter([rd_w(0, 0, s, kh, j) for (s, kh) in WORDER for j in range(2)])
        for u in range(3):
            pro += [rd_x(role, 0, u, 0), rd_x(role, 0, u, 1)] + [next(wi) for _ in range(6 if u < 2 else 4)]
        if kv: pro += [rd_kv(0, 0, 0), rd_kv(0, 0, 1), rd_kv(0, 1, 0), rd_kv(0, 1, 1)]
        for t in pro: a(t[0]); lq.push(t[1])
        a(f"s_mov_b32 s{S_CNT}, {6 if kv else 5}")
        vm = 0 if kv else 8 + NPF
        gvm = 0
        stp(a, 4); stp(a, 5, True)
        stage(a, lq, role, half, 0, first=True, vm=(0 if kv else 8), gvm=0)
        a.raw(".p2align 6")
        a.raw(f"{rn}_loop:")
        b1 = Asm(); q0 = list(lq.q)
        if kv:
            stage(b1, lq, role, half, 1, vm=vm, gvm=gvm, tail=[f"s_cmp_eq_u32 s{S_CNT}, 0", f"s_cbranch_scc1 {rn}_tail"])
            q1 = list(lq.q)
            stage(b1, lq, role, half, 0, vm=vm, gvm=gvm, tail=[f"s_sub_u32 s{S_CNT}, s{S_CNT}, 1", f"s_branch {rn}_loop"])
            assert lq.q == q0
            a.l += b1.l
            a.raw(f"{rn}_tail:")
            lq.q = q1
        else:
            stage(b1, lq, role, half, 1, vm=vm, gvm=gvm)
            stage(b1, lq, role, half, 0, vm=vm, gvm=gvm, xstop=True, tail=[f"s_sub_u32 s{S_CNT}, s{S_CNT}, 1", f"s_cbranch_scc0 {rn}_loop"])
            assert lq.q == q0
            a.l += b1.l
            stage(a, lq, role, half, 1, vm=vm, gvm=gvm, dX_on=False, pf_on=False)
        stage(a, lq, role, half, 0, dW_on=False, dX_on=False, pf_on=False, vm=0, gvm=gvm, w2pf=("now2" not in abl))
        stp(a, 11)
        stage(a, lq, role, half, 1, dW_on=False, dX_on=False, nxt_reads=False, bar=False, last=True)
        stp(a, 6); stp(a, 7, True)
        a(f"s_branch {name}_fin")
    a.raw(f"{name}_fin:")
    if stamp:
        T = 96
        a("s_waitcnt vmcnt(0)")
        stp(a, 13); stp(a, 14, True)
        a(f"""
        s_lshl_b32 s4, s2, 3
        s_add_u32 s4, s4, s{S_WAVE}
        s_lshl_b32 s4, s4, 6
        s_add_u32 s4, s4, {hx(0x1E00000)}
        s_mov_b64 exec, -1
        v_mov_b32 v14, 0
        """)
        for i, (r, rel) in enumerate([(4,1),(6,1),(13,1),(2,0),(14,0),(0,0),(5,0),(7,0),(8,1),(9,1),(10,1),(11,1),(12,1)]):
            if rel: a(f"s_sub_u32 s{ST+r}, s{ST+r}, s{ST}")
            a(f"v_mov_b32 v{T+i}, s{ST+r}")
        a(f"v_lshlrev_b32 v15, 2, v0\ns_add_u32 s5, s4, 0x40000\ns_mov_b64 exec, 0xffff\nbuffer_store_dword v13, v15, s[{SRD_WS}:{SRD_WS+3}], s5 offen")
        a("s_mov_b64 exec, 1")
        for i in range(4):
            a(f"buffer_store_dwordx4 v[{T+4*i}:{T+4*i+3}], v14, s[{SRD_WS}:{SRD_WS+3}], s4 offen offset:{16*i}")
    a.raw(f"{name}_end:")
    a("s_endpgm")
    return a.text()

if __name__ == "__main__":
    import sys
    stamp = "stamp" in sys.argv
    s = "; @launch kernel=k1_kernel grid=(256,1,1) block=(512,1,1) lds=163840\n"
    s += '.amdgcn_target "amdgcn-amd-amdhsa--gfx950"\n.text\n' + gen_k1(stamp=stamp, abl=sys.argv[2:]) + kernel_desc("k1_kernel")
    open(sys.argv[1], "w").write(s)
```

```python
from common import *

RW = 30
PROG = 122880
CNT_LDS = PROG + 2048
KVB = 131072
K2_LDS = 163840

S_WAVE, S_W = 3, 33
SRD_WS, SRD_WD, SRD_WO, SRD_OUT = 8, 12, 16, 20
S_MI, S_NI, S_MT32 = 34, 35, 36
S_CNT = 37
S_HK, S_WK, S_WM, S_WEND, S_WW, S_KVK, S_KVM, S_RD = 38, 39, 40, 41, 42, 43, 44, 45
S_T = 46
S_NEED, S_CU = 58, 57
ST = 70
def m16(d, x, y, c=True): return f"v_mfma_f32_16x16x32_bf16 {vr(d,4)}, {vr(x,4)}, {vr(y,4)}, " + (vr(d,4) if c is True else ("0" if c is False else vr(c,4)))

def gen_k2(name="k2_kernel", stamp=False, abl=()):
    a = Asm()
    def stp(o, i, real=False):
        if stamp:
            o(f"{'s_memrealtime' if real else 's_memtime'} s[4:5]\ns_waitcnt lgkmcnt(0)\ns_mov_b32 s{ST+i}, s4")
    prioA = 1; prioG = 0; HD = 10; FLAGU = 106; GP2 = 0; GPU_ = 96
    for x in abl:
        if x.startswith("pa"): prioA = int(x[2:])
        if x.startswith("pg"): prioG = int(x[2:])
        if x.startswith("fu"): FLAGU = int(x[2:])
        if x.startswith("gp"): GP2 = int(x[2:])
        if x.startswith("gu"): GPU_ = int(x[2:])
    nosync = "nosync" in abl
    a.raw(f".globl {name}\n.p2align 8\n.type {name},@function\n{name}:")
    if stamp: a(f"s_memtime s[{ST}:{ST+1}]\ns_memrealtime s[{ST+2}:{ST+3}]")
    a(f"""
    s_load_dwordx2 s[24:25], s[0:1], 96
    s_load_dwordx2 s[26:27], s[0:1], 64
    s_load_dwordx2 s[28:29], s[0:1], 32
    s_load_dwordx2 s[30:31], s[0:1], 80
    """)
    CW = 8
    for x in abl:
        if x.startswith("cw"): CW = int(x[2:])
    if "nocpf" not in abl:
        a(f"""
        s_cmp_ge_u32 s2, {CW}
        s_cbranch_scc1 {name}_nocpf
        s_getpc_b64 s[4:5]
        {name}_pc:
        s_sub_u32 s4, s4, {name}_pc-{name}
        s_subb_u32 s5, s5, 0
        v_lshlrev_b32 v2, 7, v0
        v_min_u32 v3, k2_kernel_end-{name}, v2
        global_load_dword v255, v3, s[4:5]
        {name}_nocpf:
        """)
    a(f"""
    s_cmp_ge_u32 s2, 256
    s_cbranch_scc1 {name}_end
    v_lshrrev_b32 v1, 6, v0
    v_and_b32 v0, 63, v0
    v_readfirstlane_b32 s{S_WAVE}, v1
    s_and_b32 s4, s2, 7
    {"s_xor_b32 s4, s4, 1" if "xflip" in abl else ""}
    s_lshr_b32 s5, s2, 3
    s_lshr_b32 s6, s4, 1
    s_lshl_b32 s6, s6, 2
    s_and_b32 s7, s5, 3
    s_add_u32 s{S_MI}, s6, s7
    s_and_b32 s4, s4, 1
    s_lshl_b32 s4, s4, 3
    s_lshr_b32 s5, s5, 2
    s_add_u32 s{S_NI}, s4, s5
    s_and_b32 s{S_W}, s{S_WAVE}, 3
    s_lshl_b32 s4, s{S_MI}, 2
    s_add_u32 s{S_MT32}, s4, s{S_W}
    s_mov_b32 s{SRD_WS+2}, {hx(WS_SIZE)}
    s_mov_b32 s{SRD_WS+3}, 0x20000
    v_lshlrev_b32 v1, 4, v0
    s_cmp_ge_u32 s{S_WAVE}, 4
    s_cbranch_scc1 {name}_G
    """)
    VL = 1; VKV = 2
    VG = 4
    VT = 6
    SEL = 12
    Q = 16
    S = 32
    P = 64
    O = 80
    Ls = 112
    K = 128
    V = 144
    CB = 160
    MX = 176
    VSIG, VCHK, VONE, VCNT = 186, 187, 188, 189
    if prioA: a(f"s_setprio {prioA}")
    a(f"""
    s_lshl_b32 s4, s{S_MT32}, 5
    s_lshl_b32 s5, s{S_NI}, 1
    s_add_u32 s4, s4, s5
    s_lshl_b32 s4, s4, 11
    s_add_u32 s{S_T}, s4, {hx(WS_Q)}
    s_lshl_b32 s5, s{S_NI}, 7
    s_add_u32 s5, s5, s{S_MT32}
    s_lshl_b32 s5, s5, 11
    s_add_u32 s{S_T+1}, s5, {hx(WS_O)}
    s_add_u32 s{S_T+10}, s{S_T+1}, 0x20000
    s_lshl_b32 s{S_T+2}, s{S_MT32}, 8
    s_add_u32 s{S_T+2}, s{S_T+2}, {hx(WS_GATE)}
    v_and_b32 v{VT}, 15, v0
    v_lshlrev_b32 v{VT}, 3, v{VT}
    v_add_u32 v{VKV}, {hx(KVB)}, v{VL}
    s_waitcnt lgkmcnt(0)
    s_mov_b32 s{SRD_WS}, s24
    s_mov_b32 s{SRD_WS+1}, s25
    """)
    for i in range(4): a(f"buffer_load_dwordx4 {vr(Q+4*i,4)}, v{VL}, s[{SRD_WS}:{SRD_WS+3}], s{S_T} offen offset:{1024*i}")
    for i in range(2): a(f"buffer_load_dword v{VG+i}, v{VT}, s[{SRD_WS}:{SRD_WS+3}], s{S_T+2} offen offset:{128*i}")
    a(f"""
    v_and_b32 v{VT+1}, 3, v0
    v_cmp_eq_u32 vcc, 0, v{VT+1}
    v_mov_b32 v{VT+2}, 0x3f803f80
    s_mov_b32 s{S_CNT}, 7
    v_cndmask_b32 v{SEL}, 0, v{VT+2}, vcc
    v_cndmask_b32 v{SEL+1}, 0, v{VT+2}, vcc
    v_cndmask_b32 v{SEL+2}, 0, v{VT+2}, vcc
    v_cndmask_b32 v{SEL+3}, 0, v{VT+2}, vcc
    s_lshl_b32 s4, s{S_W}, 8
    s_add_u32 s4, s4, {hx(PROG+1024)}
    v_lshl_add_u32 v{VSIG}, v0, 2, s4
    v_lshlrev_b32 v{VCHK}, 8, v{VT+1}
    v_add_u32 v{VCHK}, {hx(PROG)}, v{VCHK}
    v_mov_b32 v{VONE}, 1
    s_mov_b32 s{S_NEED}, 0
    ds_write_b32 v{VSIG}, v{VONE}
    """)
    for r in list(range(P+8, P+16)) + list(range(O, O+48)) + list(range(V+8, V+16)): a(f"v_mov_b32 v{r}, 0")
    stp(a, 8)
    a("s_waitcnt lgkmcnt(0)\ns_barrier")
    stp(a, 9)
    lq = LQ(15)
    def rdK(o, t, u):
        o(f"ds_read_b128 {vr(K+(t&1)*8+u*4,4)}, v{VKV} offset:{((t >> 1) & 3)*8192 + (t & 1)*4096 + u*1024}"); lq.push(("K", t & 1))
    def rdV(o, t, s):
        o(f"ds_read_b128 {vr(V+(t&1)*8+s*4,4)}, v{VKV} offset:{((t >> 1) & 3)*8192 + (t & 1)*4096 + 2048 + s*1024}"); lq.push(("V", t & 1))
    def need(o, tags):
        if any(t in lq.q for t in tags): o(f"s_waitcnt lgkmcnt({lq.need(tags)})")
    def qk(h, par, c=False):
        return [m16(S+16*h+8*qs+4*u, K+8*par+4*u, Q+8*h+4*qs, c if c is False else c+8*h+4*qs) for (u, qs) in ((0,0),(0,1),(1,1),(1,0))]
    def pv(h, par):
        f = lambda s, qs: m16(O+16*h+8*qs+4*s, V+8*par+4*s, P+8*h+4*qs)
        g = lambda qs: m16(Ls+8*h+4*qs, SEL, P+8*h+4*qs)
        return [f(0,0), g(0), f(1,0), f(1,1), g(1), f(0,1)]
    rdK(a, 0, 0); rdK(a, 0, 1); rdK(a, 1, 0); rdK(a, 1, 1)
    a("s_waitcnt vmcnt(0)")
    need(a, [("K", 0)])
    for t in qk(0, 0): a(t)
    a("s_nop 7")
    stp(a, 4); stp(a, 5, True)
    SEQS = {
     "t1": "M e M e e M e M e e c c M e M e e M e M e c c M e M e c e e c e c c",
     "t2": "M e e M e e M e c c M e e M e c c M e e M e e M e c M e c M e e c c",
     "t3": "M e M e M e M e M e M e M e M e M e M e e e c c c e e c c e e c c c",
     "t4": "M e M e e e M e M e c c c M e M e e M e M e c c M e M e c e e e c c",
     "t5": "M e M e M e M e e e c c c M e M e M e e e c c M e M e M e e c e c c",
    }
    seqn = "t1"
    for x in abl:
        if x in SEQS: seqn = x
    slow = Asm()
    def phase(o, t, h):
        b = 1-h
        tq = t if h == 0 else t+1
        tv = t-1 if h == 0 else t
        mf = qk(b, tq & 1) + pv(b, tv & 1)
        Sa, Pa = S+16*h, P+8*h
        e = iter([f"v_exp_f32 v{Sa+i}, v{Sa+i}" for i in range(16)])
        c = iter([f"v_cvt_pk_bf16_f32 v{Pa+i}, v{Sa+2*i}, v{Sa+2*i+1}" for i in range(8)])
        first = (t % 2 == 0 and h == 0); lastp = (t % 2 == 1 and h == 1)
        m = 0
        for x in SEQS[seqn].split():
            if x == "e": o(next(e))
            elif x == "c": o(next(c))
            else:
                if m == 9 and first and not nosync: o(f"v_cmp_gt_u32 vcc, s{S_NEED}, v{VCNT}")
                o(mf[m])
                if m in (0, 4):
                    if h == 0: rdV(o, t, m >> 2)
                    else: rdK(o, t+2, m >> 2)
                if m == 3 and h == 1: need(o, [("V", t & 1)])
                if m == 9 and h == 0 and not first: need(o, [("K", (t+1) & 1)])
                if m == 7 and first: need(o, [("K", (t+1) & 1), "cnt"])
                if not nosync:
                    if m == 2 and first:
                        o(f"ds_read_b32 v{VCNT}, v{VCHK}"); lq.push("cnt")
                    if m == 9 and first:
                        lab = f"{name}_A_w{t}"
                        o(f"s_cbranch_vccnz {lab}"); o.lab(lab + "r")
                        slow(f"""
                        {lab}:
                        s_sleep 1
                        ds_read_b32 v{VCNT}, v{VCHK}
                        s_waitcnt lgkmcnt(0)
                        v_cmp_gt_u32 vcc, s{S_NEED}, v{VCNT}
                        s_nop 4
                        s_cbranch_vccnz {lab}
                        s_branch {lab}r
                        """)
                    if m == 6 and lastp:
                        o(f"ds_add_u32 v{VSIG}, v{VONE}"); lq.push("sig")
                    if m == 8 and lastp: o(f"s_add_u32 s{S_NEED}, s{S_NEED}, 1")
                    if m == 9 and lastp and t == 1: o(f"s_max_u32 s{S_NEED}, s{S_NEED}, 3")
                m += 1
        assert m == 10 and next(e, None) is None and next(c, None) is None
    tmp = Asm(); lq.q = []
    for t in range(8): phase(tmp, t, 0); phase(tmp, t, 1)
    slow.l = []
    q0 = list(lq.q)
    a.raw(".p2align 6")
    a.raw(f"{name}_A_loop:")
    for t in range(8): phase(a, t, 0); phase(a, t, 1)
    assert lq.q == q0
    if stamp:
        a(f"s_memtime s[4:5]\ns_waitcnt lgkmcnt(0)\ns_mov_b32 m0, s{S_CNT}\nv_writelane_b32 v198, s4, m0")
    a(f"s_sub_u32 s{S_CNT}, s{S_CNT}, 1\ns_cbranch_scc0 {name}_A_loop")
    stp(a, 6); stp(a, 7, True)
    a("s_nop 0")
    for t in pv(1, 1): a(t)
    a.lab(f"{name}_A_fin")
    PO = K
    a("s_waitcnt lgkmcnt(0)")
    for i in range(4):
        r = S + 2*i
        a(f"v_rcp_f32 v{r}, v{Ls+4*i}\ns_nop 0\nv_mul_f32 v{r}, v{r}, v{VG+(i&1)}")
        for j in range(4): a(f"v_pk_mul_f32 {vr(S+8+2*j,2)}, {vr(O+8*i+2*j,2)}, {vr(r,2)} op_sel_hi:[1,0]")
        for j in range(4): a(f"v_cvt_pk_bf16_f32 v{PO+4*i+j}, v{S+8+2*j}, v{S+8+2*j+1}")
        a(f"buffer_store_dwordx4 {vr(PO+4*i,4)}, v{VL}, s[{SRD_WS}:{SRD_WS+3}], s{S_T+1 if i < 2 else S_T+10} offen offset:{1024*(i&1)} sc1")
    a(f"s_cmp_eq_u32 s{S_NEED}, 0\ns_cbranch_scc1 {name}_A_sig")
    a(f"v_max3_f32 v{VT}, abs(v{O}), abs(v{O+1}), abs(v{O+2})")
    for i in range(3, 31, 2): a(f"v_max3_f32 v{VT}, v{VT}, abs(v{O+i}), abs(v{O+i+1})")
    a(f"""
    v_max_f32 v{VT}, v{VT}, abs(v{O+31})
    s_mov_b32 s4, {hx(f2u(2.0**-64))}
    s_mov_b32 s5, {hx(f2u(2.0**64))}
    s_mov_b32 s6, {hx(f2u(2.0**120))}
    v_cmp_gt_f32 s[{S_T+4}:{S_T+5}], s6, v{VT}
    """)
    for i in range(4):
        a(f"""
        v_cmp_lt_f32 s[{S_T+6}:{S_T+7}], s4, v{Ls+4*i}
        v_cmp_gt_f32 vcc, s5, v{Ls+4*i}
        s_nop 0
        s_and_b64 s[{S_T+4}:{S_T+5}], s[{S_T+4}:{S_T+5}], s[{S_T+6}:{S_T+7}]
        s_and_b64 s[{S_T+4}:{S_T+5}], s[{S_T+4}:{S_T+5}], vcc
        """)
    a(f"""
    s_cmp_eq_u64 s[{S_T+4}:{S_T+5}], -1
    {"s_branch" if "forcefb" in abl else "s_cbranch_scc0"} {name}_A_fb
    {name}_A_sig:
    """)
    a(f"""
    v_mov_b32 v{VT}, {hx(CNT_LDS)}
    s_lshl_b32 s4, s{S_MI}, 7
    s_lshl_b32 s5, s{S_NI}, 2
    s_add_u32 s4, s4, s5
    s_add_u32 s4, s4, {hx(WS_FLAG)}
    v_mov_b32 v{VT+3}, 0
    s_mov_b64 exec, 1
    s_waitcnt vmcnt(0)
    ds_add_rtn_u32 v{VT+2}, v{VT}, v{VONE}
    s_waitcnt lgkmcnt(0)
    v_readfirstlane_b32 s5, v{VT+2}
    s_nop 1
    s_cmp_lg_u32 s5, 3
    s_cbranch_scc1 {name}_fin
    buffer_store_dword v{VONE}, v{VT+3}, s[{SRD_WS}:{SRD_WS+3}], s4 offen sc1
    s_branch {name}_fin
    """)
    a.l += slow.l
    a.raw(f"{name}_A_fb:")
    a(f"s_waitcnt vmcnt(0)\ns_mov_b32 s{S_NEED}, 0")
    for i in range(4): a(f"v_mov_b32 v{MX+i}, 0xff800000")
    a(f"""
    s_mov_b32 s{S_T+3}, {hx(WS_KV)}
    s_mov_b32 s{S_CNT}, 63
    {name}_A_fb1:
    buffer_load_dwordx4 {vr(K,4)}, v{VL}, s[{SRD_WS}:{SRD_WS+3}], s{S_T+3} offen
    buffer_load_dwordx4 {vr(K+4,4)}, v{VL}, s[{SRD_WS}:{SRD_WS+3}], s{S_T+3} offen offset:1024
    s_add_u32 s{S_T+3}, s{S_T+3}, 4096
    s_waitcnt vmcnt(0)
    """)
    for h in range(2):
        for t in qk(h, 0): a(t)
    a("s_nop 7")
    for i in range(4):
        for j in range(0, 8, 2): a(f"v_max3_f32 v{MX+i}, v{MX+i}, v{S+8*i+j}, v{S+8*i+j+1}")
    a(f"s_sub_u32 s{S_CNT}, s{S_CNT}, 1\ns_cbranch_scc0 {name}_A_fb1")
    for op in ("v_permlane32_swap_b32", "v_permlane16_swap_b32"):
        for i in range(4): a(f"v_mov_b32 v{VT+i}, v{MX+i}")
        a("s_nop 1")
        for i in range(4): a(f"{op} v{VT+i}, v{MX+i}")
        a("s_nop 1")
        for i in range(4): a(f"v_max_f32 v{MX+i}, v{MX+i}, v{VT+i}")
    for i in range(16): a(f"v_sub_f32 v{CB+i}, 0, v{MX+(i>>2)}")
    for r in range(O, O+48): a(f"v_mov_b32 v{r}, 0")
    a(f"""
    s_mov_b32 s{S_T+3}, {hx(WS_KV)}
    s_mov_b32 s{S_CNT}, 63
    {name}_A_fb2:
    """)
    for i in range(2): a(f"buffer_load_dwordx4 {vr(K+4*i,4)}, v{VL}, s[{SRD_WS}:{SRD_WS+3}], s{S_T+3} offen offset:{1024*i}")
    for i in range(2): a(f"buffer_load_dwordx4 {vr(V+4*i,4)}, v{VL}, s[{SRD_WS}:{SRD_WS+3}], s{S_T+3} offen offset:{2048+1024*i}")
    a(f"s_add_u32 s{S_T+3}, s{S_T+3}, 4096\ns_waitcnt vmcnt(0)")
    for h in range(2):
        for t in qk(h, 0, CB): a(t)
    a("s_nop 7")
    for i in range(32): a(f"v_exp_f32 v{S+i}, v{S+i}")
    a("s_nop 0")
    for i in range(16): a(f"v_cvt_pk_bf16_f32 v{P+i}, v{S+2*i}, v{S+2*i+1}")
    a("s_nop 1")
    for h in range(2):
        for t in pv(h, 0): a(t)
    a(f"s_sub_u32 s{S_CNT}, s{S_CNT}, 1\ns_cbranch_scc0 {name}_A_fb2\ns_nop 7")
    a(f"s_branch {name}_A_fin")

    VA = 2
    VDW = 6
    V1G = 10
    VT = 14
    VSIG, VCHK, VONE, VCNT, VNEED = 20, 21, 22, 23, 24
    ACC = 32
    WF = 64
    H = 128
    U = 10
    VL2 = 25; V3 = 26; VFA = 27; VFV = 28
    def wf(par, e, ns): return WF + par*32 + e*16 + ns*4
    def hf(n, ts): return H + (n % HD)*8 + ts*4
    a.raw(f"{name}_G:")
    if prioG: a(f"s_setprio {prioG}")
    a(f"""
    v_lshrrev_b32 v{VT}, 3, v0
    v_bfe_u32 v{VT+1}, v0, 1, 2
    v_lshrrev_b32 v{VT+2}, 4, v0
    v_xor_b32 v{VT+1}, v{VT+1}, v{VT+2}
    v_lshlrev_b32 v{VT}, 11, v{VT}
    v_lshl_add_u32 v{VT}, v{VT+1}, 5, v{VT}
    v_and_b32 v{VT+1}, 1, v0
    v_lshl_add_u32 v{VT}, v{VT+1}, 4, v{VT}
    s_lshl_b32 s4, s{S_NI}, 7
    s_lshl_b32 s5, s{S_W}, 14
    s_add_u32 s5, s5, s4
    v_add_u32 v{VDW}, s5, v{VT}
    v_add_u32 v{VDW+1}, 0x10000, v{VDW}
    v_add_u32 v{VDW+2}, 0x20000, v{VDW}
    s_lshl_b32 s{S_HK}, s{S_MT32}, 11
    v_add_u32 v{VL2}, 0x20000, v{VL}
    s_mov_b32 s{S_WK}, 0
    s_lshl_b32 s{S_WW}, s{S_W}, 10
    s_mov_b32 s{S_WM}, s{S_WW}
    s_add_u32 s{S_WEND}, s{S_WW}, {hx(RW*4096)}
    s_lshl_b32 s4, s{S_W}, 11
    s_add_u32 s{S_KVK}, s4, {hx(WS_KV)}
    s_add_u32 s{S_KVM}, s4, {hx(KVB)}
    s_mov_b32 s{SRD_WD+2}, 0x700000
    s_mov_b32 s{SRD_WD+3}, 0x20000
    s_mov_b32 s{SRD_WO+2}, 0x200000
    s_mov_b32 s{SRD_WO+3}, 0x20000
    s_mov_b32 s{SRD_OUT+2}, 0x400000
    s_mov_b32 s{SRD_OUT+3}, 0x20000
    s_lshl_b32 s{S_T+2}, s{S_MT32}, 8
    s_add_u32 s{S_T+2}, s{S_T+2}, {hx(WS_GATE+4)}
    s_mov_b32 m0, s{S_KVM}
    s_waitcnt lgkmcnt(0)
    s_mov_b32 s{SRD_WS}, s24
    s_mov_b32 s{SRD_WS+1}, s25
    s_mov_b32 s{SRD_WD}, s26
    s_mov_b32 s{SRD_WD+1}, s27
    """)
    vq = LQ(63); lq = LQ(15); mainflag = {}; mark = {"n": 0}
    ev = {"vm": [], "lg": [], "cert": set(), "free": set(), "pc": set(), "pf": set()}
    def dKV():
        return [f"s_mov_b32 m0, s{S_KVM}", f"s_add_u32 s{S_KVM}, s{S_KVM}, 8192",
                (f"buffer_load_dwordx4 v{VL}, s[{SRD_WS}:{SRD_WS+3}], s{S_KVK} offen lds", "vm", "KV"),
                (f"buffer_load_dwordx4 v{VL}, s[{SRD_WS}:{SRD_WS+3}], s{S_KVK} offen offset:1024 lds", "vm", "KV"),
                f"s_add_u32 s{S_KVK}, s{S_KVK}, 8192", f"s_and_b32 s{S_KVM}, s{S_KVM}, {hx(KVB | 0x7fff)}"]
    def dW3(u0):
        ld = lambda i: (f"buffer_load_dwordx4 v{VDW+i}, s[{SRD_WD}:{SRD_WD+3}], s{S_WK} offen lds", "vm", "W", u0+i)
        return [f"s_mov_b32 m0, s{S_WM}", "NOP", ld(0), f"s_add_u32 m0, s{S_WM}, 4096", "NOP", ld(1), f"s_add_u32 m0, s{S_WM}, 8192",
                f"s_add_u32 s{S_WM}, s{S_WM}, 12288", ld(2), f"s_add_u32 s{S_WK}, s{S_WK}, {hx(3*65536)}",
                f"s_cmp_eq_u32 s{S_WM}, s{S_WEND}", f"s_cselect_b32 s{S_WM}, s{S_WW}, s{S_WM}"]
    def dW1(n):
        wo = n >= 112; k = n - 112 if wo else n
        srd = SRD_WO if wo else SRD_WD
        r = [f"s_add_u32 m0, s{S_WW}, {hx((n % RW)*4096)}", f"s_mov_b32 s{S_WK}, {hx(k*65536)}",
             (f"buffer_load_dwordx4 v{VDW}, s[{srd}:{srd+3}], s{S_WK} offen lds", "vm", "W", n)]
        return r
    def ldH(n, ts, ofrag):
        return (f"buffer_load_dwordx4 {vr(hf(n,ts),4)}, v{VL2 if n & 1 else VL}, s[{SRD_WS}:{SRD_WS+3}], s{S_HK} offen offset:{ts*1024}" + (" sc1" if ofrag else ""), "vm", ("H", n % HD, ts))
    HADD = f"s_add_u32 s{S_HK}, s{S_HK}, 0x40000"
    def rdW(p, ns, j):
        r = wf((p >> 1) & 1, p & 1, ns) + 2*j
        return (f"ds_read_b64_tr_b16 {vr(r,2)}, v{VA+ns} offset:{(p % U)*4096 + j*2048}", "lg", ("W", (p >> 1) & 1, p & 1, ns), p)
    def emit(o, t):
        if t == "NOP": t = "s_nop 0"
        if isinstance(t, tuple) and t[1] == "vm" and mainflag.get("on"):
            if ("noH" in abl or "noO" in abl and "sc1" in t[0]) and t[2][0] == "H": return
            if "noW" in abl and t[2] == "W": return
        if isinstance(t, tuple):
            o(t[0]); (vq if t[1] == "vm" else lq).push(t[2])
            if t[1] == "vm": mark["n"] += 1; ev["vm"].append(t[3] if len(t) > 3 else None)
            else: ev["lg"].append(t[3] if len(t) > 3 else None)
            if len(t) > 3:
                n = t[3]
                if t[1] == "vm":
                    if n >= RW: assert n - RW in ev["free"], ("W ring overwritten early", n)
                else: assert n in ev["cert"], ("W unit read before certified", n)
        else: o(t)
    for t in dKV()[1:] + dKV(): emit(a, t)
    nfirst = len(vq.q)
    for t in dW3(0): emit(a, t)
    for n in range(2):
        for ts in range(2): emit(a, ldH(n, ts, False))
    a(HADD)
    a(f"""
    s_mov_b32 s{SRD_WO}, s28
    s_mov_b32 s{SRD_WO+1}, s29
    s_mov_b32 s{SRD_OUT}, s30
    s_mov_b32 s{SRD_OUT+1}, s31
    v_lshrrev_b32 v{VT}, 2, v0
    v_bfe_u32 v{VT+1}, v0, 3, 2
    v_lshlrev_b32 v{VT}, 7, v{VT}
    v_lshl_add_u32 v{VT}, v{VT+1}, 5, v{VT}
    v_and_b32 v{VT+1}, 3, v0
    v_lshl_add_u32 v{VA}, v{VT+1}, 3, v{VT}
    v_xor_b32 v{VA+1}, 32, v{VA}
    v_xor_b32 v{VA+2}, 64, v{VA}
    v_xor_b32 v{VA+3}, 0x60, v{VA}
    v_mov_b32 v{VT}, {hx(CNT_LDS)}
    v_mov_b32 v{VT+1}, 0
    ds_write_b32 v{VT}, v{VT+1}
    s_lshl_b32 s4, s{S_W}, 8
    s_add_u32 s4, s4, {hx(PROG)}
    v_lshl_add_u32 v{VSIG}, v0, 2, s4
    ds_write_b32 v{VSIG}, v{VT+1}
    v_and_b32 v{VCHK}, 7, v0
    v_lshlrev_b32 v{VCHK}, 8, v{VCHK}
    v_add_u32 v{VCHK}, {hx(PROG)}, v{VCHK}
    v_mov_b32 v{VONE}, 1
    v_bfe_u32 v{VNEED}, v0, 2, 1
    v_sub_u32 v{VNEED}, 0, v{VNEED}
    v_and_b32 v{VT+3}, 15, v0
    v_lshlrev_b32 v{VT+3}, 3, v{VT+3}
    s_mov_b32 s{S_RD}, 0
    v_mov_b32 v{V3}, 3
    s_lshl_b32 s4, s{S_MI}, 7
    s_add_u32 s4, s4, {hx(WS_FLAG)}
    v_and_b32 v{VFA}, 15, v0
    v_lshl_add_u32 v{VFA}, v{VFA}, 2, s4
    s_mov_b32 s{S_CU}, {hx(U*4096)}
    """)
    stp(a, 8)
    n = len(vq.q) - nfirst; vq.q = vq.q[nfirst:]
    a(f"s_waitcnt vmcnt({n}) lgkmcnt(0)\ns_barrier")
    stp(a, 9)
    for t in dW3(3): emit(a, t)
    mark["n"] = 0
    for n in range(2, 4):
        for ts in range(2): emit(a, ldH(n, ts, False))
    a(HADD)
    for i in range(32): a(f"v_mov_b32 v{ACC+i}, 0")
    gslow = Asm(); sites = [0]
    def sync_signal(o, big=False, strict=False):
        n = min(mark["n"], len(vq.q))
        if big: n = min(n, len(vq.q) - 1 - max(i for i, t in enumerate(vq.q) if t == "KV"))
        if strict and "W" in vq.q: n = min(n, len(vq.q) - 1 - max(i for i, t in enumerate(vq.q) if t == "W"))
        vq.q = vq.q[len(vq.q)-n:]
        o(f"s_waitcnt vmcnt({n})")
        mark["n"] = 0
        ev["pc"] = set(ev["vm"][:len(ev["vm"])-len(vq.q)])
        done = ev["lg"][:len(ev["lg"])-len(lq.q)]
        ev["pf"] = {u for u in set(done) if u is not None and done.count(u) == 8}
        if nosync: return
        emit(o, (f"ds_add_u32 v{VSIG}, v{V3 if big else VONE}", "lg", "sig"))
        o(f"v_add_u32 v{VNEED}, {3 if big else 1}, v{VNEED}")
        if big:
            o(f"v_and_b32 v{VCHK}, {hx(~0x400)}, v{VCHK}")
            if GP2: o(f"s_setprio {GP2}")
    CNTRD = (f"ds_read_b32 v{VCNT}, v{VCHK}", "lg", "cnt")
    def sync_check(o):
        ev["cert"] |= ev["pc"]; ev["free"] |= ev["pf"]
        if nosync: return
        if "cnt" in lq.q: o(f"s_waitcnt lgkmcnt({lq.need(['cnt'])})")
        lab = f"{name}_G_w{sites[0]}"; sites[0] += 1
        o(f"v_cmp_gt_i32 vcc, v{VNEED}, v{VCNT}\ns_nop 0\ns_cbranch_vccnz {lab}"); o.lab(lab + "r")
        gslow(f"""
        {lab}:
        s_sleep 1
        ds_read_b32 v{VCNT}, v{VCHK}
        s_waitcnt lgkmcnt(0)
        v_cmp_gt_i32 vcc, v{VNEED}, v{VCNT}
        s_nop 4
        s_cbranch_vccnz {lab}
        s_branch {lab}r
        """)
    sync_signal(a)
    if not nosync: emit(a, CNTRD)
    for t in dKV() + dW3(6): emit(a, t)
    sync_check(a)
    NSO = (0, 1, 2, 3)
    for ns in NSO:
        for e in range(2):
            for j in range(2): emit(a, rdW(e, ns, j))
    for ts in range(2):
        emit(a, (f"buffer_load_dword v{V1G+2*ts}, v{VT+3}, s[{SRD_WS}:{SRD_WS+3}], s{S_T+2} offen offset:{128*ts}", "vm", "g"))
    stp(a, 4); stp(a, 5, True)

    def block(o, n0, par0, nun=U, syncs=(0, 20, 40, 60), extra=None, loads=None, scale_after=None, pre=None, big=None, strict=None, early=None):
        extra = extra or {}; pre = pre or {}
        loads = loads or (lambda n, ts: ldH(n+HD, ts, False))
        fill = {}
        def put(m, t): fill.setdefault(m, []).append(t)
        for pp in range(nun//2):
            p = 2*pp; n = n0 + p; m0 = 16*pp
            if p == U-2:
                put(m0-2, f"s_cmp_eq_u32 s{S_RD}, {hx((RW-U)*4096)}"); put(m0-2, f"s_cselect_b32 s{S_T+1}, {hx(-(RW-U)*4096)}, s{S_CU}")
                put(m0-1, "ADV"); put(m0, f"s_add_u32 s{S_RD}, s{S_RD}, s{S_T+1}")
            if n + 2 < 144:
                i = 0
                for ns in NSO:
                    for e in range(2):
                        for j in range(2):
                            r = rdW(p+2+e + (2*U if False else 0), ns, j)
                            par = (par0 + pp + 1) & 1
                            reg = wf(par, e, ns) + 2*j
                            put(m0 + i, (f"ds_read_b64_tr_b16 {vr(reg,2)}, v{VA+ns} offset:{((p+2+e) % U)*4096 + j*2048}", "lg", ("W", par, e, ns), n+2+e))
                            i += 1
            if early and pp in early:
                q = early[pp]
                for i, (e, ts) in enumerate(((0,0),(1,0),(0,1),(1,1))): put(m0 + 1 + i, ldH(q+e, ts, False))
                put(m0 + 4, HADD)
            any_l = False
            for ts in range(2):
                for e in range(2):
                    l = loads(n+e, ts)
                    if l: put(m0 + (8+e if ts == 0 else 15), l); any_l = True
            if any_l: put(m0 + 15, HADD)
        for s_ in syncs:
            if not nosync: put(s_ + 4, CNTRD)
            put(s_ + 7, "CHECK")
        for m, l in extra.items():
            k = m
            for t in l:
                if t == "NOP": k += 1; continue
                put(k, t)
                if isinstance(t, tuple): k += 1
        for pp in range(nun//2):
            p = 2*pp; n = n0 + p; par = (par0 + pp) & 1
            if n in pre: pre[n](o)
            i = 0
            for ts in range(2):
                for c in range(4):
                    ns = c if ts == 0 else 3-c
                    for e0 in range(2):
                        e = e0 if c % 2 == 0 else 1-e0
                        m = 16*pp + i
                        if m in syncs: sync_signal(o, big == m, strict == m)
                        w = []
                        tg = [("H", (n+e) % HD, ts)]
                        if any(t in vq.q for t in tg): w.append(f"vmcnt({vq.need(tg)})")
                        tg = [("W", par, 0, ns), ("W", par, 1, ns)]
                        if any(t in lq.q for t in tg): w.append(f"lgkmcnt({lq.need(tg)})")
                        if w: o("s_waitcnt " + " ".join(w))
                        if not ("noGM" in abl and mainflag.get("on")):
                            o(m16(ACC + 16*ts + 4*ns, wf(par, e, ns), hf(n+e, ts)))
                        for x in fill.get(m, []):
                            if x == "CHECK": sync_check(o)
                            elif x == "ADV":
                                for k in range(4): o(f"v_add_u32 v{VA+k}, s{S_T+1}, v{VA+k}")
                            else: emit(o, x)
                        i += 1
            if scale_after == n+1:
                if "g" in vq.q: o(f"s_waitcnt vmcnt({vq.need(['g'])})")
                o("s_nop 7")
                for i in range(16): o(f"v_pk_mul_f32 {vr(ACC+2*i,2)}, {vr(ACC+2*i,2)}, {vr(V1G+2*(i>>3),2)} op_sel_hi:[1,0]")
                o("s_nop 1")
    mainx = lambda b: {s_+8: dKV() + dW3(9 + 12*b + 3*i) for i, s_ in enumerate((0, 20, 40, 60))}
    mainflag['on'] = True
    first = {0: 6, 1: 10, 2: 14}
    block(a, 0, 0, extra=mainx(0), early={0: 4, 1: 8, 2: 12},
          loads=lambda n, ts: ldH(first[n//2] + (n & 1), ts, False) if n < 6 else ldH(n+HD, ts, False))
    keep = list(gslow.l); st0 = (list(vq.q), list(lq.q), mark["n"])
    b0 = Asm()
    for b in range(1, 5): block(b0, 10*b, b & 1, extra=mainx(b))
    gslow.l = keep
    sq = (list(vq.q), list(lq.q), mark["n"])
    assert sq[1:] == st0[1:] and len(st0[0]) >= len(sq[0]) and st0[0][len(st0[0])-len(sq[0]):] == sq[0], (st0, sq)
    b1 = Asm(); block(b1, 50, 1, extra=mainx(5)); block(b1, 60, 0, extra=mainx(6))
    assert (list(vq.q), list(lq.q), mark["n"]) == sq
    a(f"s_mov_b32 s{S_CNT}, 2")
    a.raw(".p2align 6")
    a.raw(f"{name}_G_loop:")
    a.l += b1.l
    a(f"s_sub_u32 s{S_CNT}, s{S_CNT}, 1\ns_cbranch_scc0 {name}_G_loop")
    block(a, 70, 1, syncs=(0, 20, 48), big=20, extra={8: dKV() + dW3(93), 28: dW3(96) + dW3(99), 56: dW3(102)})
    mainflag['on'] = False
    stp(a, 6); stp(a, 7, True)
    FLD = (f"buffer_load_dword v{VFV}, v{VFA}, s[{SRD_WS}:{SRD_WS+3}], 0 offen sc1", "vm", "flag")
    def flagwait(o):
        stp(o, 10)
        if "flag" in vq.q: o(f"s_waitcnt vmcnt({vq.need(['flag'])})")
        o(f"""
        v_cmp_ne_u32 vcc, 0, v{VFV}
        s_lshl_b32 s{S_HK}, s{S_MT32}, 11
        s_add_u32 s{S_HK}, s{S_HK}, {hx(WS_O)}
        s_cmp_eq_u64 vcc, -1
        s_cbranch_scc0 {name}_G_poll
        {name}_G_go:
        """)
        gslow(f"""
        {name}_G_poll:
        s_mov_b32 s5, 0x400000
        {name}_G_poll1:
        buffer_load_dword v{VFV}, v{VFA}, s[{SRD_WS}:{SRD_WS+3}], 0 offen sc1
        s_waitcnt vmcnt(0)
        v_cmp_ne_u32 vcc, 0, v{VFV}
        s_sub_u32 s5, s5, 1
        s_cbranch_scc1 {name}_G_go
        s_cmp_eq_u64 vcc, -1
        s_cbranch_scc1 {name}_G_go
        s_sleep 1
        s_branch {name}_G_poll1
        """)
        stp(o, 11)
        for m in range(112, FLAGU + HD):
            for ts in range(2): emit(o, ldH(m, ts, True))
            if m & 1: o(HADD)
    def tl(n, ts):
        m = n + HD
        if m < 112: return ldH(m, ts, False)
        if n < FLAGU or m > 143: return None
        return ldH(m, ts, True)
    nxt = [105]
    def wd(k):
        r = []
        for _ in range(k):
            if nxt[0] > 143: break
            r += dW1(nxt[0]) + ["NOP"]*4; nxt[0] += 1
        return r
    pre = {FLAGU: flagwait}
    if GP2: pre[GPU_] = lambda o: o(f"s_setprio {prioG}")
    for i, n0 in enumerate(range(80, 144, 10)):
        if stamp: a(f"s_memtime s[4:5]\ns_waitcnt lgkmcnt(0)\nv_writelane_b32 v210, s4, {i}")
        ex = {8: wd(5), 48: wd(5)}
        if n0 <= FLAGU-4 < n0+10: ex[8*(FLAGU-4-n0) + 2] = [FLD]
        sy = (0, 40) if n0 < 120 else ((16,) if n0 == 120 else ())
        block(a, n0, i & 1, nun=min(U, 144-n0), syncs=sy, strict=(16 if n0 == 120 else None), extra=ex, loads=tl, scale_after=111, pre=pre)
    stp(a, 12)
    a(f"""
    v_and_b32 v{VT}, 15, v0
    v_lshlrev_b32 v{VT}, 11, v{VT}
    v_bfe_u32 v{VT+1}, v0, 4, 1
    v_lshl_add_u32 v{VT}, v{VT+1}, 5, v{VT}
    v_lshrrev_b32 v{VT+1}, 5, v0
    v_lshl_add_u32 v{VT}, v{VT+1}, 4, v{VT}
    v_add_u32 v{VT+1}, 0x8000, v{VT}
    s_lshl_b32 s4, s{S_MT32}, 16
    s_lshl_b32 s5, s{S_NI}, 7
    s_add_u32 s4, s4, s5
    """)
    for ts in (1, 0):
        for p in (1, 0):
            r = WF + (ts*2+p)*4
            for i in range(4): a(f"v_cvt_pk_bf16_f32 v{r+i}, v{ACC+16*ts+8*p+2*i}, v{ACC+16*ts+8*p+2*i+1}")
            a("s_nop 1")
            a(f"v_permlane16_swap_b32 v{r}, v{r+2}\nv_permlane16_swap_b32 v{r+1}, v{r+3}")
            a(f"buffer_store_dwordx4 {vr(r,4)}, v{VT+ts}, s[{SRD_OUT}:{SRD_OUT+3}], s4 offen offset:{64*p}" + (" sc1" if "osc1" in abl else "") + (" nt" if "ont" in abl else ""))
    a(f"s_branch {name}_fin")
    a.l += gslow.l
    a.raw(f"{name}_fin:")
    if stamp:
        T = 220
        a("s_waitcnt vmcnt(0)")
        stp(a, 13); stp(a, 14, True)
        a(f"""
        s_lshl_b32 s4, s2, 3
        s_add_u32 s4, s4, s{S_WAVE}
        s_lshl_b32 s4, s4, 6
        s_add_u32 s4, s4, {hx(0x1E80000)}
        s_mov_b64 exec, -1
        v_mov_b32 v219, 0
        """)
        for i, (r, rel) in enumerate([(4,1),(6,1),(13,1),(2,0),(14,0),(0,0),(5,0),(7,0),(8,1),(9,1),(10,1),(11,1),(12,1)]):
            if rel: a(f"s_sub_u32 s{ST+r}, s{ST+r}, s{ST}")
            a(f"v_mov_b32 v{T+i}, s{ST+r}")
        a(f"v_lshlrev_b32 v218, 2, v0\ns_add_u32 s5, s4, 0x40000\ns_mov_b64 exec, 0xffff\ns_cmp_ge_u32 s{S_WAVE}, 4\ns_cselect_b64 vcc, -1, 0\nv_cndmask_b32 v198, v198, v210, vcc\nbuffer_store_dword v198, v218, s[{SRD_WS}:{SRD_WS+3}], s5 offen")
        a("s_mov_b64 exec, 1")
        for i in range(4):
            a(f"buffer_store_dwordx4 v[{T+4*i}:{T+4*i+3}], v219, s[{SRD_WS}:{SRD_WS+3}], s4 offen offset:{16*i}")
    a.raw(f"{name}_end:")
    a("s_endpgm")
    return a.text()
```

```python
from common import *

XSZ = 32768
WB = 98304; WSZ = 32768
KVB = 65536; KVSZ = 8192
K1_LDS = 163840

V_X0, V_X1, V_W0, V_W1, V_KV = 1, 2, 3, 4, 5
V_DX = 6
V_DW = 8
V_DKV = 12
V_P, V_PD, V_GA, V_GO, V_GX, V_GW, V_GZ = 6, 7, 8, 9, 10, 11, 12
V_GT = 14
V_ST, V_ST2 = 14, 15
KVW = 16
KVA = 24
WF = 32
XF = 96
ACC = 128
def acc(u, s): return ACC + (u*4+s)*4
def wf(st, s, kh): return WF + st*32 + s*8 + kh*4
def xf(u, kh): return XF + (u & 3)*8 + kh*4

S_WAVE = 3
SRD_X, SRD_W0, SRD_W1, SRD_K, SRD_V, SRD_WS, SRD_G, SRD_P = 8, 12, 16, 20, 24, 44, 48, 52
S_MT, S_NT, S_Q, S_WM, S_WN = 56, 57, 58, 59, 60
S_XA = 61
S_WK, S_KVK, S_WSTEP = 65, 66, 67
S_XT, S_XT1, S_XT2 = 68, 69, 70
S_WT, S_KVT = 71, 72
S_D, S_D2, S_CNT, S_C32 = 73, 74, 75, 76
S_PK, S_PSTEP, S_GK, S_MSK = 77, 78, 79, 80
S_ROT = 81
S_E0, S_E1, S_E2, S_E3 = 82, 83, 84, 85
ST = 86

def gen_k1(name="k1_kernel", stamp=False, abl=(), merged=False):
    PD = 1
    for x in abl:
        if x.startswith("pd"): PD = int(x[2:])
    pf = "nopf" not in abl
    NUPF = 10; NUPQ = 14; NPK = 3
    for x in abl:
        if x.startswith("npk"): NPK = int(x[3:])
        if x.startswith("upf"): NUPF = int(x[3:])
        if x.startswith("upq"): NUPQ = int(x[3:])
    uniq = "uniq" in abl
    SCM = " sc1" if merged else ""
    SC = SCM if merged else (" sc0" if "ssc0" in abl else "") + (" sc1" if "ssc1" in abl else "") + (" nt" if "snt" in abl else "")
    a = Asm()
    def stp(o, i, real=False):
        if stamp:
            o(f"{'s_memrealtime' if real else 's_memtime'} s[4:5]\ns_waitcnt lgkmcnt(0)\ns_mov_b32 s{ST+i}, s4")
    T = 96
    END = "k2_kernel_end" if merged else f"{name}_end"
    a.raw(f".globl {name}\n.p2align 8\n.type {name},@function\n{name}:")
    if stamp: a(f"s_memtime s[{ST}:{ST+1}]\ns_memrealtime s[{ST+2}:{ST+3}]")
    a(f"""
    s_load_dwordx4 s[28:31], s[0:1], 0
    s_load_dwordx4 s[36:39], s[0:1], 48
    s_load_dwordx4 s[32:35], s[0:1], 16
    s_load_dwordx2 s[40:41], s[0:1], 72
    s_load_dwordx2 s[42:43], s[0:1], 96
    """)
    CW = 8
    for x in abl:
        if x.startswith("cw"): CW = int(x[2:])
    if "nocpf" not in abl:
        a(f"""
        s_cmp_ge_u32 s2, {CW}
        s_cbranch_scc1 {name}_nocpf
        s_getpc_b64 s[4:5]
        {name}_pc:
        s_sub_u32 s4, s4, {name}_pc-{name}
        s_subb_u32 s5, s5, 0
        v_lshlrev_b32 v2, 7, v0
        v_min_u32 v3, k2_kernel_end-{name}, v2
        global_load_dword v255, v3, s[4:5]
        v_add_u32 v2, 0x10000, v2
        v_min_u32 v3, k2_kernel_end-{name}, v2
        global_load_dword v255, v3, s[4:5]
        {name}_nocpf:
        """)
    a(f"""
    s_cmp_ge_u32 s2, 256
    s_cbranch_scc1 {END}
    v_lshrrev_b32 v1, 6, v0
    v_and_b32 v0, 63, v0
    v_readfirstlane_b32 s{S_WAVE}, v1
    s_and_b32 s4, s2, 7
    s_lshr_b32 s5, s2, 3
    s_and_b32 s6, s4, 1
    s_lshl_b32 s6, s6, 2
    s_and_b32 s7, s5, 3
    s_add_u32 s{S_MT}, s6, s7
    s_lshr_b32 s4, s4, 1
    s_lshr_b32 s5, s5, 2
    """)
    if "qpack" in abl:
        a(f"s_lshl_b32 s4, s4, 3\ns_add_u32 s{S_NT}, s4, s5")
    else:
        a(f"""
        s_add_u32 s6, s4, 28
        s_mul_i32 s4, s4, 7
        s_add_u32 s4, s4, s5
        s_cmp_eq_u32 s5, 7
        s_cselect_b32 s{S_NT}, s6, s4
        """)
    a(f"""
    s_lshr_b32 s{S_WM}, s{S_WAVE}, 2
    s_and_b32 s{S_WN}, s{S_WAVE}, 3
    s_sub_u32 s{S_Q}, s{S_NT}, 28
    s_cselect_b32 s{S_Q}, 0, s{S_Q}
    s_cselect_b32 s4, 7168, 0
    s_cselect_b32 s5, 0, 2048
    s_add_u32 s4, s4, s5
    s_lshl_b32 s5, s{S_NT}, 8
    s_lshl_b32 s6, s{S_Q}, 9
    s_cmp_ge_u32 s{S_NT}, 28
    s_cselect_b32 s5, s6, s5
    s_lshl_b32 s{S_WSTEP}, s4, 6
    s_mov_b32 s{SRD_X+2}, 0x400000
    s_mov_b32 s{SRD_X+3}, 0x20000
    s_mov_b32 s{SRD_W0+3}, 0x20000
    s_mov_b32 s{SRD_W1+3}, 0x20000
    s_mov_b32 s{SRD_WS+2}, {hx(WS_SIZE)}
    s_mov_b32 s{SRD_WS+3}, 0x20000
    s_mov_b32 s{S_C32}, {hx(XSZ)}
    s_cmp_lt_u32 s{S_WAVE}, 4
    s_cbranch_scc1 {name}_cpro
    """)
    def srd_w(o):
        o(f"""
        s_add_u32 s6, s30, 256
        s_addc_u32 s7, s31, 0
        s_cmp_ge_u32 s{S_NT}, 28
        s_cselect_b32 s{SRD_W0}, s30, s36
        s_cselect_b32 s{SRD_W0+1}, s31, s37
        s_cselect_b32 s{SRD_W1}, s6, s38
        s_cselect_b32 s{SRD_W1+1}, s7, s39
        s_mov_b32 s6, 0x700000
        s_cselect_b32 s{SRD_W0+2}, 0x200000, s6
        s_cselect_b32 s{SRD_W1+2}, 0x1fff00, s6
        s_mov_b32 s{SRD_X}, s28
        s_mov_b32 s{SRD_X+1}, s29
        """)
    def lds_addrs(o):
        o(f"""
        v_and_b32 v{T}, 15, v0
        v_lshrrev_b32 v{T+1}, 4, v0
        s_lshl_b32 s6, s{S_WM}, 14
        v_lshlrev_b32 v{T+2}, 7, v{T}
        v_add_u32 v{T+2}, s6, v{T+2}
        v_lshrrev_b32 v{T+3}, 1, v{T}
        v_xor_b32 v{T+3}, v{T+3}, v{T+1}
        v_lshl_add_u32 v{V_X0}, v{T+3}, 4, v{T+2}
        v_xor_b32 v{V_X1}, 64, v{V_X0}
        v_bfe_u32 v{T+2}, v0, 2, 2
        v_and_b32 v{T+3}, 3, v0
        v_lshl_add_u32 v{T+4}, v{T+1}, 3, v{T+2}
        v_and_b32 v{T+5}, 1, v{T+1}
        v_lshl_or_b32 v{T+6}, v{T+5}, 2, v{T+2}
        s_lshl_b32 s6, s{S_WN}, 1
        v_xor_b32 v{T+6}, s6, v{T+6}
        v_lshlrev_b32 v{T+6}, 5, v{T+6}
        v_lshl_add_u32 v{T+6}, v{T+4}, 8, v{T+6}
        v_lshl_add_u32 v{T+6}, v{T+3}, 3, v{T+6}
        v_add_u32 v{V_W0}, {hx(WB)}, v{T+6}
        v_xor_b32 v{V_W1}, 32, v{V_W0}
        s_and_b32 s6, s{S_WN}, 1
        v_xor_b32 v{T+5}, s6, v{T+5}
        v_lshlrev_b32 v{T+5}, 5, v{T+5}
        v_lshl_add_u32 v{T+5}, v{T+4}, 6, v{T+5}
        v_lshl_add_u32 v{T+5}, v{T+3}, 3, v{T+5}
        s_lshr_b32 s6, s{S_WN}, 1
        s_lshl_b32 s6, s6, 12
        s_add_u32 s6, s6, {hx(KVB)}
        v_add_u32 v{V_KV}, s6, v{T+5}
        s_mov_b32 s{SRD_WS}, s42
        s_mov_b32 s{SRD_WS+1}, s43
        s_mov_b32 s{S_XT1}, {hx(XSZ)}
        s_mov_b32 s{S_XT2}, {hx(2*XSZ)}
        """)
    def flag_addrs(o, v, t, with_o):
        o(f"""
        s_lshl_b32 s4, s{S_MT}, 2
        s_add_u32 s4, s4, s{S_Q}
        s_lshl_b32 s4, s4, 2
        s_add_u32 s4, s4, {hx(WS_FQ - 256)}
        v_lshl_add_u32 v{t}, v0, 7, s4
        s_cmp_ge_u32 s{S_NT}, 28
        s_cselect_b32 s5, 10, 2
        v_mov_b32 v{v}, 0x7fffff00
        v_cmp_gt_u32 vcc, s5, v0
        s_lshl_b32 s4, s{S_MT}, 5
        s_add_u32 s4, s4, s{S_NT}
        v_cndmask_b32 v{v}, v{v}, v{t}, vcc
        s_lshl_b32 s4, s4, 2
        s_add_u32 s4, s4, {hx(WS_F1)}
        v_writelane_b32 v{v}, s4, 1
        """)
        if with_o:
            o(f"""
            s_and_b32 s4, s2, 7
            s_lshr_b32 s5, s2, 3
            s_lshr_b32 s6, s4, 1
            s_lshl_b32 s6, s6, 2
            s_and_b32 s7, s5, 3
            s_add_u32 s6, s6, s7
            s_and_b32 s4, s4, 1
            s_lshl_b32 s4, s4, 3
            s_lshr_b32 s5, s5, 2
            s_add_u32 s4, s4, s5
            s_lshl_b32 s6, s6, 5
            s_add_u32 s4, s4, s6
            s_lshl_b32 s4, s4, 2
            s_add_u32 s4, s4, {hx(WS_FLAG)}
            """)
        else: o("s_mov_b32 s4, 0x7fffff00")
        o(f"v_writelane_b32 v{v}, s4, 0")
    def dispatch(o, h):
        o(f"""
        s_cmp_lt_u32 s{S_NT}, 28
        s_cbranch_scc1 {name}_F{h}
        s_cmp_lt_u32 s{S_WN}, 2
        s_cbranch_scc1 {name}_K{h}
        s_branch {name}_V{h}
        """)
    a(f"""
    v_lshrrev_b32 v{T}, 3, v0
    v_lshrrev_b32 v{T+1}, 4, v0
    v_and_b32 v{T+2}, 7, v0
    v_lshlrev_b32 v{T}, 11, v{T}
    v_xor_b32 v{T+2}, v{T+1}, v{T+2}
    v_lshl_add_u32 v{V_DX}, v{T+2}, 4, v{T}
    v_xor_b32 v{V_DX+1}, 64, v{V_DX}
    v_add_u32 v{V_DX+1}, 0x4000, v{V_DX+1}
    s_lshl_b32 s6, s{S_WN}, 4
    v_add_u32 v{T+3}, s6, v{T+1}
    v_mul_lo_u32 v{T+3}, v{T+3}, s4
    v_bfe_u32 v{T+2}, v0, 1, 3
    v_xor_b32 v{T}, v{T+1}, v{T+2}
    v_lshlrev_b32 v{T}, 5, v{T}
    v_and_b32 v{T+2}, 1, v0
    v_lshl_add_u32 v{T}, v{T+2}, 4, v{T}
    v_add3_u32 v{V_DW}, v{T}, v{T+3}, s5
    s_lshl_b32 s6, s4, 2
    v_add_u32 v{V_DW+1}, s6, v{V_DW}
    v_xor_b32 v{T}, 0x80, v{T}
    v_add3_u32 v{V_DW+2}, v{T}, v{T+3}, s5
    s_lshl_b32 s7, s4, 3
    v_add_u32 v{V_DW+2}, s7, v{V_DW+2}
    v_add_u32 v{V_DW+3}, s6, v{V_DW+2}
    s_lshl_b32 s6, s{S_WN}, 1
    s_and_b32 s7, s6, 2
    s_add_u32 s7, s7, s{S_Q}
    s_and_b32 s6, s6, 4
    s_lshl_b32 s4, s{S_MT}, 3
    s_add_u32 s6, s6, s4
    s_and_b32 s4, s7, 3
    s_add_u32 s4, s4, s6
    s_lshl_b32 s{S_XA}, s4, 16
    s_add_u32 s7, s7, 1
    s_and_b32 s4, s7, 3
    s_add_u32 s4, s4, s6
    s_lshl_b32 s{S_XA+2}, s4, 16
    s_add_u32 s{S_XA+1}, s{S_XA}, 0x8000
    s_add_u32 s{S_XA+3}, s{S_XA+2}, 0x8000
    s_lshl_b32 s{S_XT}, s{S_WN}, 13
    s_lshl_b32 s{S_WT}, s{S_WN}, 12
    s_add_u32 s{S_WT}, s{S_WT}, {hx(WB)}
    s_lshl_b32 s{S_KVT}, s{S_WN}, 10
    s_add_u32 s{S_KVT}, s{S_KVT}, {hx(KVB)}
    s_mov_b32 s{S_WK}, 0
    s_mov_b32 s{S_KVK}, 0
    v_lshrrev_b32 v{T}, 2, v0
    s_lshl_b32 s6, s{S_WN}, 4
    v_add_u32 v{T}, s6, v{T}
    v_lshlrev_b32 v{T}, 6, v{T}
    v_lshrrev_b32 v{T+1}, 5, v0
    v_lshlrev_b32 v{T+1}, 1, v{T+1}
    v_and_b32 v{T+2}, 3, v0
    v_xor_b32 v{T+1}, v{T+1}, v{T+2}
    v_lshl_add_u32 v{V_DKV}, v{T+1}, 4, v{T}
    s_mov_b32 s{SRD_K+2}, 0x10000
    s_mov_b32 s{SRD_K+3}, 0x20000
    s_mov_b32 s{SRD_V+2}, 0x10000
    s_mov_b32 s{SRD_V+3}, 0x20000
    s_waitcnt lgkmcnt(0)
    """)
    stp(a, 8)
    srd_w(a)
    a(f"""
    s_mov_b32 s{SRD_K}, s32
    s_mov_b32 s{SRD_K+1}, s33
    s_mov_b32 s{SRD_V}, s34
    s_mov_b32 s{SRD_V+1}, s35
    """)
    def dma(vo, srd, so, mb, mo, post=()):
        return [f"s_add_u32 m0, s{mb}, {hx(mo)}" if mo else f"s_mov_b32 m0, s{mb}",
                f"buffer_load_dwordx4 v{vo}, s[{srd}:{srd+3}], s{so} offen lds"] + list(post)
    def dWl(slot):
        r = []
        for i in range(4):
            r.append(dma(V_DW+i, SRD_W0, S_WK, S_WT, slot*WSZ + i*1024))
            r.append(dma(V_DW+i, SRD_W1, S_WK, S_WT, slot*WSZ + 16384 + i*1024))
        r[-1] += [f"s_add_u32 s{S_WK}, s{S_WK}, s{S_WSTEP}"]
        return r
    def dXl(off):
        return [dma(V_DX+(i & 1), SRD_X, S_XA+(i >> 1), S_XT, off + i*1024,
                    post=([f"s_add_u32 s{S_XA+(i>>1)}, s{S_XA+(i>>1)}, 128"] if i & 1 else [])) for i in range(8)]
    def dKVl(slot):
        return [dma(V_DKV, SRD_K, S_KVK, S_KVT, slot*KVSZ),
                dma(V_DKV, SRD_V, S_KVK, S_KVT, slot*KVSZ+4096, post=[f"s_add_u32 s{S_KVK}, s{S_KVK}, 4096"])]
    def burst(o, l):
        for g in l:
            o(g[0]); o("s_nop 0")
            for t in g[1:]: o(t)
    def dW(o, slot): burst(o, dWl(slot))
    def dX(o, off): burst(o, dXl(off))
    def dKV(o, slot): burst(o, dKVl(slot))
    dW(a, 0); dX(a, 0)
    stp(a, 9)
    if stamp: a(f"s_mov_b32 s{ST+15}, 0")
    lds_addrs(a)
    dispatch(a, "L")
    a.raw(f"{name}_cpro:")
    if "noprio" not in abl: a("s_setprio 1")
    a(f"""
    s_mov_b32 s{SRD_G+2}, 0x800
    s_mov_b32 s{SRD_G+3}, 0x20000
    s_lshl_b32 s4, s{S_NT}, 2
    s_add_u32 s4, s4, s{S_WN}
    s_lshl_b32 s4, s4, 1
    v_lshrrev_b32 v{T}, 5, v0
    v_add_u32 v{T}, s4, v{T}
    s_lshl_b32 s5, s{S_Q}, 5
    v_subrev_u32 v{T+1}, s5, v{T}
    v_and_b32 v{T+1}, 127, v{T+1}
    v_and_b32 v{T}, 128, v{T}
    v_or_b32 v{T}, v{T}, v{T+1}
    v_bfe_u32 v{T+1}, v{T}, 1, 3
    v_bfe_u32 v{T+2}, v0, 2, 3
    v_xor_b32 v{T+1}, v{T+1}, v{T+2}
    v_lshlrev_b32 v{T}, 7, v{T}
    v_lshl_add_u32 v{T}, v{T+1}, 4, v{T}
    v_and_b32 v{T+1}, 3, v0
    v_lshl_add_u32 v{V_GA}, v{T+1}, 2, v{T}
    v_and_b32 v{V_GO}, 31, v0
    v_lshlrev_b32 v{V_GO}, 2, v{V_GO}
    v_mov_b32 v{V_GZ}, 0
    v_mov_b32 v{V_GZ+1}, 0
    s_mov_b32 s{S_MSK}, 0xffff0000
    s_mov_b32 s{S_GK}, 0
    s_mov_b32 s{S_XT}, 0
    s_waitcnt lgkmcnt(0)
    """)
    stp(a, 8)
    a(f"""
    s_mov_b32 s{SRD_G}, s40
    s_mov_b32 s{SRD_G+1}, s41
    buffer_load_dword v{V_GW}, v{V_GO}, s[{SRD_G}:{SRD_G+3}], s{S_GK} offen
    s_add_u32 s{S_GK}, s{S_GK}, 128
    """)
    if "tlb" in abl:
        srd_w(a)
        a(f"""
        s_mov_b32 s{SRD_WS}, s42
        s_mov_b32 s{SRD_WS+1}, s43
        s_mov_b32 s{SRD_W0}, s36
        s_mov_b32 s{SRD_W0+1}, s37
        s_mov_b32 s{SRD_W0+2}, 0x700000
        s_mov_b32 s{SRD_W1}, s38
        s_mov_b32 s{SRD_W1+1}, s39
        s_mov_b32 s{SRD_W1+2}, 0x700000
        v_and_b32 v{T}, 15, v0
        v_lshlrev_b32 v{T}, 21, v{T}
        s_cmp_eq_u32 s{S_WAVE}, 0
        s_cbranch_scc0 {name}_notlb
        buffer_load_dword v{T+1}, v{T}, s[{SRD_W0}:{SRD_W0+3}], 0 offen
        buffer_load_dword v{T+1}, v{T}, s[{SRD_W1}:{SRD_W1+3}], 0 offen
        buffer_load_dword v{T+1}, v{T}, s[{SRD_X}:{SRD_X+3}], 0 offen
        buffer_load_dword v{T+1}, v{T}, s[{SRD_WS}:{SRD_WS+3}], 0 offen
        s_waitcnt vmcnt(0)
        {name}_notlb:
        """)
    stp(a, 9)
    lds_addrs(a)
    if merged:
        a(f"""
        v_mov_b32 v{V_P}, 0x7fffff00
        s_mov_b32 s{S_D}, 0
        s_mov_b32 s{SRD_K}, s42
        s_mov_b32 s{SRD_K+1}, s43
        s_mov_b32 s{SRD_K+2}, 0
        s_mov_b32 s{SRD_K+3}, 0x20000
        s_cmp_lg_u32 s{S_WAVE}, 0
        s_cbranch_scc1 {name}_noclr
        s_load_dwordx2 s[{SRD_K}:{SRD_K+1}], s[0:1], 88
        s_mov_b32 s{SRD_K+2}, 256
        s_mov_b32 s{SRD_K+3}, 0x20000
        """)
        flag_addrs(a, V_P, V_PD, True)
        a(f"""
        s_lshr_b32 s{S_D}, s2, 3
        s_mul_i32 s{S_D}, s{S_D}, 6
        s_lshr_b32 s{S_D}, s{S_D}, 5
        s_add_u32 s{S_D}, s{S_D}, 1
        s_waitcnt lgkmcnt(0)
        {name}_noclr:
        """)
    dispatch(a, "C")

    w2 = "now2" not in abl
    VP, VP2, VPD = 16, 17, 18
    PFL = [[f"s_nop 0", f"buffer_load_dword v{VPD}, v{VP}, s[{SRD_P}:{SRD_P+3}], s{S_PK} offen", f"s_add_u32 s{S_PK}, s{S_PK}, s{S_PSTEP}"]]
    if w2: PFL.append([f"s_nop 0", f"buffer_load_dword v{VPD}, v{VP2}, s[{SRD_K}:{SRD_K+3}], s{S_KVT} offen", f"s_add_u32 s{S_KVT}, s{S_KVT}, s{S_KVK}"])
    NPF = len(PFL) if pf else 0
    def p_setup(o):
        T = 20
        o(f"""
        s_load_dwordx2 s[24:25], s[0:1], 64
        s_load_dwordx2 s[26:27], s[0:1], 32
        s_mul_i32 s6, s{S_MT}, 28
        s_add_u32 s6, s6, s{S_NT}
        v_lshrrev_b32 v{T}, 2, v0
        v_lshlrev_b32 v{T}, 7, v{T}
        s_lshl_b32 s7, s6, 11
        v_add_u32 v{T}, s7, v{T}
        v_min_u32 v{T+1}, 9, v0
        s_mul_i32 s7, s6, 10
        v_add_u32 v{T+1}, s7, v{T+1}
        v_min_u32 v{T+1}, 2047, v{T+1}
        v_lshlrev_b32 v{T+1}, 11, v{T+1}
        v_lshrrev_b32 v{VP2}, 3, v0
        v_lshlrev_b32 v{VP2}, 7, v{VP2}
        s_cmp_ge_u32 s6, 128
        s_cselect_b32 s7, 3, 127
        s_and_b32 s7, s7, s6
        s_lshl_b32 s7, s7, 10
        v_add_u32 v{T+2}, s7, v{VP2}
        s_cmp_ge_u32 s6, 128
        s_cselect_b32 s7, 1, 32
        s_lshl_b32 s7, s7, 12
        s_cmp_eq_u32 s{S_WN}, 2
        s_cselect_b64 vcc, -1, 0
        s_cselect_b32 s{S_PSTEP}, 128, s{S_WSTEP}
        v_cndmask_b32 v{VP}, v{T}, v{T+1}, vcc
        s_cselect_b32 s{SRD_P}, s{SRD_X}, s{SRD_W0}
        s_cselect_b32 s{SRD_P+1}, s{SRD_X+1}, s{SRD_W0+1}
        s_cselect_b32 s{SRD_P+2}, s{SRD_X+2}, s{SRD_W0+2}
        s_cmp_eq_u32 s{S_WN}, 1
        s_cselect_b32 s{SRD_P}, s{SRD_W1}, s{SRD_P}
        s_cselect_b32 s{SRD_P+1}, s{SRD_W1+1}, s{SRD_P+1}
        s_cmp_eq_u32 s{S_WN}, 3
        s_cselect_b64 vcc, -1, 0
        s_cselect_b32 s{S_PSTEP}, s7, s{S_PSTEP}
        v_cndmask_b32 v{VP}, v{VP}, v{T+2}, vcc
        s_mul_i32 s{S_PK}, s{S_PSTEP}, {2+PD}
        s_cmp_ge_u32 s6, 132
        s_cselect_b32 s4, s34, s32
        s_cselect_b32 s7, s35, s33
        s_cmp_ge_u32 s6, 136
        s_cselect_b32 s5, 0, 0x10000
        s_cmp_lt_u32 s6, 128
        s_cselect_b32 s4, s30, s4
        s_cselect_b32 s7, s31, s7
        s_cselect_b32 s5, 0x200000, s5
        s_cmp_eq_u32 s{S_WN}, 3
        s_cselect_b32 s{SRD_P}, s4, s{SRD_P}
        s_cselect_b32 s{SRD_P+1}, s7, s{SRD_P+1}
        s_cselect_b32 s{SRD_P+2}, s5, s{SRD_P+2}
        s_mov_b32 s{SRD_P+3}, 0x20000
        s_mul_i32 s4, s6, 3
        s_add_u32 s4, s4, s{S_WN}
        s_mov_b32 s5, 0x700000
        s_mov_b32 s7, {672*1024}
        s_waitcnt lgkmcnt(0)
        s_cmp_eq_u32 s{S_WN}, 3
        s_cselect_b32 s4, s6, s4
        s_cselect_b32 s{SRD_K}, s26, s24
        s_cselect_b32 s{SRD_K+1}, s27, s25
        s_cselect_b32 s{SRD_K+2}, 0x200000, s5
        s_cselect_b32 s{S_KVK}, {224*1024}, s7
        s_lshl_b32 s{S_KVT}, s4, 10
        """)
    WORDER = [(0,0),(0,1),(1,1),(1,0),(2,0),(2,1),(3,1),(3,0)]
    def rd_w(st, slot, s, kh, j):
        blk, b = s >> 1, s & 1
        r = wf(st, s, kh) + j*2
        return (f"ds_read_b64_tr_b16 v[{r}:{r+1}], v{V_W0+b} offset:{slot*WSZ + blk*16384 + kh*8192 + j*1024}", ("W", st, s, kh))
    def rd_x(role, slot, u, kh):
        r = xf(u, kh)
        off = u*2048 + (0 if role == "F" else slot*XSZ)
        return (f"ds_read_b128 v[{r}:{r+3}], v{V_X0+kh} offset:{off}", ("x", u, kh))
    def rd_kv(slot, kh, j):
        r = KVW + kh*4 + j*2
        return (f"ds_read_b64_tr_b16 v[{r}:{r+1}], v{V_KV} offset:{slot*KVSZ + kh*2048 + j*256}", ("kv", kh))

    def gate_acc(nvm, t=V_GT):
        return [f"s_waitcnt vmcnt({nvm})",
                f"v_lshlrev_b32 v{t}, 16, v{V_GX}", f"v_and_b32 v{t+1}, s{S_MSK}, v{V_GX}",
                f"v_lshlrev_b32 v{V_GX}, 16, v{V_GW}", f"v_and_b32 v{V_GW}, s{S_MSK}, v{V_GW}",
                *([f"v_pk_mul_f32 v[{t}:{t+1}], v[{t}:{t+1}], v[{V_GX}:{V_GW}]"] if "gpk" in abl else
                  [f"v_mul_f32 v{t}, v{t}, v{V_GX}", f"v_mul_f32 v{t+1}, v{t+1}, v{V_GW}"]),
                f"v_cvt_pk_bf16_f32 v{t+1}, v{t}, v{t+1}",
                f"v_lshlrev_b32 v{t}, 16, v{t+1}", f"v_and_b32 v{t+1}, s{S_MSK}, v{t+1}",
                *([f"v_pk_add_f32 v[{V_GZ}:{V_GZ+1}], v[{V_GZ}:{V_GZ+1}], v[{t}:{t+1}]"] if "gpk" in abl else
                  [f"v_add_f32 v{V_GZ}, v{V_GZ}, v{t}", f"v_add_f32 v{V_GZ+1}, v{V_GZ+1}, v{t+1}"])]
    def gate_fin():
        z = V_GZ; t = V_GX
        g = [] if "oldg" in abl else gate_acc(63, 56)[1:]
        g += [f"v_add_f32 v{z}, v{z}, v{z+1}"]
        for sh in ("row_shr:1", "row_shr:2", "row_shr:4", "row_shr:8"):
            g += ["s_nop 1", f"v_add_f32_dpp v{z}, v{z}, v{z} {sh} row_mask:0xf bank_mask:0xf bound_ctrl:1"]
        g += ["s_nop 1", f"v_add_f32_dpp v{z}, v{z}, v{z} row_bcast:15 row_mask:0xa bank_mask:0xf",
              f"v_cvt_pk_bf16_f32 v{t}, v{z}, v{z}", f"v_lshlrev_b32 v{t}, 16, v{t}",
              f"v_mul_f32 v{t}, {hx(f2u(-LOG2E))}, v{t}", f"v_exp_f32 v{t}, v{t}",
              f"s_lshl_b32 s4, s{S_MT}, 5", f"v_add_f32 v{t}, 1.0, v{t}",
              f"v_rcp_f32 v{t}, v{t}", f"s_add_u32 s4, s4, s{S_NT}", f"v_cvt_pk_bf16_f32 v{t}, v{t}, v{t}", f"v_lshlrev_b32 v{t}, 16, v{t}",
              f"v_sub_f32 v{t+1}, 1.0, v{t}", f"v_cvt_pk_bf16_f32 v{t+1}, v{t+1}, v{t+1}", f"v_lshlrev_b32 v{t+1}, 16, v{t+1}",
              f"v_lshrrev_b32 v{z}, 5, v0", f"v_lshlrev_b32 v{z}, 3, v{z}",
              "s_lshl_b32 s4, s4, 2", f"s_add_u32 s4, s4, s{S_WN}", "s_lshl_b32 s4, s4, 4", f"s_add_u32 s4, s4, {hx(WS_GATE)}",
              "s_mov_b32 exec_lo, 0x80000000", "s_mov_b32 exec_hi, 0x80000000",
              f"buffer_store_dwordx2 v[{t}:{t+1}], v{z}, s[{SRD_WS}:{SRD_WS+3}], s4 offen" + SCM,
              "s_mov_b64 exec, -1"]
        if not merged:
            g += [f"s_lshl_b32 s4, s2, 3", f"s_add_u32 s4, s4, s{S_WAVE}", "s_cmp_ge_u32 s4, 8", f"s_cbranch_scc1 {name}_fin",
              f"v_lshlrev_b32 v{z}, 2, v0", f"v_mov_b32 v{z+1}, 0", "s_and_b32 s4, s4, 3", "s_lshl_b32 s4, s4, 9", f"s_add_u32 s4, s4, {hx(WS_FLAG)}",
              f"buffer_store_dword v{z+1}, v{z}, s[{SRD_WS}:{SRD_WS+3}], s4 offen",
              f"buffer_store_dword v{z+1}, v{z}, s[{SRD_WS}:{SRD_WS+3}], s4 offen offset:256"]
        return g

    def epi_group(role, u, pk=True):
        e = []
        TE = WF
        if role == "F":
            G = acc(u, 0); U = acc(u, 2)
            if pk:
                for i in range(4): e.append(f"v_pk_mul_f32 v[{G+2*i}:{G+2*i+1}], v[{G+2*i}:{G+2*i+1}], s[{S_E0}:{S_E1}]")
            else:
                for i in range(8): e.append(f"v_mul_f32 v{G+i}, s{S_E0}, v{G+i}")
            for i in range(8): e.append(f"v_exp_f32 v{G+i}, v{G+i}")
            if pk:
                for i in range(4): e.append(f"v_pk_add_f32 v[{G+2*i}:{G+2*i+1}], v[{G+2*i}:{G+2*i+1}], 1.0 op_sel_hi:[1,0]")
            else:
                for i in range(8): e.append(f"v_add_f32 v{G+i}, 1.0, v{G+i}")
            for i in range(8): e.append(f"v_rcp_f32 v{G+i}, v{G+i}")
            if pk:
                for i in range(4): e.append(f"v_pk_mul_f32 v[{U+2*i}:{U+2*i+1}], v[{U+2*i}:{U+2*i+1}], v[{G+2*i}:{G+2*i+1}]")
            else:
                for i in range(8): e.append(f"v_mul_f32 v{U+i}, v{U+i}, v{G+i}")
            o = TE + (u & 1)*4
            for i in range(4): e.append(f"v_cvt_pk_bf16_f32 v{o+i}, v{U+2*i}, v{U+2*i+1}")
            if "nohst" not in abl: e.append(f"buffer_store_dwordx4 v[{o}:{o+3}], v{V_ST}, s[{SRD_WS}:{SRD_WS+3}], s{S_E2} offen offset:{(u&1)*1024}" + SC)
            if u & 1 and u < 7: e.append(f"s_add_u32 s{S_E2}, s{S_E2}, 2048")
        else:
            if u % 2 == 0:
                e += [f"s_add_u32 s4, s{S_Q}, {u>>1}", "s_and_b32 s4, s4, 3", f"s_add_u32 s4, s4, s{S_E2}", "s_lshl_b32 s4, s4, 16", f"s_add_u32 s4, s4, s{S_E3}"]
            for blk in range(2):
                R = acc(u, 2*blk)
                if pk:
                    for i in range(4): e.append(f"v_pk_mul_f32 v[{R+2*i}:{R+2*i+1}], v[{R+2*i}:{R+2*i+1}], s[{S_E0}:{S_E1}]")
                else:
                    for i in range(8): e.append(f"v_mul_f32 v{R+i}, s{S_E0}, v{R+i}")
                o = TE + 8 + blk*4
                for i in range(4): e.append(f"v_cvt_pk_bf16_f32 v{o+i}, v{R+2*i}, v{R+2*i+1}")
                e.append(f"buffer_store_dwordx4 v[{o}:{o+3}], v{V_ST if blk == 0 else V_ST2}, s[{SRD_WS}:{SRD_WS+3}], s4 offen offset:{(u&1)*1024}" + ("" if "qplain" in abl and not merged else SC))
        return e
    def epi_setup(role):
        TE = WF + 16
        e = [f"v_lshlrev_b32 v{V_ST}, 4, v0",
             f"s_lshl_b32 s4, s{S_MT}, 3", f"s_lshl_b32 s5, s{S_WM}, 2", f"s_add_u32 s{S_E2}, s4, s5"]
        if role == "F":
            e += [f"s_lshl_b32 s5, s{S_NT}, 2", f"s_add_u32 s5, s5, s{S_WN}", "s_lshl_b32 s5, s5, 6", f"s_add_u32 s4, s5, s{S_E2}",
                  f"s_lshl_b32 s{S_E2}, s4, 11", f"s_mov_b32 s{S_E0}, {hx(f2u(-LOG2E))}", f"s_mov_b32 s{S_E1}, {hx(f2u(-LOG2E))}"]
        else:
            e += [f"s_lshl_b32 s7, s{S_Q}, 3", f"s_add_u32 s7, s7, s{S_WN}", "s_lshl_b32 s7, s7, 11", f"s_add_u32 s{S_E3}, s7, {hx(WS_Q)}",
                  f"s_mov_b32 s{S_E0}, {hx(f2u(QSCALE))}", f"s_mov_b32 s{S_E1}, {hx(f2u(QSCALE))}", f"v_add_u32 v{V_ST2}, 0x2000, v{V_ST}"]
        return e
    def epi_kv(role):
        TE = WF + 16
        e = [f"s_add_u32 s5, s{S_E2}, s{S_Q}", "s_lshl_b32 s5, s5, 12", f"s_and_b32 s6, s{S_WN}, 1"]
        cv = [f"v_cvt_pk_bf16_f32 v{TE+4+i}, v{KVA+2*i}, v{KVA+2*i+1}" for i in range(4)]
        if role == "K":
            e += ["s_lshl_b32 s6, s6, 3", "s_add_u32 s5, s5, s6", f"s_add_u32 s5, s5, {hx(WS_KV)}"] + cv
            e += [f"buffer_store_dwordx2 v[{TE+4}:{TE+5}], v{V_ST}, s[{SRD_WS}:{SRD_WS+3}], s5 offen" + SCM,
                  f"buffer_store_dwordx2 v[{TE+6}:{TE+7}], v{V_ST}, s[{SRD_WS}:{SRD_WS+3}], s5 offen offset:1024" + SCM]
        else:
            e += ["s_lshl_b32 s6, s6, 10", "s_add_u32 s5, s5, s6", f"s_add_u32 s5, s5, {hx(WS_KV+2048)}"] + cv
            e += [f"buffer_store_dwordx4 v[{TE+4}:{TE+7}], v{V_ST}, s[{SRD_WS}:{SRD_WS+3}], s5 offen" + SCM]
        return e

    def early_w(o, role):
        lab = f"{name}_{role}_dbg"
        o(f"""
        s_load_dwordx2 s[{SRD_K}:{SRD_K+1}], s[0:1], 64
        s_load_dwordx2 s[{SRD_V}:{SRD_V+1}], s[0:1], 88
        s_mov_b32 s{SRD_K+2}, 0x700000
        s_mov_b32 s{SRD_V+2}, 256
        s_mov_b32 s{SRD_V+3}, 0x20000
        v_lshrrev_b32 v9, 3, v0
        v_bfe_u32 v10, v0, 1, 2
        v_lshrrev_b32 v11, 4, v0
        v_xor_b32 v10, v10, v11
        v_lshlrev_b32 v9, 11, v9
        v_lshl_add_u32 v9, v10, 5, v9
        v_and_b32 v10, 1, v0
        v_lshl_add_u32 v9, v10, 4, v9
        s_and_b32 s4, s2, 1
        s_lshl_b32 s4, s4, 3
        s_lshr_b32 s5, s2, 5
        s_add_u32 s4, s4, s5
        s_lshl_b32 s4, s4, 7
        s_lshl_b32 s5, s{S_WN}, 14
        s_add_u32 s5, s5, s4
        v_add_u32 v6, s5, v9
        v_add_u32 v7, 0x10000, v6
        v_add_u32 v8, 0x20000, v6
        s_lshl_b32 s6, s{S_WN}, 10
        s_add_u32 s6, s6, {hx(20*4096)}
        v_lshlrev_b32 v9, 2, v0
        s_waitcnt lgkmcnt(0)
        """)
        o(f"buffer_load_dword v10, v9, s[{SRD_V}:{SRD_V+3}], 0 offen sc1")
        for n in range(10):
            o(f"s_add_u32 m0, s6, {n*4096}" if n else "s_mov_b32 m0, s6")
            o(f"s_mov_b32 s7, {hx((n//3)*3*65536)}")
            o(f"buffer_load_dwordx4 v{6 + n % 3}, s[{SRD_K}:{SRD_K+3}], s7 offen lds")
        o(f"""
        s_mov_b32 s5, 0x100000
        s_waitcnt vmcnt(10)
        {lab}:
        v_cmp_ne_u32 vcc, 0x01010101, v10
        s_sub_u32 s5, s5, 1
        s_cbranch_scc1 {lab}_ok
        s_cbranch_vccz {lab}_ok
        buffer_load_dword v10, v9, s[{SRD_V}:{SRD_V+3}], 0 offen sc1
        s_waitcnt vmcnt(0)
        s_branch {lab}
        {lab}_ok:
        """)
    def stage(o, lq, role, half, par, first=False, dW_on=True, dX_on=True, pf_on=True, nxt_reads=True, vm=None, bar=True, last=False, tail=None, gvm=1, w2pf=False, xstop=False, dbg=False, cpf2=False):
        cur, nxt = par, 1-par
        kv = role != "F"
        C = half == "C"
        fill = {}
        def put(slot, t):
            txt = t[0] if isinstance(t, tuple) else t
            if "nolds" in abl and txt.startswith("ds_"): return
            fill.setdefault(slot, []).append(t)
        put(0, rd_x(role, cur, 3, 0)); put(1, rd_x(role, cur, 3, 1))
        for u in range(4):
            put(8*u+8, rd_x(role, cur, u+4, 0)); put(8*u+9, rd_x(role, cur, u+4, 1))
        if C:
            put(2 if last else 26, (f"ds_read_b32 v{V_GX}, v{V_GA} offset:{0 if role == 'F' else cur*XSZ}", ("g",)))
        if nxt_reads:
            if role == "F":
                put(34, f"s_cmp_eq_u32 s{S_XT}, s{S_XT2}")
                put(34, f"s_cselect_b32 s{S_D2}, {hx(-2*XSZ)}, s{S_C32}")
                put(35, f"v_add_u32 v{V_X0}, s{S_D2}, v{V_X0}")
                put(36, f"v_add_u32 v{V_X1}, s{S_D2}, v{V_X1}")
                if C: put(37, f"v_add_u32 v{V_GA}, s{S_D2}, v{V_GA}")
                put(62, f"s_add_u32 s{S_XT}, s{S_XT}, s{S_D2}")
            for u in range(3):
                put(8*u+40, rd_x(role, nxt, u, 0)); put(8*u+41, rd_x(role, nxt, u, 1))
            wslots = [42,43,44,45,46,47,50,51,52,53,54,55,58,59,60,61]
            for n, (s, kh) in enumerate(WORDER):
                put(wslots[2*n], rd_w(nxt, nxt, s, kh, 0)); put(wslots[2*n+1], rd_w(nxt, nxt, s, kh, 1))
            if kv:
                put(62, rd_kv(nxt, 0, 0)); put(62, rd_kv(nxt, 0, 1)); put(63, rd_kv(nxt, 1, 0)); put(63, rd_kv(nxt, 1, 1))
        dl = []; NUP = NUPQ if kv else NUPF
        if not C:
            if kv and dW_on: dl += dKVl(cur)
            if dW_on: dl += dWl(cur)
            if pf and pf_on and not kv: dl += PFL
            if dX_on: dl += dXl(0 if role == "F" else cur*XSZ)
            for n, g in enumerate(dl[NUP:]):
                put(40 + 2*n, g[0])
                for t in g[1:]: put(41 + 2*n, t)
            if first and role == "F":
                for n, g in enumerate(dXl(2*XSZ)):
                    put(2 + 3*n, g[0])
                    for t in g[1:]: put(3 + 3*n, t)
        if last:
            off = 0
            if C and "oldg" in abl:
                ga = gate_acc(0)
                put(6, ("WAIT", ("g",)))
                for n, t in enumerate(ga): put(6 + n//4, t)
                off = 9
            es = epi_setup(role)
            for n, t in enumerate(es): put(off + n//(6 if off else 3), t)
            if kv:
                for n, t in enumerate(epi_kv(role)): put(18 + n//3, t)
            if C and "oldg" not in abl and ("ilv" in abl or (kv and "ilvQ" in abl)): put(14, "s_waitcnt vmcnt(0)")
            for u in range(7 if ("ilv" in abl or (kv and "ilvQ" in abl)) else 0):
                e = epi_group(role, u, 'nopk' not in abl)
                per = -(-len(e)//(8 if u < 6 else 5))
                for n, t in enumerate(e): put(8*u+11 + (1 if u == 0 else 0) + n//per, t)
        if last and not C and not ("ilv" in abl or (kv and "ilvQ" in abl)): put(0, "s_setprio 1" if "hiC" not in abl else "s_nop 0")
        if tail:
            for t in tail: put(63, t)
        def need(tags):
            if any(t in lq.q for t in tags): o(f"s_waitcnt lgkmcnt({lq.need(tags)})")
        def emit(t):
            if isinstance(t, tuple):
                if t[0] == "WAIT": need([t[1]])
                else: o(t[0]); lq.push(t[1])
            else: o(t)
        n = 0
        for u in range(8):
            if u == 5 and bar:
                lq.need(lq.q)
                if C:
                    o("s_waitcnt lgkmcnt(0)")
                    if "glow" in abl: o("s_setprio 0")
                    for t in gate_acc(gvm): o(t)
                    o(f"buffer_load_dword v{V_GW}, v{V_GO}, s[{SRD_G}:{SRD_G+3}], s{S_GK} offen")
                    o(f"s_add_u32 s{S_GK}, s{S_GK}, 128")
                    if cpf2:
                        lab = f"{name}_{role}_pc2"
                        o(f"""
                        s_getpc_b64 s[4:5]
                        {lab}:
                        v_lshlrev_b32 v{V_GT}, 7, v0
                        s_lshl_b32 s6, s{S_WN}, 13
                        v_add_u32 v{V_GT}, s6, v{V_GT}
                        v_min_u32 v{V_GT}, {name}_{role}_last-{lab}, v{V_GT}
                        global_load_dword v{V_PD}, v{V_GT}, s[4:5]
                        """)
                    if merged and first:
                        o(f"v_mov_b32 v{V_PD}, 0\nbuffer_store_dword v{V_PD}, v{V_P}, s[{SRD_WS}:{SRD_WS+3}], 0 offen sc1")
                    if merged and dbg:
                        lab = f"{name}_{role}_nb"
                        o(f"""
                        s_sub_u32 s{S_D}, s{S_D}, 1
                        s_cmp_lg_u32 s{S_D}, 0
                        s_cbranch_scc1 {lab}
                        v_mov_b32 v{V_P}, 1
                        s_mov_b64 exec, 1
                        buffer_store_byte v{V_P}, v{V_PD}, s[{SRD_K}:{SRD_K+3}], s2 offen sc1
                        s_mov_b64 exec, -1
                        {lab}:
                        """)
                else:
                    o(f"s_waitcnt vmcnt({vm}) lgkmcnt(0)")
                if C and "glow" in abl: o("s_setprio 1")
                if "nobar" not in abl: o("s_barrier")
                if stamp and not C:
                    o(f"s_memtime s[4:5]\ns_waitcnt lgkmcnt(0)\ns_mov_b32 m0, s{ST+15}\nv_writelane_b32 v13, s4, m0\ns_add_u32 s{ST+15}, s{ST+15}, 1")
                if not C: burst(o, dl[:NUP])
                if not C and merged and w2pf: early_w(o, role)
                if C and w2pf and "swap14" in abl: o("s_setprio 0")
                if not C and w2pf and "swap14" in abl: o("s_setprio 2")
            for c in range(4):
                s = c if u % 2 == 0 else 3-c
                for e in range(2):
                    kh = e if c % 2 == 0 else 1-e
                    need([("W", cur, s, kh), ("x", u, kh)])
                    d = acc(u, s)
                    cc = "0" if (first and e == 0) else f"v[{d}:{d+3}]"
                    o(f"v_mfma_f32_16x16x32_bf16 v[{d}:{d+3}], {vr(wf(cur,s,kh),4)}, {vr(xf(u,kh),4)}, {cc}")
                    if kv and u < 2 and c == 3 and e == 1:
                        for k2 in range(2):
                            need([("kv", k2)])
                            d = KVA + u*4
                            cc = "0" if (first and k2 == 0) else f"v[{d}:{d+3}]"
                            w = vr(KVW+k2*4, 4); x = vr(xf(u, k2), 4)
                            if role == "K": o(f"v_mfma_f32_16x16x32_bf16 v[{d}:{d+3}], {w}, {x}, {cc}")
                            else: o(f"v_mfma_f32_16x16x32_bf16 v[{d}:{d+3}], {x}, {w}, {cc}")
                    for t in fill.get(n, []): emit(t)
                    n += 1
        if last:
            ilv = "ilv" in abl or (kv and "ilvQ" in abl)
            if not (ilv and kv): stp(o, 12)
            if C and not ilv and "oldg" not in abl: o("s_waitcnt vmcnt(0)")
            if C and not ilv and "hiC" not in abl: o("s_setprio 0")
            if ilv or "noshare" in abl:
                if ilv: o("s_nop 7")
                for u in range(7 if ilv else 0, 8):
                    for t in epi_group(role, u): o(t)
                if C:
                    stp(o, 6)
                    o(f"s_cmp_ge_u32 s{S_WAVE}, 4\ns_cbranch_scc1 {name}_fin")
                    for t in gate_fin(): o(t)
            elif C: o(f"s_branch {name}_{role}_epi")
            else:
                if "lowL" in abl: o("s_setprio 0")
                o.lab(f"{name}_{role}_epi")
                for u in range(8):
                    for t in epi_group(role, u, not ('nopk' in abl and u < NPK)): o(t)
                stp(o, 6)
                o(f"s_cmp_ge_u32 s{S_WAVE}, 4\ns_cbranch_scc1 {name}_{role}_nogate")
                for t in gate_fin(): o(t)
                o.lab(f"{name}_{role}_nogate")

    for role in "FKV":
      for half in "CL":
        kv = role != "F"; C = half == "C"
        rn = f"{name}_{role}{half}"
        a.raw(f"{rn}:")
        lq = LQ(15)
        if not C:
            if role == "F": a(f"s_add_u32 s{S_XT2}, s{S_XT2}, s{S_XT}")
            if kv: dKV(a, 0)
            dW(a, 1)
            if pf and not kv: p_setup(a)
            a("s_waitcnt vmcnt(8)")
        stp(a, 12)
        a("s_barrier")
        stp(a, 10)
        if not C:
            if kv: dKV(a, 1)
            dX(a, XSZ)
        pro = []
        wi = iter([rd_w(0, 0, s, kh, j) for (s, kh) in WORDER for j in range(2)])
        for u in range(3):
            pro += [rd_x(role, 0, u, 0), rd_x(role, 0, u, 1)] + [next(wi) for _ in range(6 if u < 2 else 4)]
        if kv: pro += [rd_kv(0, 0, 0), rd_kv(0, 0, 1), rd_kv(0, 1, 0), rd_kv(0, 1, 1)]
        for t in pro: a(t[0]); lq.push(t[1])
        a(f"s_mov_b32 s{S_CNT}, {6 if kv else 5}")
        vm = 0 if kv else 8 + NPF
        gvm = 0
        stp(a, 4); stp(a, 5, True)
        stage(a, lq, role, half, 0, first=True, vm=(0 if kv else 8), gvm=0)
        a.raw(".p2align 6")
        a.raw(f"{rn}_loop:")
        b1 = Asm(); q0 = list(lq.q)
        if kv:
            stage(b1, lq, role, half, 1, vm=vm, gvm=gvm, dbg=True, tail=[f"s_cmp_eq_u32 s{S_CNT}, 0", f"s_cbranch_scc1 {rn}_tail"])
            q1 = list(lq.q)
            stage(b1, lq, role, half, 0, vm=vm, gvm=gvm, tail=[f"s_sub_u32 s{S_CNT}, s{S_CNT}, 1", f"s_branch {rn}_loop"])
            assert lq.q == q0
            a.l += b1.l
            a.raw(f"{rn}_tail:")
            lq.q = q1
        else:
            stage(b1, lq, role, half, 1, vm=vm, gvm=gvm, dbg=True)
            stage(b1, lq, role, half, 0, vm=vm, gvm=gvm, xstop=True, tail=[f"s_sub_u32 s{S_CNT}, s{S_CNT}, 1", f"s_cbranch_scc0 {rn}_loop"])
            assert lq.q == q0
            a.l += b1.l
            stage(a, lq, role, half, 1, vm=vm, gvm=gvm, dX_on=False, pf_on=False, cpf2=("cpf13" in abl))
        stage(a, lq, role, half, 0, dW_on=False, dX_on=False, pf_on=False, vm=0, gvm=gvm, w2pf=True, cpf2=("cpf14" in abl or (kv and "cpf13" in abl)))
        stp(a, 11)
        sh = "share15" in abl and ("ilv" in abl or (kv and "ilvQ" in abl))
        if sh and not C:
            a(f"s_branch {name}_{role}_s15")
            a.lab(f"{name}_{role}_last")
            continue
        if sh: a.lab(f"{name}_{role}_s15")
        stage(a, lq, role, half, 1, dW_on=False, dX_on=False, nxt_reads=False, bar=False, last=True)
        stp(a, 6); stp(a, 7, True)
        if not C: a.lab(f"{name}_{role}_last")
        a(f"s_branch {name}_fin")
    a.raw(f"{name}_fin:")
    if stamp:
        T = 96
        a("s_waitcnt vmcnt(0)")
        stp(a, 13); stp(a, 14, True)
        a(f"""
        s_lshl_b32 s4, s2, 3
        s_add_u32 s4, s4, s{S_WAVE}
        s_lshl_b32 s4, s4, 6
        s_add_u32 s4, s4, {hx(0x1E00000)}
        s_mov_b64 exec, -1
        v_mov_b32 v14, 0
        """)
        for i, (r, rel) in enumerate([(4,1),(6,1),(13,1),(2,0),(14,0),(0,0),(5,0),(7,0),(8,1),(9,1),(10,1),(11,1),(12,1)]):
            if rel: a(f"s_sub_u32 s{ST+r}, s{ST+r}, s{ST}")
            a(f"v_mov_b32 v{T+i}, s{ST+r}")
        a(f"v_lshlrev_b32 v15, 2, v0\ns_add_u32 s5, s4, 0x40000\ns_mov_b64 exec, 0xffff\nbuffer_store_dword v13, v15, s[{SRD_WS}:{SRD_WS+3}], s5 offen")
        a("s_mov_b64 exec, 1")
        for i in range(4):
            a(f"buffer_store_dwordx4 v[{T+4*i}:{T+4*i+3}], v14, s[{SRD_WS}:{SRD_WS+3}], s4 offen offset:{16*i}")
    if merged:
        if stamp: a("s_mov_b64 exec, -1")
        flag_addrs(a, 96, 97, False)
        return a.text()
    a.raw(f"{name}_end:")
    a("s_endpgm")
    return a.text()

if __name__ == "__main__":
    import sys
    stamp = "stamp" in sys.argv
    s = "; @launch kernel=k1_kernel grid=(256,1,1) block=(512,1,1) lds=163840\n"
    s += '.amdgcn_target "amdgcn-amd-amdhsa--gfx950"\n.text\n' + gen_k1(stamp=stamp, abl=sys.argv[2:]) + kernel_desc("k1_kernel")
    open(sys.argv[1], "w").write(s)
```

```python
from common import *

RW = 30
PROG = 122880
CNT_LDS = PROG + 2048
KVB = 131072
K2_LDS = 163840

S_WAVE, S_W = 3, 33
SRD_WS, SRD_WD, SRD_WO, SRD_OUT = 8, 12, 16, 20
S_MI, S_NI, S_MT32 = 34, 35, 36
S_CNT = 37
S_HK, S_WK, S_WM, S_WEND, S_WW, S_KVK, S_KVM, S_RD = 38, 39, 40, 41, 42, 43, 44, 45
S_T = 46
S_NEED, S_CU = 58, 57
ST = 70
def m16(d, x, y, c=True): return f"v_mfma_f32_16x16x32_bf16 {vr(d,4)}, {vr(x,4)}, {vr(y,4)}, " + (vr(d,4) if c is True else ("0" if c is False else vr(c,4)))

def gen_k2(name="k2_kernel", stamp=False, abl=(), merged=False):
    a = Asm()
    def stp(o, i, real=False):
        if stamp:
            o(f"{'s_memrealtime' if real else 's_memtime'} s[4:5]\ns_waitcnt lgkmcnt(0)\ns_mov_b32 s{ST+i}, s4")
    prioA = 1; prioG = 0; HD = 10; FLAGU = 106; GP2 = 0; GPU_ = 96
    for x in abl:
        if x.startswith("pa"): prioA = int(x[2:])
        if x.startswith("pg"): prioG = int(x[2:])
        if x.startswith("fu"): FLAGU = int(x[2:])
        if x.startswith("gp"): GP2 = int(x[2:])
        if x.startswith("gu"): GPU_ = int(x[2:])
    nosync = "nosync" in abl
    SC1 = " sc1" if merged else ""
    if merged: a.raw(f"{name}:"); abl = list(abl) + ["nocpf"]
    else: a.raw(f".globl {name}\n.p2align 8\n.type {name},@function\n{name}:")
    if stamp: a(f"s_memtime s[{ST}:{ST+1}]\ns_memrealtime s[{ST+2}:{ST+3}]")
    a(f"""
    s_load_dwordx2 s[24:25], s[0:1], 96
    s_load_dwordx2 s[26:27], s[0:1], 64
    s_load_dwordx2 s[28:29], s[0:1], 32
    s_load_dwordx2 s[30:31], s[0:1], 80
    """)
    CW = 8
    for x in abl:
        if x.startswith("cw"): CW = int(x[2:])
    if "nocpf" not in abl:
        a(f"""
        s_cmp_ge_u32 s2, {CW}
        s_cbranch_scc1 {name}_nocpf
        s_getpc_b64 s[4:5]
        {name}_pc:
        s_sub_u32 s4, s4, {name}_pc-{name}
        s_subb_u32 s5, s5, 0
        v_lshlrev_b32 v2, 7, v0
        v_min_u32 v3, k2_kernel_end-{name}, v2
        global_load_dword v255, v3, s[4:5]
        {name}_nocpf:
        """)
    a(f"""
    """)
    if not merged:
        a(f"""
        s_cmp_ge_u32 s2, 256
        s_cbranch_scc1 {name}_end
        v_lshrrev_b32 v1, 6, v0
        v_and_b32 v0, 63, v0
        v_readfirstlane_b32 s{S_WAVE}, v1
        """)
    a(f"""
    s_and_b32 s4, s2, 7
    {"s_xor_b32 s4, s4, 1" if "xflip" in abl else ""}
    s_lshr_b32 s5, s2, 3
    s_lshr_b32 s6, s4, 1
    s_lshl_b32 s6, s6, 2
    s_and_b32 s7, s5, 3
    s_add_u32 s{S_MI}, s6, s7
    s_and_b32 s4, s4, 1
    s_lshl_b32 s4, s4, 3
    s_lshr_b32 s5, s5, 2
    s_add_u32 s{S_NI}, s4, s5
    s_and_b32 s{S_W}, s{S_WAVE}, 3
    s_lshl_b32 s4, s{S_MI}, 2
    s_add_u32 s{S_MT32}, s4, s{S_W}
    s_mov_b32 s{SRD_WS+2}, {hx(WS_SIZE)}
    s_mov_b32 s{SRD_WS+3}, 0x20000
    v_lshlrev_b32 v1, 4, v0
    s_cmp_ge_u32 s{S_WAVE}, 4
    s_cbranch_scc1 {name}_G
    """)
    VL = 1; VKV = 2
    VG = 4
    VT = 6
    SEL = 12
    Q = 16
    S = 32
    P = 64
    O = 80
    Ls = 112
    K = 128
    V = 144
    CB = 160
    MX = 176
    VSIG, VCHK, VONE, VCNT = 186, 187, 188, 189
    if prioA: a(f"s_setprio {prioA}")
    a(f"""
    s_lshl_b32 s4, s{S_MT32}, 5
    s_lshl_b32 s5, s{S_NI}, 1
    s_add_u32 s4, s4, s5
    s_lshl_b32 s4, s4, 11
    s_add_u32 s{S_T}, s4, {hx(WS_Q)}
    s_lshl_b32 s5, s{S_NI}, 7
    s_add_u32 s5, s5, s{S_MT32}
    s_lshl_b32 s5, s5, 11
    s_add_u32 s{S_T+1}, s5, {hx(WS_O)}
    s_add_u32 s{S_T+10}, s{S_T+1}, 0x20000
    s_lshl_b32 s{S_T+2}, s{S_MT32}, 8
    s_add_u32 s{S_T+2}, s{S_T+2}, {hx(WS_GATE)}
    v_and_b32 v{VT}, 15, v0
    v_lshlrev_b32 v{VT}, 3, v{VT}
    v_add_u32 v{VKV}, {hx(KVB)}, v{VL}
    s_waitcnt lgkmcnt(0)
    s_mov_b32 s{SRD_WS}, s24
    s_mov_b32 s{SRD_WS+1}, s25
    """)
    VGA = 3
    def g_loads():
        for i in range(2): a(f"buffer_load_dword v{VG+i}, v{VGA}, s[{SRD_WS}:{SRD_WS+3}], s{S_T+2} offen offset:{128*i}" + SC1)
    a(f"v_mov_b32 v{VGA}, v{VT}")
    def a_loads():
        for i in range(4): a(f"buffer_load_dwordx4 {vr(Q+4*i,4)}, v{VL}, s[{SRD_WS}:{SRD_WS+3}], s{S_T} offen offset:{1024*i}" + SC1)
        if not merged: g_loads()
    if merged: a("s_waitcnt vmcnt(0)\ns_barrier")
    else: a_loads()
    a(f"""
    v_and_b32 v{VT+1}, 3, v0
    v_cmp_eq_u32 vcc, 0, v{VT+1}
    v_mov_b32 v{VT+2}, 0x3f803f80
    s_mov_b32 s{S_CNT}, 7
    v_cndmask_b32 v{SEL}, 0, v{VT+2}, vcc
    v_cndmask_b32 v{SEL+1}, 0, v{VT+2}, vcc
    v_cndmask_b32 v{SEL+2}, 0, v{VT+2}, vcc
    v_cndmask_b32 v{SEL+3}, 0, v{VT+2}, vcc
    s_lshl_b32 s4, s{S_W}, 8
    s_add_u32 s4, s4, {hx(PROG+1024)}
    v_lshl_add_u32 v{VSIG}, v0, 2, s4
    v_lshlrev_b32 v{VCHK}, 8, v{VT+1}
    v_add_u32 v{VCHK}, {hx(PROG)}, v{VCHK}
    v_mov_b32 v{VONE}, 1
    s_mov_b32 s{S_NEED}, 0
    ds_write_b32 v{VSIG}, v{VONE}
    """)
    for r in list(range(P+8, P+16)) + list(range(O, O+48)) + list(range(V+8, V+16)): a(f"v_mov_b32 v{r}, 0")
    if merged:
        a("s_barrier"); a_loads()
    stp(a, 8)
    a("s_waitcnt lgkmcnt(0)\ns_barrier")
    stp(a, 9)
    lq = LQ(15)
    def rdK(o, t, u):
        o(f"ds_read_b128 {vr(K+(t&1)*8+u*4,4)}, v{VKV} offset:{((t >> 1) & 3)*8192 + (t & 1)*4096 + u*1024}"); lq.push(("K", t & 1))
    def rdV(o, t, s):
        o(f"ds_read_b128 {vr(V+(t&1)*8+s*4,4)}, v{VKV} offset:{((t >> 1) & 3)*8192 + (t & 1)*4096 + 2048 + s*1024}"); lq.push(("V", t & 1))
    def need(o, tags):
        if any(t in lq.q for t in tags): o(f"s_waitcnt lgkmcnt({lq.need(tags)})")
    def qk(h, par, c=False):
        return [m16(S+16*h+8*qs+4*u, K+8*par+4*u, Q+8*h+4*qs, c if c is False else c+8*h+4*qs) for (u, qs) in ((0,0),(0,1),(1,1),(1,0))]
    def pv(h, par):
        f = lambda s, qs: m16(O+16*h+8*qs+4*s, V+8*par+4*s, P+8*h+4*qs)
        g = lambda qs: m16(Ls+8*h+4*qs, SEL, P+8*h+4*qs)
        return [f(0,0), g(0), f(1,0), f(1,1), g(1), f(0,1)]
    rdK(a, 0, 0); rdK(a, 0, 1); rdK(a, 1, 0); rdK(a, 1, 1)
    a("s_waitcnt vmcnt(0)")
    need(a, [("K", 0)])
    for t in qk(0, 0): a(t)
    a("s_nop 7")
    stp(a, 4); stp(a, 5, True)
    SEQS = {
     "t1": "M e M e e M e M e e c c M e M e e M e M e c c M e M e c e e c e c c",
     "t2": "M e e M e e M e c c M e e M e c c M e e M e e M e c M e c M e e c c",
     "t3": "M e M e M e M e M e M e M e M e M e M e e e c c c e e c c e e c c c",
     "t4": "M e M e e e M e M e c c c M e M e e M e M e c c M e M e c e e e c c",
     "t5": "M e M e M e M e e e c c c M e M e M e e e c c M e M e M e e c e c c",
    }
    seqn = "t1"
    for x in abl:
        if x in SEQS: seqn = x
    slow = Asm()
    def phase(o, t, h):
        b = 1-h
        tq = t if h == 0 else t+1
        tv = t-1 if h == 0 else t
        mf = qk(b, tq & 1) + pv(b, tv & 1)
        Sa, Pa = S+16*h, P+8*h
        e = iter([f"v_exp_f32 v{Sa+i}, v{Sa+i}" for i in range(16)])
        c = iter([f"v_cvt_pk_bf16_f32 v{Pa+i}, v{Sa+2*i}, v{Sa+2*i+1}" for i in range(8)])
        first = (t % 2 == 0 and h == 0); lastp = (t % 2 == 1 and h == 1)
        m = 0
        for x in SEQS[seqn].split():
            if x == "e": o(next(e))
            elif x == "c": o(next(c))
            else:
                if m == 9 and first and not nosync: o(f"v_cmp_gt_u32 vcc, s{S_NEED}, v{VCNT}")
                o(mf[m])
                if m in (0, 4):
                    if h == 0: rdV(o, t, m >> 2)
                    else: rdK(o, t+2, m >> 2)
                if m == 3 and h == 1: need(o, [("V", t & 1)])
                if m == 9 and h == 0 and not first: need(o, [("K", (t+1) & 1)])
                if m == 7 and first: need(o, [("K", (t+1) & 1), "cnt"])
                if not nosync:
                    if m == 2 and first:
                        o(f"ds_read_b32 v{VCNT}, v{VCHK}"); lq.push("cnt")
                    if m == 9 and first:
                        lab = f"{name}_A_w{t}"
                        o(f"s_cbranch_vccnz {lab}"); o.lab(lab + "r")
                        slow(f"""
                        {lab}:
                        s_sleep 1
                        ds_read_b32 v{VCNT}, v{VCHK}
                        s_waitcnt lgkmcnt(0)
                        v_cmp_gt_u32 vcc, s{S_NEED}, v{VCNT}
                        s_nop 4
                        s_cbranch_vccnz {lab}
                        s_branch {lab}r
                        """)
                    if m == 6 and lastp:
                        o(f"ds_add_u32 v{VSIG}, v{VONE}"); lq.push("sig")
                    if m == 8 and lastp: o(f"s_add_u32 s{S_NEED}, s{S_NEED}, 1")
                    if m == 9 and lastp and t == 1: o(f"s_max_u32 s{S_NEED}, s{S_NEED}, 3")
                m += 1
        assert m == 10 and next(e, None) is None and next(c, None) is None
    tmp = Asm(); lq.q = []
    for t in range(8): phase(tmp, t, 0); phase(tmp, t, 1)
    slow.l = []
    q0 = list(lq.q)
    a.raw(".p2align 6")
    a.raw(f"{name}_A_loop:")
    for t in range(8): phase(a, t, 0); phase(a, t, 1)
    assert lq.q == q0
    if stamp:
        a(f"s_memtime s[4:5]\ns_waitcnt lgkmcnt(0)\ns_mov_b32 m0, s{S_CNT}\nv_writelane_b32 v198, s4, m0")
    if merged:
        a(f"s_cmp_lg_u32 s{S_CNT}, 5\ns_cbranch_scc1 {name}_A_nog"); g_loads(); a.lab(f"{name}_A_nog")
    a(f"s_sub_u32 s{S_CNT}, s{S_CNT}, 1\ns_cbranch_scc0 {name}_A_loop")
    stp(a, 6); stp(a, 7, True)
    if merged: a("s_waitcnt vmcnt(0)")
    else: a("s_nop 0")
    for t in pv(1, 1): a(t)
    a.lab(f"{name}_A_fin")
    PO = K
    a("s_waitcnt lgkmcnt(0)")
    for i in range(4):
        r = S + 2*i
        a(f"v_rcp_f32 v{r}, v{Ls+4*i}\ns_nop 0\nv_mul_f32 v{r}, v{r}, v{VG+(i&1)}")
        for j in range(8): a(f"v_mul_f32 v{S+8+j}, v{O+8*i+j}, v{r}")
        for j in range(4): a(f"v_cvt_pk_bf16_f32 v{PO+4*i+j}, v{S+8+2*j}, v{S+8+2*j+1}")
        a(f"buffer_store_dwordx4 {vr(PO+4*i,4)}, v{VL}, s[{SRD_WS}:{SRD_WS+3}], s{S_T+1 if i < 2 else S_T+10} offen offset:{1024*(i&1)} sc1")
    a(f"s_cmp_eq_u32 s{S_NEED}, 0\ns_cbranch_scc1 {name}_A_sig")
    a(f"v_max3_f32 v{VT}, abs(v{O}), abs(v{O+1}), abs(v{O+2})")
    for i in range(3, 31, 2): a(f"v_max3_f32 v{VT}, v{VT}, abs(v{O+i}), abs(v{O+i+1})")
    a(f"""
    v_max_f32 v{VT}, v{VT}, abs(v{O+31})
    s_mov_b32 s4, {hx(f2u(2.0**-64))}
    s_mov_b32 s5, {hx(f2u(2.0**64))}
    s_mov_b32 s6, {hx(f2u(2.0**120))}
    v_cmp_gt_f32 s[{S_T+4}:{S_T+5}], s6, v{VT}
    """)
    for i in range(4):
        a(f"""
        v_cmp_lt_f32 s[{S_T+6}:{S_T+7}], s4, v{Ls+4*i}
        v_cmp_gt_f32 vcc, s5, v{Ls+4*i}
        s_nop 0
        s_and_b64 s[{S_T+4}:{S_T+5}], s[{S_T+4}:{S_T+5}], s[{S_T+6}:{S_T+7}]
        s_and_b64 s[{S_T+4}:{S_T+5}], s[{S_T+4}:{S_T+5}], vcc
        """)
    a(f"""
    s_cmp_eq_u64 s[{S_T+4}:{S_T+5}], -1
    {"s_branch" if "forcefb" in abl else "s_cbranch_scc0"} {name}_A_fb
    {name}_A_sig:
    """)
    a(f"""
    v_mov_b32 v{VT}, {hx(CNT_LDS)}
    s_lshl_b32 s4, s{S_MI}, 7
    s_lshl_b32 s5, s{S_NI}, 2
    s_add_u32 s4, s4, s5
    s_add_u32 s4, s4, {hx(WS_FLAG)}
    v_mov_b32 v{VT+3}, 0
    s_mov_b64 exec, 1
    s_waitcnt vmcnt(0)
    ds_add_rtn_u32 v{VT+2}, v{VT}, v{VONE}
    s_waitcnt lgkmcnt(0)
    v_readfirstlane_b32 s5, v{VT+2}
    s_nop 1
    s_cmp_lg_u32 s5, 3
    s_cbranch_scc1 {name}_fin
    buffer_store_dword v{VONE}, v{VT+3}, s[{SRD_WS}:{SRD_WS+3}], s4 offen sc1
    s_branch {name}_fin
    """)
    a.l += slow.l
    a.raw(f"{name}_A_fb:")
    a(f"s_waitcnt vmcnt(0)\ns_mov_b32 s{S_NEED}, 0")
    for i in range(4): a(f"v_mov_b32 v{MX+i}, 0xff800000")
    a(f"""
    s_mov_b32 s{S_T+3}, {hx(WS_KV)}
    s_mov_b32 s{S_CNT}, 63
    {name}_A_fb1:
    buffer_load_dwordx4 {vr(K,4)}, v{VL}, s[{SRD_WS}:{SRD_WS+3}], s{S_T+3} offen{SC1}
    buffer_load_dwordx4 {vr(K+4,4)}, v{VL}, s[{SRD_WS}:{SRD_WS+3}], s{S_T+3} offen offset:1024{SC1}
    s_add_u32 s{S_T+3}, s{S_T+3}, 4096
    s_waitcnt vmcnt(0)
    """)
    for h in range(2):
        for t in qk(h, 0): a(t)
    a("s_nop 7")
    for i in range(4):
        for j in range(0, 8, 2): a(f"v_max3_f32 v{MX+i}, v{MX+i}, v{S+8*i+j}, v{S+8*i+j+1}")
    a(f"s_sub_u32 s{S_CNT}, s{S_CNT}, 1\ns_cbranch_scc0 {name}_A_fb1")
    for op in ("v_permlane32_swap_b32", "v_permlane16_swap_b32"):
        for i in range(4): a(f"v_mov_b32 v{VT+i}, v{MX+i}")
        a("s_nop 1")
        for i in range(4): a(f"{op} v{VT+i}, v{MX+i}")
        a("s_nop 1")
        for i in range(4): a(f"v_max_f32 v{MX+i}, v{MX+i}, v{VT+i}")
    for i in range(16): a(f"v_sub_f32 v{CB+i}, 0, v{MX+(i>>2)}")
    for r in range(O, O+48): a(f"v_mov_b32 v{r}, 0")
    a(f"""
    s_mov_b32 s{S_T+3}, {hx(WS_KV)}
    s_mov_b32 s{S_CNT}, 63
    {name}_A_fb2:
    """)
    for i in range(2): a(f"buffer_load_dwordx4 {vr(K+4*i,4)}, v{VL}, s[{SRD_WS}:{SRD_WS+3}], s{S_T+3} offen offset:{1024*i}" + SC1)
    for i in range(2): a(f"buffer_load_dwordx4 {vr(V+4*i,4)}, v{VL}, s[{SRD_WS}:{SRD_WS+3}], s{S_T+3} offen offset:{2048+1024*i}" + SC1)
    a(f"s_add_u32 s{S_T+3}, s{S_T+3}, 4096\ns_waitcnt vmcnt(0)")
    for h in range(2):
        for t in qk(h, 0, CB): a(t)
    a("s_nop 7")
    for i in range(32): a(f"v_exp_f32 v{S+i}, v{S+i}")
    a("s_nop 0")
    for i in range(16): a(f"v_cvt_pk_bf16_f32 v{P+i}, v{S+2*i}, v{S+2*i+1}")
    a("s_nop 1")
    for h in range(2):
        for t in pv(h, 0): a(t)
    a(f"s_sub_u32 s{S_CNT}, s{S_CNT}, 1\ns_cbranch_scc0 {name}_A_fb2\ns_nop 7")
    a(f"s_branch {name}_A_fin")

    VA = 2
    VDW = 6
    V1G = 10
    VT = 14
    VSIG, VCHK, VONE, VCNT, VNEED = 20, 21, 22, 23, 24
    ACC = 32
    WF = 64
    H = 128
    U = 10
    VL2 = 25; V3 = 26; VFA = 27; VFV = 28
    def wf(par, e, ns): return WF + par*32 + e*16 + ns*4
    def hf(n, ts): return H + (n % HD)*8 + ts*4
    a.raw(f"{name}_G:")
    if prioG or merged: a(f"s_setprio {prioG}")
    a(f"""
    v_lshrrev_b32 v{VT}, 3, v0
    v_bfe_u32 v{VT+1}, v0, 1, 2
    v_lshrrev_b32 v{VT+2}, 4, v0
    v_xor_b32 v{VT+1}, v{VT+1}, v{VT+2}
    v_lshlrev_b32 v{VT}, 11, v{VT}
    v_lshl_add_u32 v{VT}, v{VT+1}, 5, v{VT}
    v_and_b32 v{VT+1}, 1, v0
    v_lshl_add_u32 v{VT}, v{VT+1}, 4, v{VT}
    s_lshl_b32 s4, s{S_NI}, 7
    s_lshl_b32 s5, s{S_W}, 14
    s_add_u32 s5, s5, s4
    v_add_u32 v{VDW}, s5, v{VT}
    v_add_u32 v{VDW+1}, 0x10000, v{VDW}
    v_add_u32 v{VDW+2}, 0x20000, v{VDW}
    s_lshl_b32 s{S_HK}, s{S_MT32}, 11
    v_add_u32 v{VL2}, 0x20000, v{VL}
    s_mov_b32 s{S_WK}, 0
    s_lshl_b32 s{S_WW}, s{S_W}, 10
    s_mov_b32 s{S_WM}, s{S_WW}
    s_add_u32 s{S_WEND}, s{S_WW}, {hx(RW*4096)}
    s_lshl_b32 s4, s{S_W}, 11
    s_add_u32 s{S_KVK}, s4, {hx(WS_KV)}
    s_add_u32 s{S_KVM}, s4, {hx(KVB)}
    s_mov_b32 s{SRD_WD+2}, 0x700000
    s_mov_b32 s{SRD_WD+3}, 0x20000
    s_mov_b32 s{SRD_WO+2}, 0x200000
    s_mov_b32 s{SRD_WO+3}, 0x20000
    s_mov_b32 s{SRD_OUT+2}, 0x400000
    s_mov_b32 s{SRD_OUT+3}, 0x20000
    s_lshl_b32 s{S_T+2}, s{S_MT32}, 8
    s_add_u32 s{S_T+2}, s{S_T+2}, {hx(WS_GATE+4)}
    s_waitcnt lgkmcnt(0)
    s_mov_b32 s{SRD_WS}, s24
    s_mov_b32 s{SRD_WS+1}, s25
    s_mov_b32 s{SRD_WD}, s26
    s_mov_b32 s{SRD_WD+1}, s27
    """)
    vq = LQ(63); lq = LQ(15); mainflag = {}; mark = {"n": 0}
    ev = {"vm": [], "lg": [], "cert": set(), "free": set(), "pc": set(), "pf": set()}
    def dKV():
        return [f"s_mov_b32 m0, s{S_KVM}", f"s_add_u32 s{S_KVM}, s{S_KVM}, 8192",
                (f"buffer_load_dwordx4 v{VL}, s[{SRD_WS}:{SRD_WS+3}], s{S_KVK} offen{SC1} lds", "vm", "KV"),
                (f"buffer_load_dwordx4 v{VL}, s[{SRD_WS}:{SRD_WS+3}], s{S_KVK} offen offset:1024{SC1} lds", "vm", "KV"),
                f"s_add_u32 s{S_KVK}, s{S_KVK}, 8192", f"s_and_b32 s{S_KVM}, s{S_KVM}, {hx(KVB | 0x7fff)}"]
    def dW3(u0):
        ld = lambda i: (f"buffer_load_dwordx4 v{VDW+i}, s[{SRD_WD}:{SRD_WD+3}], s{S_WK} offen lds", "vm", "W", u0+i)
        return [f"s_mov_b32 m0, s{S_WM}", "NOP", ld(0), f"s_add_u32 m0, s{S_WM}, 4096", "NOP", ld(1), f"s_add_u32 m0, s{S_WM}, 8192",
                f"s_add_u32 s{S_WM}, s{S_WM}, 12288", ld(2), f"s_add_u32 s{S_WK}, s{S_WK}, {hx(3*65536)}",
                f"s_cmp_eq_u32 s{S_WM}, s{S_WEND}", f"s_cselect_b32 s{S_WM}, s{S_WW}, s{S_WM}"]
    def dW1(n):
        wo = n >= 112; k = n - 112 if wo else n
        srd = SRD_WO if wo else SRD_WD
        r = [f"s_add_u32 m0, s{S_WW}, {hx(((n + R0) % RW)*4096)}", f"s_mov_b32 s{S_WK}, {hx(k*65536)}",
             (f"buffer_load_dwordx4 v{VDW}, s[{srd}:{srd+3}], s{S_WK} offen lds", "vm", "W", n)]
        return r
    def ldH(n, ts, ofrag):
        return (f"buffer_load_dwordx4 {vr(hf(n,ts),4)}, v{VL2 if n & 1 else VL}, s[{SRD_WS}:{SRD_WS+3}], s{S_HK} offen offset:{ts*1024}" + (" sc1" if ofrag or merged else ""), "vm", ("H", n % HD, ts))
    HADD = f"s_add_u32 s{S_HK}, s{S_HK}, 0x40000"
    def rdW(p, ns, j):
        r = wf((p >> 1) & 1, p & 1, ns) + 2*j
        return (f"ds_read_b64_tr_b16 {vr(r,2)}, v{VA+ns} offset:{(p % U)*4096 + j*2048}", "lg", ("W", (p >> 1) & 1, p & 1, ns), p)
    def emit(o, t):
        if t == "NOP": t = "s_nop 0"
        if isinstance(t, tuple) and t[1] == "vm" and mainflag.get("on"):
            if ("noH" in abl or "noO" in abl and "sc1" in t[0]) and t[2][0] == "H": return
            if "noW" in abl and t[2] == "W": return
        if isinstance(t, tuple):
            o(t[0]); (vq if t[1] == "vm" else lq).push(t[2])
            if t[1] == "vm": mark["n"] += 1; ev["vm"].append(t[3] if len(t) > 3 else None)
            else: ev["lg"].append(t[3] if len(t) > 3 else None)
            if len(t) > 3:
                n = t[3]
                if t[1] == "vm":
                    if n >= RW: assert n - RW in ev["free"], ("W ring overwritten early", n)
                else: assert n in ev["cert"], ("W unit read before certified", n)
        else: o(t)
    N01 = 10 if merged else 9
    R0 = 20 if merged else 0
    def first_loads():
        for t in dKV(): emit(a, t)
        if not merged:
            for t in dW3(0): emit(a, t)
        if not merged or "both" in abl:
            for n in range(2):
                for ts in range(2): emit(a, ldH(n, ts, False))
            a(HADD)
        if not merged:
            for t in dW3(3): emit(a, t)
        for t in dKV(): emit(a, t)
        return len(vq.q)
    if merged:
        a(f"""
        s_waitcnt vmcnt(0)
        s_barrier
        s_cmp_lg_u32 s{S_W}, 0
        s_cbranch_scc1 {name}_G_nosig
        v_mov_b32 v97, 1
        buffer_store_dword v97, v96, s[{SRD_WS}:{SRD_WS+3}], 0 offen sc1
        {name}_G_nosig:
        s_mov_b32 s{S_WK}, {hx(10*65536)}
        """)
        ev["cert"] |= set(range(10))
    else: nfirst = first_loads()
    a(f"""
    s_mov_b32 s{SRD_WO}, s28
    s_mov_b32 s{SRD_WO+1}, s29
    s_mov_b32 s{SRD_OUT}, s30
    s_mov_b32 s{SRD_OUT+1}, s31
    v_lshrrev_b32 v{VT}, 2, v0
    v_bfe_u32 v{VT+1}, v0, 3, 2
    v_lshlrev_b32 v{VT}, 7, v{VT}
    v_lshl_add_u32 v{VT}, v{VT+1}, 5, v{VT}
    v_and_b32 v{VT+1}, 3, v0
    v_lshl_add_u32 v{VA}, v{VT+1}, 3, v{VT}
    v_add_u32 v{VA}, {hx(R0*4096)}, v{VA}
    v_xor_b32 v{VA+1}, 32, v{VA}
    v_xor_b32 v{VA+2}, 64, v{VA}
    v_xor_b32 v{VA+3}, 0x60, v{VA}
    v_mov_b32 v{VT}, {hx(CNT_LDS)}
    v_mov_b32 v{VT+1}, 0
    ds_write_b32 v{VT}, v{VT+1}
    s_lshl_b32 s4, s{S_W}, 8
    s_add_u32 s4, s4, {hx(PROG)}
    v_lshl_add_u32 v{VSIG}, v0, 2, s4
    v_mov_b32 v{VONE}, 1
    ds_write_b32 v{VSIG}, v{VONE}
    v_and_b32 v{VCHK}, 7, v0
    v_lshlrev_b32 v{VCHK}, 8, v{VCHK}
    v_add_u32 v{VCHK}, {hx(PROG)}, v{VCHK}
    v_mov_b32 v{VONE}, 1
    v_bfe_u32 v{VNEED}, v0, 2, 1
    v_sub_u32 v{VNEED}, 1, v{VNEED}
    v_and_b32 v{VT+3}, 15, v0
    v_lshlrev_b32 v{VT+3}, 3, v{VT+3}
    s_mov_b32 s{S_RD}, {hx(R0*4096)}
    v_mov_b32 v{V3}, 3
    s_lshl_b32 s4, s{S_MI}, 7
    s_add_u32 s4, s4, {hx(WS_FLAG)}
    v_and_b32 v{VFA}, 15, v0
    v_lshl_add_u32 v{VFA}, v{VFA}, 2, s4
    s_mov_b32 s{S_CU}, {hx(U*4096)}
    """)
    if merged:
        a(f"""
        s_cmp_lg_u32 s{S_W}, 0
        s_cbranch_scc1 {name}_G_p1ok
        s_lshr_b32 s4, s{S_MI}, 1
        s_lshl_b32 s4, s4, 7
        s_add_u32 s4, s4, {hx(WS_F1)}
        s_and_b32 s5, s2, 7
        s_lshl_b32 s5, s5, 7
        s_add_u32 s5, s5, {hx(WS_FQ - 128)}
        v_mov_b32 v{VT}, s4
        v_mov_b32 v{VT+1}, s5
        v_cmp_gt_u32 vcc, 32, v0
        s_mov_b32 s5, 0x400000
        s_nop 0
        v_cndmask_b32 v{VT}, v{VT+1}, v{VT}, vcc
        v_lshl_add_u32 v{VT}, v0, 2, v{VT}
        {name}_G_p1:
        buffer_load_dword v{VT+1}, v{VT}, s[{SRD_WS}:{SRD_WS+3}], 0 offen sc1
        s_waitcnt vmcnt(0)
        v_cmp_eq_u32 vcc, 0, v{VT+1}
        s_sub_u32 s5, s5, 1
        s_cbranch_scc1 {name}_G_p1ok
        {"s_cbranch_vccnz " + name + "_G_p1" if "both" in abl else "s_cmp_lg_u32 vcc_hi, 0"}
        {"" if "both" in abl else "s_cbranch_scc1 " + name + "_G_p1"}
        {name}_G_p1ok:
        s_waitcnt lgkmcnt(0)
        s_barrier
        """)
        nfirst = first_loads()
    for i in range(32): a(f"v_mov_b32 v{ACC+i}, 0")
    stp(a, 8)
    n = len(vq.q) - nfirst; vq.q = vq.q[nfirst:]
    a(f"s_waitcnt vmcnt({n}) lgkmcnt(0)\ns_barrier")
    stp(a, 9)
    ev["cert"] |= set(range(6))
    if merged and "both" not in abl:
        a(f"""
        s_lshr_b32 s4, s{S_MI}, 1
        s_lshl_b32 s4, s4, 7
        s_add_u32 s4, s4, {hx(WS_F1)}
        v_and_b32 v{VT}, 31, v0
        v_lshlrev_b32 v{VT}, 2, v{VT}
        s_mov_b32 s5, 0x400000
        {name}_G_p2:
        buffer_load_dword v{VT+1}, v{VT}, s[{SRD_WS}:{SRD_WS+3}], s4 offen sc1
        s_waitcnt vmcnt(0)
        v_cmp_eq_u32 vcc, 0, v{VT+1}
        s_sub_u32 s5, s5, 1
        s_cbranch_scc1 {name}_G_p2ok
        s_cbranch_vccnz {name}_G_p2
        {name}_G_p2ok:
        """)
        for n in range(2):
            for ts in range(2): emit(a, ldH(n, ts, False))
        a(HADD)
    gslow = Asm(); sites = [0]
    def sync_signal(o, big=False, strict=False):
        n = min(mark["n"], len(vq.q))
        if big: n = min(n, len(vq.q) - 1 - max(i for i, t in enumerate(vq.q) if t == "KV"))
        if strict and "W" in vq.q: n = min(n, len(vq.q) - 1 - max(i for i, t in enumerate(vq.q) if t == "W"))
        vq.q = vq.q[len(vq.q)-n:]
        o(f"s_waitcnt vmcnt({n})")
        mark["n"] = 0
        ev["pc"] = set(ev["vm"][:len(ev["vm"])-len(vq.q)])
        done = ev["lg"][:len(ev["lg"])-len(lq.q)]
        ev["pf"] = {u for u in set(done) if u is not None and done.count(u) == 8}
        if nosync: return
        emit(o, (f"ds_add_u32 v{VSIG}, v{V3 if big else VONE}", "lg", "sig"))
        o(f"v_add_u32 v{VNEED}, {3 if big else 1}, v{VNEED}")
        if big:
            o(f"v_and_b32 v{VCHK}, {hx(~0x400)}, v{VCHK}")
            if GP2: o(f"s_setprio {GP2}")
    CNTRD = (f"ds_read_b32 v{VCNT}, v{VCHK}", "lg", "cnt")
    def sync_check(o):
        ev["cert"] |= ev["pc"]; ev["free"] |= ev["pf"]
        if nosync: return
        if "cnt" in lq.q: o(f"s_waitcnt lgkmcnt({lq.need(['cnt'])})")
        lab = f"{name}_G_w{sites[0]}"; sites[0] += 1
        o(f"v_cmp_gt_i32 vcc, v{VNEED}, v{VCNT}\ns_nop 0\ns_cbranch_vccnz {lab}"); o.lab(lab + "r")
        gslow(f"""
        {lab}:
        s_sleep 1
        ds_read_b32 v{VCNT}, v{VCHK}
        s_waitcnt lgkmcnt(0)
        v_cmp_gt_i32 vcc, v{VNEED}, v{VCNT}
        s_nop 4
        s_cbranch_vccnz {lab}
        s_branch {lab}r
        """)
    mark["n"] = 0
    NSO = (0, 1, 2, 3)
    for ns in NSO:
        for e in range(2):
            for j in range(2): emit(a, rdW(e, ns, j))
    for n in range(2, 4):
        for ts in range(2): emit(a, ldH(n, ts, False))
    a(HADD)
    for t in dKV() + ([] if merged else dW3(6)): emit(a, t)
    for ts in range(2):
        emit(a, (f"buffer_load_dword v{V1G+2*ts}, v{VT+3}, s[{SRD_WS}:{SRD_WS+3}], s{S_T+2} offen offset:{128*ts}" + SC1, "vm", "g"))
    stp(a, 4); stp(a, 5, True)

    def block(o, n0, par0, nun=U, syncs=(0, 20, 40, 60), extra=None, loads=None, scale_after=None, pre=None, big=None, strict=None, early=None):
        extra = extra or {}; pre = pre or {}
        loads = loads or (lambda n, ts: ldH(n+HD, ts, False))
        fill = {}
        def put(m, t): fill.setdefault(m, []).append(t)
        for pp in range(nun//2):
            p = 2*pp; n = n0 + p; m0 = 16*pp
            if p == U-2:
                put(m0-2, f"s_cmp_eq_u32 s{S_RD}, {hx((RW-U)*4096)}"); put(m0-2, f"s_cselect_b32 s{S_T+1}, {hx(-(RW-U)*4096)}, s{S_CU}")
                put(m0-1, "ADV"); put(m0, f"s_add_u32 s{S_RD}, s{S_RD}, s{S_T+1}")
            if n + 2 < 144:
                i = 0
                for ns in NSO:
                    for e in range(2):
                        for j in range(2):
                            r = rdW(p+2+e + (2*U if False else 0), ns, j)
                            par = (par0 + pp + 1) & 1
                            reg = wf(par, e, ns) + 2*j
                            put(m0 + i, (f"ds_read_b64_tr_b16 {vr(reg,2)}, v{VA+ns} offset:{((p+2+e) % U)*4096 + j*2048}", "lg", ("W", par, e, ns), n+2+e))
                            i += 1
            if early and pp in early:
                q = early[pp]
                for i, (e, ts) in enumerate(((0,0),(1,0),(0,1),(1,1))): put(m0 + 1 + i, ldH(q+e, ts, False))
                put(m0 + 4, HADD)
            any_l = False
            for ts in range(2):
                for e in range(2):
                    l = loads(n+e, ts)
                    if l: put(m0 + (8+e if ts == 0 else 15), l); any_l = True
            if any_l: put(m0 + 15, HADD)
        for s_ in syncs:
            if not nosync: put(s_ + 4, CNTRD)
            put(s_ + 7, "CHECK")
        for m, l in extra.items():
            k = m
            for t in l:
                if t == "NOP": k += 1; continue
                put(k, t)
                if isinstance(t, tuple): k += 1
        for pp in range(nun//2):
            p = 2*pp; n = n0 + p; par = (par0 + pp) & 1
            if n in pre: pre[n](o)
            i = 0
            for ts in range(2):
                for c in range(4):
                    ns = c if ts == 0 else 3-c
                    for e0 in range(2):
                        e = e0 if c % 2 == 0 else 1-e0
                        m = 16*pp + i
                        if m in syncs: sync_signal(o, big == m, strict == m)
                        w = []
                        tg = [("H", (n+e) % HD, ts)]
                        if any(t in vq.q for t in tg): w.append(f"vmcnt({vq.need(tg)})")
                        tg = [("W", par, 0, ns), ("W", par, 1, ns)]
                        if any(t in lq.q for t in tg): w.append(f"lgkmcnt({lq.need(tg)})")
                        if w: o("s_waitcnt " + " ".join(w))
                        if not ("noGM" in abl and mainflag.get("on")):
                            o(m16(ACC + 16*ts + 4*ns, wf(par, e, ns), hf(n+e, ts)))
                        for x in fill.get(m, []):
                            if x == "CHECK": sync_check(o)
                            elif x == "ADV":
                                for k in range(4): o(f"v_add_u32 v{VA+k}, s{S_T+1}, v{VA+k}")
                            else: emit(o, x)
                        i += 1
            if scale_after == n+1:
                if "g" in vq.q: o(f"s_waitcnt vmcnt({vq.need(['g'])})")
                o("s_nop 7")
                for i in range(16): o(f"v_pk_mul_f32 {vr(ACC+2*i,2)}, {vr(ACC+2*i,2)}, {vr(V1G+2*(i>>3),2)} op_sel_hi:[1,0]")
                o("s_nop 1")
    mainx = lambda b: {s_+8: dKV() + dW3(N01 + 12*b + 3*i) for i, s_ in enumerate((0, 20, 40, 60))}
    mainflag['on'] = True
    first = {0: 6, 1: 10, 2: 14}
    block(a, 0, 0, extra=mainx(0), early={0: 4, 1: 8, 2: 12},
          loads=lambda n, ts: ldH(first[n//2] + (n & 1), ts, False) if n < 6 else ldH(n+HD, ts, False))
    keep = list(gslow.l); st0 = (list(vq.q), list(lq.q), mark["n"])
    b0 = Asm()
    for b in range(1, 5): block(b0, 10*b, b & 1, extra=mainx(b))
    gslow.l = keep
    sq = (list(vq.q), list(lq.q), mark["n"])
    assert sq[1:] == st0[1:] and len(st0[0]) >= len(sq[0]) and st0[0][len(st0[0])-len(sq[0]):] == sq[0], (st0, sq)
    b1 = Asm(); block(b1, 50, 1, extra=mainx(5)); block(b1, 60, 0, extra=mainx(6))
    assert (list(vq.q), list(lq.q), mark["n"]) == sq
    a(f"s_mov_b32 s{S_CNT}, 2")
    a.raw(".p2align 6")
    a.raw(f"{name}_G_loop:")
    a.l += b1.l
    a(f"s_sub_u32 s{S_CNT}, s{S_CNT}, 1\ns_cbranch_scc0 {name}_G_loop")
    if "cpf2" in abl:
        a(f"""
        s_getpc_b64 s[4:5]
        {name}_pc2:
        s_lshl_b32 s6, s{S_W}, 13
        v_lshl_add_u32 v{VT}, v0, 7, s6
        v_min_u32 v{VT}, {name}_end-{name}_pc2, v{VT}
        """)
        emit(a, (f"global_load_dword v{VT+1}, v{VT}, s[4:5]", "vm", "c"))
    block(a, 70, 1, syncs=(0, 20, 48), big=20, extra={8: dKV() + dW3(N01+84), 28: dW3(N01+87), 56: dW3(N01+90) + dW3(N01+93)})
    mainflag['on'] = False
    stp(a, 6); stp(a, 7, True)
    FLD = (f"buffer_load_dword v{VFV}, v{VFA}, s[{SRD_WS}:{SRD_WS+3}], 0 offen sc1", "vm", "flag")
    def flagwait(o):
        stp(o, 10)
        if "flag" in vq.q: o(f"s_waitcnt vmcnt({vq.need(['flag'])})")
        o(f"""
        v_cmp_ne_u32 vcc, 0, v{VFV}
        s_lshl_b32 s{S_HK}, s{S_MT32}, 11
        s_add_u32 s{S_HK}, s{S_HK}, {hx(WS_O)}
        s_cmp_eq_u64 vcc, -1
        s_cbranch_scc0 {name}_G_poll
        {name}_G_go:
        """)
        gslow(f"""
        {name}_G_poll:
        s_mov_b32 s5, 0x400000
        {name}_G_poll1:
        buffer_load_dword v{VFV}, v{VFA}, s[{SRD_WS}:{SRD_WS+3}], 0 offen sc1
        s_waitcnt vmcnt(0)
        v_cmp_ne_u32 vcc, 0, v{VFV}
        s_sub_u32 s5, s5, 1
        s_cbranch_scc1 {name}_G_go
        s_cmp_eq_u64 vcc, -1
        s_cbranch_scc1 {name}_G_go
        s_sleep 1
        s_branch {name}_G_poll1
        """)
        stp(o, 11)
        for m in range(112, FLAGU + HD):
            for ts in range(2): emit(o, ldH(m, ts, True))
            if m & 1: o(HADD)
    def tl(n, ts):
        m = n + HD
        if m < 112: return ldH(m, ts, False)
        if n < FLAGU or m > 143: return None
        return ldH(m, ts, True)
    nxt = [N01+96]
    def wd(k):
        r = []
        for _ in range(k):
            if nxt[0] > 143: break
            r += dW1(nxt[0]) + ["NOP"]*4; nxt[0] += 1
        return r
    pre = {FLAGU: flagwait}
    if GP2: pre[GPU_] = lambda o: o(f"s_setprio {prioG}")
    for i, n0 in enumerate(range(80, 144, 10)):
        if stamp: a(f"s_memtime s[4:5]\ns_waitcnt lgkmcnt(0)\nv_writelane_b32 v210, s4, {i}")
        ex = {8: wd(4 if (merged and n0 == 80) else 5), 48: wd(5)}
        if n0 <= FLAGU-4 < n0+10: ex[8*(FLAGU-4-n0) + 2] = [FLD]
        sy = (0, 40) if n0 < 120 else ((16,) if n0 == 120 else ())
        block(a, n0, i & 1, nun=min(U, 144-n0), syncs=sy, strict=(16 if n0 == 120 else None), extra=ex, loads=tl, scale_after=111, pre=pre)
    stp(a, 12)
    a(f"""
    v_and_b32 v{VT}, 15, v0
    v_lshlrev_b32 v{VT}, 11, v{VT}
    v_bfe_u32 v{VT+1}, v0, 4, 1
    v_lshl_add_u32 v{VT}, v{VT+1}, 5, v{VT}
    v_lshrrev_b32 v{VT+1}, 5, v0
    v_lshl_add_u32 v{VT}, v{VT+1}, 4, v{VT}
    v_add_u32 v{VT+1}, 0x8000, v{VT}
    s_lshl_b32 s4, s{S_MT32}, 16
    s_lshl_b32 s5, s{S_NI}, 7
    s_add_u32 s4, s4, s5
    """)
    for ts in (1, 0):
        for p in (1, 0):
            r = WF + (ts*2+p)*4
            for i in range(4): a(f"v_cvt_pk_bf16_f32 v{r+i}, v{ACC+16*ts+8*p+2*i}, v{ACC+16*ts+8*p+2*i+1}")
            a("s_nop 1")
            a(f"v_permlane16_swap_b32 v{r}, v{r+2}\nv_permlane16_swap_b32 v{r+1}, v{r+3}")
            a(f"buffer_store_dwordx4 {vr(r,4)}, v{VT+ts}, s[{SRD_OUT}:{SRD_OUT+3}], s4 offen offset:{64*p}" + (" sc1" if "osc1" in abl else "") + (" nt" if "ont" in abl else ""))
    a(f"s_branch {name}_fin")
    a.l += gslow.l
    a.raw(f"{name}_fin:")
    if stamp:
        T = 220
        a("s_waitcnt vmcnt(0)")
        stp(a, 13); stp(a, 14, True)
        a(f"""
        s_lshl_b32 s4, s2, 3
        s_add_u32 s4, s4, s{S_WAVE}
        s_lshl_b32 s4, s4, 6
        s_add_u32 s4, s4, {hx(0x1E80000)}
        s_mov_b64 exec, -1
        v_mov_b32 v219, 0
        """)
        for i, (r, rel) in enumerate([(4,1),(6,1),(13,1),(2,0),(14,0),(0,0),(5,0),(7,0),(8,1),(9,1),(10,1),(11,1),(12,1)]):
            if rel: a(f"s_sub_u32 s{ST+r}, s{ST+r}, s{ST}")
            a(f"v_mov_b32 v{T+i}, s{ST+r}")
        a(f"v_lshlrev_b32 v218, 2, v0\ns_add_u32 s5, s4, 0x40000\ns_mov_b64 exec, 0xffff\ns_cmp_ge_u32 s{S_WAVE}, 4\ns_cselect_b64 vcc, -1, 0\nv_cndmask_b32 v198, v198, v210, vcc\nbuffer_store_dword v198, v218, s[{SRD_WS}:{SRD_WS+3}], s5 offen")
        a("s_mov_b64 exec, 1")
        for i in range(4):
            a(f"buffer_store_dwordx4 v[{T+4*i}:{T+4*i+3}], v219, s[{SRD_WS}:{SRD_WS+3}], s4 offen offset:{16*i}")
    a.raw(f"{name}_end:")
    a("s_endpgm")
    return a.text()
```

```python
import sys
from common import *
import k1v8 as k1, k2v9 as k2
KN = "gated_mix__grouped_kv_mqa__glu_gated_glu__prompt_kernel"
def build(stamp=False, o1=(), o2=(), merged=False):
    s = open("gated_mix__grouped_kv_mqa__glu_gated_glu__prompt.s.ref").read().split("; Override launch")[0]
    if merged:
        s += "; @launch grid=(256,1,1) block=(512,1,1) lds=163840\n"
        s += '.amdgcn_target "amdgcn-amd-amdhsa--gfx950"\n.text\n'
        t = k1.gen_k1(stamp=stamp, abl=o1, merged=True) + k2.gen_k2(stamp=stamp, abl=o2, merged=True)
        t = t.replace("k1_kernel_", "p1_").replace("k2_kernel", "p2").replace("k1_kernel", KN)
        return s + t + kernel_desc(KN)
    s += "; @launch kernel=k1_kernel grid=(256,1,1) block=(512,1,1) lds=163840\n"
    s += "; @launch kernel=k2_kernel grid=(256,1,1) block=(512,1,1) lds=163840\n"
    s += '.amdgcn_target "amdgcn-amd-amdhsa--gfx950"\n.text\n'
    s += k1.gen_k1(stamp=stamp, abl=o1) + k2.gen_k2(stamp=stamp, abl=o2)
    s += kernel_desc("k1_kernel") + kernel_desc("k2_kernel")
    return s
if __name__ == "__main__":
    args = sys.argv[2:]
    o1 = [x[2:] for x in args if x.startswith("1:")]; o2 = [x[2:] for x in args if x.startswith("2:")]
    open(sys.argv[1], "w").write(build("stamp" in args, o1, o2, "merged" in args))
```

```python
from common import *

XSZ = 32768
WB = 98304; WSZ = 32768
KVB = 65536; KVSZ = 8192
K1_LDS = 163840

V_X0, V_X1, V_W0, V_W1, V_KV = 1, 2, 3, 4, 5
V_DX = 6
V_DW = 8
V_DKV = 12
V_P, V_PD, V_GA, V_GO, V_GX, V_GW, V_GZ = 6, 7, 8, 9, 10, 11, 12
V_GT = 14
V_ST, V_ST2 = 14, 15
KVW = 16
KVA = 24
WF = 32
XF = 96
ACC = 128
def acc(u, s): return ACC + (u*4+s)*4
def wf(st, s, kh): return WF + st*32 + s*8 + kh*4
def xf(u, kh): return XF + (u & 3)*8 + kh*4

S_WAVE = 3
SRD_X, SRD_W0, SRD_W1, SRD_K, SRD_V, SRD_WS, SRD_G, SRD_P = 8, 12, 16, 20, 24, 44, 48, 52
S_MT, S_NT, S_Q, S_WM, S_WN = 56, 57, 58, 59, 60
S_XA = 61
S_WK, S_KVK, S_WSTEP = 65, 66, 67
S_XT, S_XT1, S_XT2 = 68, 69, 70
S_WT, S_KVT = 71, 72
S_D, S_D2, S_CNT, S_C32 = 73, 74, 75, 76
S_PK, S_PSTEP, S_GK, S_MSK = 77, 78, 79, 80
S_ROT = 81
S_E0, S_E1, S_E2, S_E3 = 82, 83, 84, 85
ST = 86

def gen_k1(name="k1_kernel", stamp=False, abl=(), merged=False):
    PD = 1
    for x in abl:
        if x.startswith("pd"): PD = int(x[2:])
    pf = "nopf" not in abl
    NUPF = 10; NUPQ = 14; NPK = 3; NE = 0
    for x in abl:
        if x.startswith("ne"): NE = int(x[2:])
        if x.startswith("npk"): NPK = int(x[3:])
        if x.startswith("upf"): NUPF = int(x[3:])
        if x.startswith("upq"): NUPQ = int(x[3:])
    uniq = "uniq" in abl
    SCM = " sc1" if merged else ""
    SC = SCM if merged else (" sc0" if "ssc0" in abl else "") + (" sc1" if "ssc1" in abl else "") + (" nt" if "snt" in abl else "")
    a = Asm()
    def stp(o, i, real=False):
        if stamp:
            o(f"{'s_memrealtime' if real else 's_memtime'} s[4:5]\ns_waitcnt lgkmcnt(0)\ns_mov_b32 s{ST+i}, s4")
    T = 96
    END = "k2_kernel_end" if merged else f"{name}_end"
    a.raw(f".globl {name}\n.p2align 8\n.type {name},@function\n{name}:")
    if stamp: a(f"s_memtime s[{ST}:{ST+1}]\ns_memrealtime s[{ST+2}:{ST+3}]")
    a(f"""
    s_load_dwordx4 s[28:31], s[0:1], 0
    s_load_dwordx4 s[36:39], s[0:1], 48
    s_load_dwordx4 s[32:35], s[0:1], 16
    s_load_dwordx2 s[40:41], s[0:1], 72
    s_load_dwordx2 s[42:43], s[0:1], 96
    """)
    CW = 8
    for x in abl:
        if x.startswith("cw"): CW = int(x[2:])
    if "nocpf" not in abl:
        a(f"""
        s_cmp_ge_u32 s2, {CW}
        s_cbranch_scc1 {name}_nocpf
        s_getpc_b64 s[4:5]
        {name}_pc:
        s_sub_u32 s4, s4, {name}_pc-{name}
        s_subb_u32 s5, s5, 0
        v_lshlrev_b32 v2, 7, v0
        v_min_u32 v3, k2_kernel_end-{name}, v2
        global_load_dword v255, v3, s[4:5]
        v_add_u32 v2, 0x10000, v2
        v_min_u32 v3, k2_kernel_end-{name}, v2
        global_load_dword v255, v3, s[4:5]
        {name}_nocpf:
        """)
    a(f"""
    s_cmp_ge_u32 s2, 256
    s_cbranch_scc1 {END}
    v_lshrrev_b32 v1, 6, v0
    v_and_b32 v0, 63, v0
    v_readfirstlane_b32 s{S_WAVE}, v1
    s_and_b32 s4, s2, 7
    s_lshr_b32 s5, s2, 3
    """)
    if "x84" in abl:
        a(f"""
        s_and_b32 s{S_MT}, s5, 7
        s_lshr_b32 s5, s5, 3
        s_mul_i32 s6, s4, 3
        s_add_u32 s6, s6, s5
        s_add_u32 s7, s4, 28
        s_cmp_eq_u32 s5, 3
        s_cselect_b32 s6, s7, s6
        s_lshl_b32 s7, s4, 2
        s_add_u32 s7, s7, s5
        s_sub_u32 s7, s7, 4
        s_cmp_lt_u32 s4, 4
        s_cselect_b32 s{S_NT}, s6, s7
        """)
    else:
        a(f"""
        s_and_b32 s6, s4, 1
        s_lshl_b32 s6, s6, 2
        s_and_b32 s7, s5, 3
        s_add_u32 s{S_MT}, s6, s7
        s_lshr_b32 s4, s4, 1
        s_lshr_b32 s5, s5, 2
        s_add_u32 s6, s4, 28
        s_mul_i32 s4, s4, 7
        s_add_u32 s4, s4, s5
        s_cmp_eq_u32 s5, 7
        s_cselect_b32 s{S_NT}, s6, s4
        """)
    a(f"""
    s_lshr_b32 s{S_WM}, s{S_WAVE}, 2
    s_and_b32 s{S_WN}, s{S_WAVE}, 3
    s_sub_u32 s{S_Q}, s{S_NT}, 28
    s_cselect_b32 s{S_Q}, 0, s{S_Q}
    s_cselect_b32 s4, 7168, 0
    s_cselect_b32 s5, 0, 2048
    s_add_u32 s4, s4, s5
    s_lshl_b32 s5, s{S_NT}, 8
    s_lshl_b32 s6, s{S_Q}, 9
    s_cmp_ge_u32 s{S_NT}, 28
    s_cselect_b32 s5, s6, s5
    s_lshl_b32 s{S_WSTEP}, s4, 6
    s_mov_b32 s{SRD_X+2}, 0x400000
    s_mov_b32 s{SRD_X+3}, 0x20000
    s_mov_b32 s{SRD_W0+3}, 0x20000
    s_mov_b32 s{SRD_W1+3}, 0x20000
    s_mov_b32 s{SRD_WS+2}, {hx(WS_SIZE)}
    s_mov_b32 s{SRD_WS+3}, 0x20000
    s_mov_b32 s{S_C32}, {hx(XSZ)}
    s_cmp_lt_u32 s{S_WAVE}, 4
    s_cbranch_scc1 {name}_cpro
    """)
    def srd_w(o):
        o(f"""
        s_add_u32 s6, s30, 256
        s_addc_u32 s7, s31, 0
        s_cmp_ge_u32 s{S_NT}, 28
        s_cselect_b32 s{SRD_W0}, s30, s36
        s_cselect_b32 s{SRD_W0+1}, s31, s37
        s_cselect_b32 s{SRD_W1}, s6, s38
        s_cselect_b32 s{SRD_W1+1}, s7, s39
        s_mov_b32 s6, 0x700000
        s_cselect_b32 s{SRD_W0+2}, 0x200000, s6
        s_cselect_b32 s{SRD_W1+2}, 0x1fff00, s6
        s_mov_b32 s{SRD_X}, s28
        s_mov_b32 s{SRD_X+1}, s29
        """)
    def lds_addrs(o):
        o(f"""
        v_and_b32 v{T}, 15, v0
        v_lshrrev_b32 v{T+1}, 4, v0
        s_lshl_b32 s6, s{S_WM}, 14
        v_lshlrev_b32 v{T+2}, 7, v{T}
        v_add_u32 v{T+2}, s6, v{T+2}
        v_lshrrev_b32 v{T+3}, 1, v{T}
        v_xor_b32 v{T+3}, v{T+3}, v{T+1}
        v_lshl_add_u32 v{V_X0}, v{T+3}, 4, v{T+2}
        v_xor_b32 v{V_X1}, 64, v{V_X0}
        v_bfe_u32 v{T+2}, v0, 2, 2
        v_and_b32 v{T+3}, 3, v0
        v_lshl_add_u32 v{T+4}, v{T+1}, 3, v{T+2}
        v_and_b32 v{T+5}, 1, v{T+1}
        v_lshl_or_b32 v{T+6}, v{T+5}, 2, v{T+2}
        s_lshl_b32 s6, s{S_WN}, 1
        v_xor_b32 v{T+6}, s6, v{T+6}
        v_lshlrev_b32 v{T+6}, 5, v{T+6}
        v_lshl_add_u32 v{T+6}, v{T+4}, 8, v{T+6}
        v_lshl_add_u32 v{T+6}, v{T+3}, 3, v{T+6}
        v_add_u32 v{V_W0}, {hx(WB)}, v{T+6}
        v_xor_b32 v{V_W1}, 32, v{V_W0}
        s_and_b32 s6, s{S_WN}, 1
        v_xor_b32 v{T+5}, s6, v{T+5}
        v_lshlrev_b32 v{T+5}, 5, v{T+5}
        v_lshl_add_u32 v{T+5}, v{T+4}, 6, v{T+5}
        v_lshl_add_u32 v{T+5}, v{T+3}, 3, v{T+5}
        s_lshr_b32 s6, s{S_WN}, 1
        s_lshl_b32 s6, s6, 12
        s_add_u32 s6, s6, {hx(KVB)}
        v_add_u32 v{V_KV}, s6, v{T+5}
        s_mov_b32 s{SRD_WS}, s42
        s_mov_b32 s{SRD_WS+1}, s43
        s_mov_b32 s{S_XT1}, {hx(XSZ)}
        s_mov_b32 s{S_XT2}, {hx(2*XSZ)}
        """)
    def flag_addrs(o, v, t, with_o):
        o(f"""
        s_lshl_b32 s4, s{S_MT}, 2
        s_add_u32 s4, s4, s{S_Q}
        s_lshl_b32 s4, s4, 2
        s_add_u32 s4, s4, {hx(WS_FQ - 256)}
        v_lshl_add_u32 v{t}, v0, 7, s4
        s_cmp_ge_u32 s{S_NT}, 28
        s_cselect_b32 s5, 10, 2
        v_mov_b32 v{v}, 0x7fffff00
        v_cmp_gt_u32 vcc, s5, v0
        s_lshl_b32 s4, s{S_MT}, 5
        s_add_u32 s4, s4, s{S_NT}
        v_cndmask_b32 v{v}, v{v}, v{t}, vcc
        s_lshl_b32 s4, s4, 2
        s_add_u32 s4, s4, {hx(WS_F1)}
        v_writelane_b32 v{v}, s4, 1
        """)
        if with_o:
            o(f"""
            s_and_b32 s4, s2, 7
            s_lshr_b32 s5, s2, 3
            s_lshr_b32 s6, s4, 1
            s_lshl_b32 s6, s6, 2
            s_and_b32 s7, s5, 3
            s_add_u32 s6, s6, s7
            s_and_b32 s4, s4, 1
            s_lshl_b32 s4, s4, 3
            s_lshr_b32 s5, s5, 2
            s_add_u32 s4, s4, s5
            s_lshl_b32 s6, s6, 5
            s_add_u32 s4, s4, s6
            s_lshl_b32 s4, s4, 2
            s_add_u32 s4, s4, {hx(WS_FLAG)}
            """)
        else: o("s_mov_b32 s4, 0x7fffff00")
        o(f"v_writelane_b32 v{v}, s4, 0")
    def dispatch(o, h):
        o(f"""
        s_cmp_lt_u32 s{S_NT}, 28
        s_cbranch_scc1 {name}_F{h}
        s_cmp_lt_u32 s{S_WN}, 2
        s_cbranch_scc1 {name}_K{h}
        s_branch {name}_V{h}
        """)
    a(f"""
    v_lshrrev_b32 v{T}, 3, v0
    v_lshrrev_b32 v{T+1}, 4, v0
    v_and_b32 v{T+2}, 7, v0
    v_lshlrev_b32 v{T}, 11, v{T}
    v_xor_b32 v{T+2}, v{T+1}, v{T+2}
    v_lshl_add_u32 v{V_DX}, v{T+2}, 4, v{T}
    v_xor_b32 v{V_DX+1}, 64, v{V_DX}
    v_add_u32 v{V_DX+1}, 0x4000, v{V_DX+1}
    s_lshl_b32 s6, s{S_WN}, 4
    v_add_u32 v{T+3}, s6, v{T+1}
    v_mul_lo_u32 v{T+3}, v{T+3}, s4
    v_bfe_u32 v{T+2}, v0, 1, 3
    v_xor_b32 v{T}, v{T+1}, v{T+2}
    v_lshlrev_b32 v{T}, 5, v{T}
    v_and_b32 v{T+2}, 1, v0
    v_lshl_add_u32 v{T}, v{T+2}, 4, v{T}
    v_add3_u32 v{V_DW}, v{T}, v{T+3}, s5
    s_lshl_b32 s6, s4, 2
    v_add_u32 v{V_DW+1}, s6, v{V_DW}
    v_xor_b32 v{T}, 0x80, v{T}
    v_add3_u32 v{V_DW+2}, v{T}, v{T+3}, s5
    s_lshl_b32 s7, s4, 3
    v_add_u32 v{V_DW+2}, s7, v{V_DW+2}
    v_add_u32 v{V_DW+3}, s6, v{V_DW+2}
    s_lshl_b32 s6, s{S_WN}, 1
    s_and_b32 s7, s6, 2
    s_add_u32 s7, s7, s{S_Q}
    s_and_b32 s6, s6, 4
    s_lshl_b32 s4, s{S_MT}, 3
    s_add_u32 s6, s6, s4
    s_and_b32 s4, s7, 3
    s_add_u32 s4, s4, s6
    s_lshl_b32 s{S_XA}, s4, 16
    s_add_u32 s7, s7, 1
    s_and_b32 s4, s7, 3
    s_add_u32 s4, s4, s6
    s_lshl_b32 s{S_XA+2}, s4, 16
    s_add_u32 s{S_XA+1}, s{S_XA}, 0x8000
    s_add_u32 s{S_XA+3}, s{S_XA+2}, 0x8000
    s_lshl_b32 s{S_XT}, s{S_WN}, 13
    s_lshl_b32 s{S_WT}, s{S_WN}, 12
    s_add_u32 s{S_WT}, s{S_WT}, {hx(WB)}
    s_lshl_b32 s{S_KVT}, s{S_WN}, 10
    s_add_u32 s{S_KVT}, s{S_KVT}, {hx(KVB)}
    s_mov_b32 s{S_WK}, 0
    s_mov_b32 s{S_KVK}, 0
    v_lshrrev_b32 v{T}, 2, v0
    s_lshl_b32 s6, s{S_WN}, 4
    v_add_u32 v{T}, s6, v{T}
    v_lshlrev_b32 v{T}, 6, v{T}
    v_lshrrev_b32 v{T+1}, 5, v0
    v_lshlrev_b32 v{T+1}, 1, v{T+1}
    v_and_b32 v{T+2}, 3, v0
    v_xor_b32 v{T+1}, v{T+1}, v{T+2}
    v_lshl_add_u32 v{V_DKV}, v{T+1}, 4, v{T}
    s_mov_b32 s{SRD_K+2}, 0x10000
    s_mov_b32 s{SRD_K+3}, 0x20000
    s_mov_b32 s{SRD_V+2}, 0x10000
    s_mov_b32 s{SRD_V+3}, 0x20000
    s_waitcnt lgkmcnt(0)
    """)
    stp(a, 8)
    srd_w(a)
    a(f"""
    s_mov_b32 s{SRD_K}, s32
    s_mov_b32 s{SRD_K+1}, s33
    s_mov_b32 s{SRD_V}, s34
    s_mov_b32 s{SRD_V+1}, s35
    """)
    def dma(vo, srd, so, mb, mo, post=()):
        pol = " nt" if ("wnt" in abl and srd in (SRD_W0, SRD_W1)) or ("xnt" in abl and srd == SRD_X) else ""
        return [f"s_add_u32 m0, s{mb}, {hx(mo)}" if mo else f"s_mov_b32 m0, s{mb}",
                f"buffer_load_dwordx4 v{vo}, s[{srd}:{srd+3}], s{so} offen{pol} lds"] + list(post)
    def dWl(slot):
        r = []
        for i in range(4):
            r.append(dma(V_DW+i, SRD_W0, S_WK, S_WT, slot*WSZ + i*1024))
            r.append(dma(V_DW+i, SRD_W1, S_WK, S_WT, slot*WSZ + 16384 + i*1024))
        r[-1] += [f"s_add_u32 s{S_WK}, s{S_WK}, s{S_WSTEP}"]
        return r
    def dXl(off):
        return [dma(V_DX+(i & 1), SRD_X, S_XA+(i >> 1), S_XT, off + i*1024,
                    post=([f"s_add_u32 s{S_XA+(i>>1)}, s{S_XA+(i>>1)}, 128"] if i & 1 else [])) for i in range(8)]
    def dKVl(slot):
        return [dma(V_DKV, SRD_K, S_KVK, S_KVT, slot*KVSZ),
                dma(V_DKV, SRD_V, S_KVK, S_KVT, slot*KVSZ+4096, post=[f"s_add_u32 s{S_KVK}, s{S_KVK}, 4096"])]
    def burst(o, l):
        for g in l:
            o(g[0]); o("s_nop 0")
            for t in g[1:]: o(t)
    def dW(o, slot): burst(o, dWl(slot))
    def dX(o, off): burst(o, dXl(off))
    def dKV(o, slot): burst(o, dKVl(slot))
    dW(a, 0); dX(a, 0)
    stp(a, 9)
    if stamp: a(f"s_mov_b32 s{ST+15}, 0")
    lds_addrs(a)
    dispatch(a, "L")
    a.raw(f"{name}_cpro:")
    if "noprio" not in abl: a("s_setprio 1")
    a(f"""
    s_mov_b32 s{SRD_G+2}, 0x800
    s_mov_b32 s{SRD_G+3}, 0x20000
    s_lshl_b32 s4, s{S_NT}, 2
    s_add_u32 s4, s4, s{S_WN}
    s_lshl_b32 s4, s4, 1
    v_lshrrev_b32 v{T}, 5, v0
    v_add_u32 v{T}, s4, v{T}
    s_lshl_b32 s5, s{S_Q}, 5
    v_subrev_u32 v{T+1}, s5, v{T}
    v_and_b32 v{T+1}, 127, v{T+1}
    v_and_b32 v{T}, 128, v{T}
    v_or_b32 v{T}, v{T}, v{T+1}
    v_bfe_u32 v{T+1}, v{T}, 1, 3
    v_bfe_u32 v{T+2}, v0, 2, 3
    v_xor_b32 v{T+1}, v{T+1}, v{T+2}
    v_lshlrev_b32 v{T}, 7, v{T}
    v_lshl_add_u32 v{T}, v{T+1}, 4, v{T}
    v_and_b32 v{T+1}, 3, v0
    v_lshl_add_u32 v{V_GA}, v{T+1}, 2, v{T}
    v_and_b32 v{V_GO}, 31, v0
    v_lshlrev_b32 v{V_GO}, 2, v{V_GO}
    v_mov_b32 v{V_GZ}, 0
    v_mov_b32 v{V_GZ+1}, 0
    s_mov_b32 s{S_MSK}, 0xffff0000
    s_mov_b32 s{S_GK}, 0
    s_mov_b32 s{S_XT}, 0
    s_waitcnt lgkmcnt(0)
    """)
    stp(a, 8)
    a(f"""
    s_mov_b32 s{SRD_G}, s40
    s_mov_b32 s{SRD_G+1}, s41
    buffer_load_dword v{V_GW}, v{V_GO}, s[{SRD_G}:{SRD_G+3}], s{S_GK} offen
    s_add_u32 s{S_GK}, s{S_GK}, 128
    """)
    if "tlb" in abl:
        srd_w(a)
        a(f"""
        s_mov_b32 s{SRD_WS}, s42
        s_mov_b32 s{SRD_WS+1}, s43
        s_mov_b32 s{SRD_W0}, s36
        s_mov_b32 s{SRD_W0+1}, s37
        s_mov_b32 s{SRD_W0+2}, 0x700000
        s_mov_b32 s{SRD_W1}, s38
        s_mov_b32 s{SRD_W1+1}, s39
        s_mov_b32 s{SRD_W1+2}, 0x700000
        v_and_b32 v{T}, 15, v0
        v_lshlrev_b32 v{T}, 21, v{T}
        s_cmp_eq_u32 s{S_WAVE}, 0
        s_cbranch_scc0 {name}_notlb
        buffer_load_dword v{T+1}, v{T}, s[{SRD_W0}:{SRD_W0+3}], 0 offen
        buffer_load_dword v{T+1}, v{T}, s[{SRD_W1}:{SRD_W1+3}], 0 offen
        buffer_load_dword v{T+1}, v{T}, s[{SRD_X}:{SRD_X+3}], 0 offen
        buffer_load_dword v{T+1}, v{T}, s[{SRD_WS}:{SRD_WS+3}], 0 offen
        s_waitcnt vmcnt(0)
        {name}_notlb:
        """)
    stp(a, 9)
    lds_addrs(a)
    if merged:
        a(f"""
        v_mov_b32 v{V_P}, 0x7fffff00
        s_mov_b32 s{S_D}, 0
        s_mov_b32 s{SRD_K}, s42
        s_mov_b32 s{SRD_K+1}, s43
        s_mov_b32 s{SRD_K+2}, 0
        s_mov_b32 s{SRD_K+3}, 0x20000
        s_cmp_lg_u32 s{S_WAVE}, 0
        s_cbranch_scc1 {name}_noclr
        s_load_dwordx2 s[{SRD_K}:{SRD_K+1}], s[0:1], 88
        s_mov_b32 s{SRD_K+2}, 256
        s_mov_b32 s{SRD_K+3}, 0x20000
        """)
        flag_addrs(a, V_P, V_PD, True)
        a(f"""
        s_lshr_b32 s{S_D}, s2, 3
        s_mul_i32 s{S_D}, s{S_D}, 6
        s_lshr_b32 s{S_D}, s{S_D}, 5
        s_add_u32 s{S_D}, s{S_D}, 1
        s_waitcnt lgkmcnt(0)
        {name}_noclr:
        """)
    dispatch(a, "C")

    w2 = "now2" not in abl
    VP, VP2, VPD = 16, 17, 18
    PFL = [[f"s_nop 0", f"buffer_load_dword v{VPD}, v{VP}, s[{SRD_P}:{SRD_P+3}], s{S_PK} offen", f"s_add_u32 s{S_PK}, s{S_PK}, s{S_PSTEP}"]]
    if "pnt" in abl:
        cnt = [0]
        def pfl0():
            cnt[0] += 1; l = f"{name}_pn{cnt[0]}"
            return [f"s_cmp_eq_u32 s{S_D}, 0", f"s_cbranch_scc1 {l}a", f"buffer_load_dword v{VPD}, v{VP}, s[{SRD_P}:{SRD_P+3}], s{S_PK} offen", f"s_branch {l}b", f"{l}a:",
                    f"buffer_load_dword v{VPD}, v{VP}, s[{SRD_P}:{SRD_P+3}], s{S_PK} offen nt", f"{l}b:", f"s_add_u32 s{S_PK}, s{S_PK}, s{S_PSTEP}"]
    else: pfl0 = lambda: PFL[0]
    if w2: PFL.append([f"s_nop 0", f"buffer_load_dword v{VPD}, v{VP2}, s[{SRD_K}:{SRD_K+3}], s{S_KVT} offen", f"s_add_u32 s{S_KVT}, s{S_KVT}, s{S_KVK}"])
    VP3 = 19
    WL = 0
    for x in abl:
        if x.startswith("wl"): WL = int(x[2:])
    if WL: PFL.append([f"s_nop 0", f"buffer_load_dword v{VPD}, v{VP3}, s[{SRD_WS}:{SRD_WS+3}], s{S_GK} offen", f"s_add_u32 s{S_GK}, s{S_GK}, {hx(896*WL*128)}"])
    NPF = len(PFL) if pf else 0
    def p_setup(o):
        T = 20
        o(f"""
        s_load_dwordx2 s[24:25], s[0:1], 64
        s_load_dwordx2 s[26:27], s[0:1], 32
        s_mul_i32 s6, s{S_MT}, 28
        s_add_u32 s6, s6, s{S_NT}
        v_lshrrev_b32 v{T}, 2, v0
        v_lshlrev_b32 v{T}, 7, v{T}
        s_lshl_b32 s7, s6, 11
        v_add_u32 v{T}, s7, v{T}
        v_min_u32 v{T+1}, 9, v0
        s_mul_i32 s7, s6, 10
        v_add_u32 v{T+1}, s7, v{T+1}
        v_min_u32 v{T+1}, 2047, v{T+1}
        v_lshlrev_b32 v{T+1}, 11, v{T+1}
        v_lshrrev_b32 v{VP2}, 3, v0
        v_lshlrev_b32 v{VP2}, 7, v{VP2}
        s_cmp_ge_u32 s6, 128
        s_cselect_b32 s7, 3, 127
        s_and_b32 s7, s7, s6
        s_lshl_b32 s7, s7, 10
        v_add_u32 v{T+2}, s7, v{VP2}
        s_cmp_ge_u32 s6, 128
        s_cselect_b32 s7, 1, 32
        s_lshl_b32 s7, s7, 12
        s_cmp_eq_u32 s{S_WN}, 2
        s_cselect_b64 vcc, -1, 0
        s_cselect_b32 s{S_PSTEP}, 128, s{S_WSTEP}
        v_cndmask_b32 v{VP}, v{T}, v{T+1}, vcc
        s_cselect_b32 s{SRD_P}, s{SRD_X}, s{SRD_W0}
        s_cselect_b32 s{SRD_P+1}, s{SRD_X+1}, s{SRD_W0+1}
        s_cselect_b32 s{SRD_P+2}, s{SRD_X+2}, s{SRD_W0+2}
        s_cmp_eq_u32 s{S_WN}, 1
        s_cselect_b32 s{SRD_P}, s{SRD_W1}, s{SRD_P}
        s_cselect_b32 s{SRD_P+1}, s{SRD_W1+1}, s{SRD_P+1}
        s_cmp_eq_u32 s{S_WN}, 3
        s_cselect_b64 vcc, -1, 0
        s_cselect_b32 s{S_PSTEP}, s7, s{S_PSTEP}
        v_cndmask_b32 v{VP}, v{VP}, v{T+2}, vcc
        s_mul_i32 s{S_PK}, s{S_PSTEP}, {2+PD-NE}
        s_cmp_ge_u32 s6, 132
        s_cselect_b32 s4, s34, s32
        s_cselect_b32 s7, s35, s33
        s_cmp_ge_u32 s6, 136
        s_cselect_b32 s5, 0, 0x10000
        s_cmp_lt_u32 s6, 128
        s_cselect_b32 s4, s30, s4
        s_cselect_b32 s7, s31, s7
        s_cselect_b32 s5, 0x200000, s5
        s_cmp_eq_u32 s{S_WN}, 3
        s_cselect_b32 s{SRD_P}, s4, s{SRD_P}
        s_cselect_b32 s{SRD_P+1}, s7, s{SRD_P+1}
        s_cselect_b32 s{SRD_P+2}, s5, s{SRD_P+2}
        s_mov_b32 s{SRD_P+3}, 0x20000
        s_mul_i32 s4, s6, 3
        s_add_u32 s4, s4, s{S_WN}
        s_mov_b32 s5, 0x700000
        s_mov_b32 s7, {672*1024}
        """)
        if "x84" in abl:
            o(f"""
            v_lshrrev_b32 v{T}, 3, v0
            s_lshl_b32 s5, s{S_MT}, 3
            v_add_u32 v{T}, s5, v{T}
            v_mul_u32_u24 v{T}, 7168, v{T}
            v_bfe_u32 v{T+1}, v0, 2, 1
            v_lshl_add_u32 v{T}, v{T+1}, 7, v{T}
            s_lshl_b32 s5, s{S_NT}, 8
            v_add_u32 v{T}, s5, v{T}
            s_cmp_lt_u32 s{S_WN}, 2
            s_cselect_b64 vcc, -1, 0
            s_lshr_b32 s5, s2, 3
            v_cndmask_b32 v{VP}, v{VP}, v{T}, vcc
            s_mul_i32 s5, s5, 3
            v_lshrrev_b32 v{T}, 4, v0
            v_min_u32 v{T}, 2, v{T}
            v_add_u32 v{T}, s5, v{T}
            v_min_u32 v{T}, 63, v{T}
            v_lshlrev_b32 v{T}, 11, v{T}
            v_bfe_u32 v{T+1}, v0, 2, 2
            v_lshl_add_u32 v{T}, v{T+1}, 7, v{T}
            s_and_b32 s5, s2, 7
            s_lshl_b32 s7, s5, 9
            v_add_u32 v{T}, s7, v{T}
            v_lshrrev_b32 v{T+1}, 3, v0
            s_and_b32 s7, s{S_NT}, 3
            s_lshl_b32 s7, s7, 10
            v_lshl_add_u32 v{T+1}, v{T+1}, 7, s7
            s_cmp_lt_u32 s5, 4
            s_cselect_b64 vcc, -1, 0
            s_cselect_b32 s{S_D}, 0, 1
            v_cndmask_b32 v{T}, v{T+1}, v{T}, vcc
            s_cselect_b32 s{S_D2}, 32, 1
            s_lshl_b32 s{S_D2}, s{S_D2}, 12
            s_mov_b32 s7, 0
            s_cmp_eq_u32 s{S_MT}, 0
            s_cselect_b32 s7, 0x10000, 0
            s_cmp_eq_u32 s5, 5
            s_cselect_b32 s{S_E0}, s34, s32
            s_cselect_b32 s{S_E1}, s35, s33
            s_cmp_ge_u32 s5, 6
            s_cselect_b32 s7, 0, s7
            s_cmp_lt_u32 s5, 4
            s_cselect_b32 s{S_E0}, s30, s{S_E0}
            s_cselect_b32 s{S_E1}, s31, s{S_E1}
            s_cselect_b32 s7, 0x200000, s7
            s_cmp_eq_u32 s{S_WN}, 3
            s_cselect_b64 vcc, -1, 0
            s_cselect_b32 s{SRD_P}, s{S_E0}, s{SRD_P}
            v_cndmask_b32 v{VP}, v{VP}, v{T}, vcc
            s_cselect_b32 s{SRD_P+1}, s{S_E1}, s{SRD_P+1}
            s_cselect_b32 s{SRD_P+2}, s7, s{SRD_P+2}
            s_cselect_b32 s{S_PSTEP}, s{S_D2}, s{S_PSTEP}
            s_cselect_b32 s{S_D}, s{S_D}, 0
            s_mul_i32 s{S_PK}, s{S_PSTEP}, {2+PD-NE}
            s_cmp_eq_u32 s{S_WN}, 2
            s_cselect_b32 s{S_D}, 1, s{S_D}
            s_mov_b32 s5, 0x700000
            s_mov_b32 s7, {672*1024}
            """)
        else:
            o(f"s_cmp_lt_u32 s{S_WN}, 2\ns_cselect_b32 s{S_D}, 0, 1")
        o(f"""
        s_waitcnt lgkmcnt(0)
        s_cmp_eq_u32 s{S_WN}, 3
        s_cselect_b32 s4, s6, s4
        s_cselect_b32 s{SRD_K}, s26, s24
        s_cselect_b32 s{SRD_K+1}, s27, s25
        s_cselect_b32 s{SRD_K+2}, 0x200000, s5
        s_cselect_b32 s{S_KVK}, {224*1024}, s7
        s_lshl_b32 s{S_KVT}, s4, 10
        """)
        if WL:
            o(f"""
            s_lshl_b32 s4, s6, 2
            s_add_u32 s4, s4, s{S_WN}
            s_mul_i32 s{S_GK}, s4, {WL*128}
            v_min_u32 v{VP3}, {WL-1}, v0
            v_lshlrev_b32 v{VP3}, 7, v{VP3}
            """)
    WORDER = [(0,0),(0,1),(1,1),(1,0),(2,0),(2,1),(3,1),(3,0)]
    def rd_w(st, slot, s, kh, j):
        blk, b = s >> 1, s & 1
        r = wf(st, s, kh) + j*2
        return (f"ds_read_b64_tr_b16 v[{r}:{r+1}], v{V_W0+b} offset:{slot*WSZ + blk*16384 + kh*8192 + j*1024}", ("W", st, s, kh))
    def rd_x(role, slot, u, kh):
        r = xf(u, kh)
        off = u*2048 + (0 if role == "F" else slot*XSZ)
        return (f"ds_read_b128 v[{r}:{r+3}], v{V_X0+kh} offset:{off}", ("x", u, kh))
    def rd_kv(slot, kh, j):
        r = KVW + kh*4 + j*2
        return (f"ds_read_b64_tr_b16 v[{r}:{r+1}], v{V_KV} offset:{slot*KVSZ + kh*2048 + j*256}", ("kv", kh))

    def gate_acc(nvm, t=V_GT):
        return [f"s_waitcnt vmcnt({nvm})",
                f"v_lshlrev_b32 v{t}, 16, v{V_GX}", f"v_and_b32 v{t+1}, s{S_MSK}, v{V_GX}",
                f"v_lshlrev_b32 v{V_GX}, 16, v{V_GW}", f"v_and_b32 v{V_GW}, s{S_MSK}, v{V_GW}",
                *([f"v_pk_mul_f32 v[{t}:{t+1}], v[{t}:{t+1}], v[{V_GX}:{V_GW}]"] if "gpk" in abl else
                  [f"v_mul_f32 v{t}, v{t}, v{V_GX}", f"v_mul_f32 v{t+1}, v{t+1}, v{V_GW}"]),
                f"v_cvt_pk_bf16_f32 v{t+1}, v{t}, v{t+1}",
                f"v_lshlrev_b32 v{t}, 16, v{t+1}", f"v_and_b32 v{t+1}, s{S_MSK}, v{t+1}",
                *([f"v_pk_add_f32 v[{V_GZ}:{V_GZ+1}], v[{V_GZ}:{V_GZ+1}], v[{t}:{t+1}]"] if "gpk" in abl else
                  [f"v_add_f32 v{V_GZ}, v{V_GZ}, v{t}", f"v_add_f32 v{V_GZ+1}, v{V_GZ+1}, v{t+1}"])]
    def gate_fin():
        z = V_GZ; t = V_GX
        g = [] if "oldg" in abl else gate_acc(63, 56)[1:]
        g += [f"v_add_f32 v{z}, v{z}, v{z+1}"]
        for sh in ("row_shr:1", "row_shr:2", "row_shr:4", "row_shr:8"):
            g += ["s_nop 1", f"v_add_f32_dpp v{z}, v{z}, v{z} {sh} row_mask:0xf bank_mask:0xf bound_ctrl:1"]
        g += ["s_nop 1", f"v_add_f32_dpp v{z}, v{z}, v{z} row_bcast:15 row_mask:0xa bank_mask:0xf",
              f"v_cvt_pk_bf16_f32 v{t}, v{z}, v{z}", f"v_lshlrev_b32 v{t}, 16, v{t}",
              f"v_mul_f32 v{t}, {hx(f2u(-LOG2E))}, v{t}", f"v_exp_f32 v{t}, v{t}",
              f"s_lshl_b32 s4, s{S_MT}, 5", f"v_add_f32 v{t}, 1.0, v{t}",
              f"v_rcp_f32 v{t}, v{t}", f"s_add_u32 s4, s4, s{S_NT}", f"v_cvt_pk_bf16_f32 v{t}, v{t}, v{t}", f"v_lshlrev_b32 v{t}, 16, v{t}",
              f"v_sub_f32 v{t+1}, 1.0, v{t}", f"v_cvt_pk_bf16_f32 v{t+1}, v{t+1}, v{t+1}", f"v_lshlrev_b32 v{t+1}, 16, v{t+1}",
              f"v_lshrrev_b32 v{z}, 5, v0", f"v_lshlrev_b32 v{z}, 3, v{z}",
              "s_lshl_b32 s4, s4, 2", f"s_add_u32 s4, s4, s{S_WN}", "s_lshl_b32 s4, s4, 4", f"s_add_u32 s4, s4, {hx(WS_GATE)}",
              "s_mov_b32 exec_lo, 0x80000000", "s_mov_b32 exec_hi, 0x80000000",
              f"buffer_store_dwordx2 v[{t}:{t+1}], v{z}, s[{SRD_WS}:{SRD_WS+3}], s4 offen" + SCM,
              "s_mov_b64 exec, -1"]
        if not merged:
            g += [f"s_lshl_b32 s4, s2, 3", f"s_add_u32 s4, s4, s{S_WAVE}", "s_cmp_ge_u32 s4, 8", f"s_cbranch_scc1 {name}_fin",
              f"v_lshlrev_b32 v{z}, 2, v0", f"v_mov_b32 v{z+1}, 0", "s_and_b32 s4, s4, 3", "s_lshl_b32 s4, s4, 9", f"s_add_u32 s4, s4, {hx(WS_FLAG)}",
              f"buffer_store_dword v{z+1}, v{z}, s[{SRD_WS}:{SRD_WS+3}], s4 offen",
              f"buffer_store_dword v{z+1}, v{z}, s[{SRD_WS}:{SRD_WS+3}], s4 offen offset:256"]
        return g

    def epi_group(role, u, pk=True):
        e = []
        TE = WF
        if role == "F":
            G = acc(u, 0); U = acc(u, 2)
            if pk:
                for i in range(4): e.append(f"v_pk_mul_f32 v[{G+2*i}:{G+2*i+1}], v[{G+2*i}:{G+2*i+1}], s[{S_E0}:{S_E1}]")
            else:
                for i in range(8): e.append(f"v_mul_f32 v{G+i}, s{S_E0}, v{G+i}")
            for i in range(8): e.append(f"v_exp_f32 v{G+i}, v{G+i}")
            if pk:
                for i in range(4): e.append(f"v_pk_add_f32 v[{G+2*i}:{G+2*i+1}], v[{G+2*i}:{G+2*i+1}], 1.0 op_sel_hi:[1,0]")
            else:
                for i in range(8): e.append(f"v_add_f32 v{G+i}, 1.0, v{G+i}")
            for i in range(8): e.append(f"v_rcp_f32 v{G+i}, v{G+i}")
            if pk:
                for i in range(4): e.append(f"v_pk_mul_f32 v[{U+2*i}:{U+2*i+1}], v[{U+2*i}:{U+2*i+1}], v[{G+2*i}:{G+2*i+1}]")
            else:
                for i in range(8): e.append(f"v_mul_f32 v{U+i}, v{U+i}, v{G+i}")
            o = TE + (u & 1)*4
            for i in range(4): e.append(f"v_cvt_pk_bf16_f32 v{o+i}, v{U+2*i}, v{U+2*i+1}")
            if "nohst" not in abl: e.append(f"buffer_store_dwordx4 v[{o}:{o+3}], v{V_ST}, s[{SRD_WS}:{SRD_WS+3}], s{S_E2} offen offset:{(u&1)*1024}" + SC)
            if u & 1 and u < 7: e.append(f"s_add_u32 s{S_E2}, s{S_E2}, 2048")
        else:
            if u % 2 == 0:
                e += [f"s_add_u32 s4, s{S_Q}, {u>>1}", "s_and_b32 s4, s4, 3", f"s_add_u32 s4, s4, s{S_E2}", "s_lshl_b32 s4, s4, 16", f"s_add_u32 s4, s4, s{S_E3}"]
            for blk in range(2):
                R = acc(u, 2*blk)
                if pk:
                    for i in range(4): e.append(f"v_pk_mul_f32 v[{R+2*i}:{R+2*i+1}], v[{R+2*i}:{R+2*i+1}], s[{S_E0}:{S_E1}]")
                else:
                    for i in range(8): e.append(f"v_mul_f32 v{R+i}, s{S_E0}, v{R+i}")
                o = TE + 8 + blk*4
                for i in range(4): e.append(f"v_cvt_pk_bf16_f32 v{o+i}, v{R+2*i}, v{R+2*i+1}")
                e.append(f"buffer_store_dwordx4 v[{o}:{o+3}], v{V_ST if blk == 0 else V_ST2}, s[{SRD_WS}:{SRD_WS+3}], s4 offen offset:{(u&1)*1024}" + ("" if "qplain" in abl and (not merged or "wbl2" in abl) else SC))
        return e
    def epi_setup(role):
        TE = WF + 16
        e = [f"v_lshlrev_b32 v{V_ST}, 4, v0",
             f"s_lshl_b32 s4, s{S_MT}, 3", f"s_lshl_b32 s5, s{S_WM}, 2", f"s_add_u32 s{S_E2}, s4, s5"]
        if role == "F":
            e += [f"s_lshl_b32 s5, s{S_NT}, 2", f"s_add_u32 s5, s5, s{S_WN}", "s_lshl_b32 s5, s5, 6", f"s_add_u32 s4, s5, s{S_E2}",
                  f"s_lshl_b32 s{S_E2}, s4, 11", f"s_mov_b32 s{S_E0}, {hx(f2u(-LOG2E))}", f"s_mov_b32 s{S_E1}, {hx(f2u(-LOG2E))}"]
        else:
            e += [f"s_lshl_b32 s7, s{S_Q}, 3", f"s_add_u32 s7, s7, s{S_WN}", "s_lshl_b32 s7, s7, 11", f"s_add_u32 s{S_E3}, s7, {hx(WS_Q)}",
                  f"s_mov_b32 s{S_E0}, {hx(f2u(QSCALE))}", f"s_mov_b32 s{S_E1}, {hx(f2u(QSCALE))}", f"v_add_u32 v{V_ST2}, 0x2000, v{V_ST}"]
        return e
    def epi_kv(role):
        TE = WF + 16
        e = [f"s_add_u32 s5, s{S_E2}, s{S_Q}", "s_lshl_b32 s5, s5, 12", f"s_and_b32 s6, s{S_WN}, 1"]
        cv = [f"v_cvt_pk_bf16_f32 v{TE+4+i}, v{KVA+2*i}, v{KVA+2*i+1}" for i in range(4)]
        if role == "K":
            e += ["s_lshl_b32 s6, s6, 3", "s_add_u32 s5, s5, s6", f"s_add_u32 s5, s5, {hx(WS_KV)}"] + cv
            e += [f"buffer_store_dwordx2 v[{TE+4}:{TE+5}], v{V_ST}, s[{SRD_WS}:{SRD_WS+3}], s5 offen" + SCM,
                  f"buffer_store_dwordx2 v[{TE+6}:{TE+7}], v{V_ST}, s[{SRD_WS}:{SRD_WS+3}], s5 offen offset:1024" + SCM]
        else:
            e += ["s_lshl_b32 s6, s6, 10", "s_add_u32 s5, s5, s6", f"s_add_u32 s5, s5, {hx(WS_KV+2048)}"] + cv
            e += [f"buffer_store_dwordx4 v[{TE+4}:{TE+7}], v{V_ST}, s[{SRD_WS}:{SRD_WS+3}], s5 offen" + SCM]
        return e

    def early_w(o, role):
        lab = f"{name}_{role}_dbg"
        o(f"""
        s_load_dwordx2 s[{SRD_K}:{SRD_K+1}], s[0:1], 64
        s_load_dwordx2 s[{SRD_V}:{SRD_V+1}], s[0:1], 88
        s_mov_b32 s{SRD_K+2}, 0x700000
        s_mov_b32 s{SRD_V+2}, 256
        s_mov_b32 s{SRD_V+3}, 0x20000
        v_lshrrev_b32 v9, 3, v0
        v_bfe_u32 v10, v0, 1, 2
        v_lshrrev_b32 v11, 4, v0
        v_xor_b32 v10, v10, v11
        v_lshlrev_b32 v9, 11, v9
        v_lshl_add_u32 v9, v10, 5, v9
        v_and_b32 v10, 1, v0
        v_lshl_add_u32 v9, v10, 4, v9
        s_and_b32 s4, s2, 1
        s_lshl_b32 s4, s4, 3
        s_lshr_b32 s5, s2, 5
        s_add_u32 s4, s4, s5
        s_lshl_b32 s4, s4, 7
        s_lshl_b32 s5, s{S_WN}, 14
        s_add_u32 s5, s5, s4
        v_add_u32 v6, s5, v9
        v_add_u32 v7, 0x10000, v6
        v_add_u32 v8, 0x20000, v6
        s_lshl_b32 s6, s{S_WN}, 10
        s_add_u32 s6, s6, {hx(20*4096)}
        v_lshlrev_b32 v9, 2, v0
        s_waitcnt lgkmcnt(0)
        """)
        o(f"buffer_load_dword v10, v9, s[{SRD_V}:{SRD_V+3}], 0 offen sc1")
        for n in range(10):
            o(f"s_add_u32 m0, s6, {n*4096}" if n else "s_mov_b32 m0, s6")
            o(f"s_mov_b32 s7, {hx((n//3)*3*65536)}")
            o(f"buffer_load_dwordx4 v{6 + n % 3}, s[{SRD_K}:{SRD_K+3}], s7 offen lds")
        o(f"""
        s_mov_b32 s5, 0x100000
        s_waitcnt vmcnt(10)
        {lab}:
        v_cmp_ne_u32 vcc, 0x01010101, v10
        s_sub_u32 s5, s5, 1
        s_cbranch_scc1 {lab}_ok
        s_cbranch_vccz {lab}_ok
        buffer_load_dword v10, v9, s[{SRD_V}:{SRD_V+3}], 0 offen sc1
        s_waitcnt vmcnt(0)
        s_branch {lab}
        {lab}_ok:
        """)
    def stage(o, lq, role, half, par, first=False, dW_on=True, dX_on=True, pf_on=True, nxt_reads=True, vm=None, bar=True, last=False, tail=None, gvm=1, w2pf=False, xstop=False, dbg=False, cpf2=False):
        cur, nxt = par, 1-par
        kv = role != "F"
        C = half == "C"
        fill = {}
        def put(slot, t):
            txt = t[0] if isinstance(t, tuple) else t
            if "nolds" in abl and txt.startswith("ds_"): return
            fill.setdefault(slot, []).append(t)
        put(0, rd_x(role, cur, 3, 0)); put(1, rd_x(role, cur, 3, 1))
        for u in range(4):
            put(8*u+8, rd_x(role, cur, u+4, 0)); put(8*u+9, rd_x(role, cur, u+4, 1))
        if C:
            put(2 if last else 26, (f"ds_read_b32 v{V_GX}, v{V_GA} offset:{0 if role == 'F' else cur*XSZ}", ("g",)))
        if nxt_reads:
            if role == "F":
                put(34, f"s_cmp_eq_u32 s{S_XT}, s{S_XT2}")
                put(34, f"s_cselect_b32 s{S_D2}, {hx(-2*XSZ)}, s{S_C32}")
                put(35, f"v_add_u32 v{V_X0}, s{S_D2}, v{V_X0}")
                put(36, f"v_add_u32 v{V_X1}, s{S_D2}, v{V_X1}")
                if C: put(37, f"v_add_u32 v{V_GA}, s{S_D2}, v{V_GA}")
                put(62, f"s_add_u32 s{S_XT}, s{S_XT}, s{S_D2}")
            for u in range(3):
                put(8*u+40, rd_x(role, nxt, u, 0)); put(8*u+41, rd_x(role, nxt, u, 1))
            wslots = [42,43,44,45,46,47,50,51,52,53,54,55,58,59,60,61]
            for n, (s, kh) in enumerate(WORDER):
                put(wslots[2*n], rd_w(nxt, nxt, s, kh, 0)); put(wslots[2*n+1], rd_w(nxt, nxt, s, kh, 1))
            if kv:
                put(62, rd_kv(nxt, 0, 0)); put(62, rd_kv(nxt, 0, 1)); put(63, rd_kv(nxt, 1, 0)); put(63, rd_kv(nxt, 1, 1))
        dl = []; NUP = NUPQ if kv else NUPF + (1 if WL else 0)
        if not C:
            if kv and dW_on: dl += dKVl(cur)
            if dW_on: dl += dWl(cur)
            if pf and pf_on and not kv: dl += [pfl0()] + PFL[1:]
            if dX_on: dl += dXl(0 if role == "F" else cur*XSZ)
            for n, g in enumerate(dl[NUP:]):
                put(40 + 2*n, g[0])
                for t in g[1:]: put(41 + 2*n, t)
            if first and role == "F":
                for n, g in enumerate(dXl(2*XSZ)):
                    put(2 + 3*n, g[0])
                    for t in g[1:]: put(3 + 3*n, t)
        if last:
            off = 0
            if C and "oldg" in abl:
                ga = gate_acc(0)
                put(6, ("WAIT", ("g",)))
                for n, t in enumerate(ga): put(6 + n//4, t)
                off = 9
            es = epi_setup(role)
            for n, t in enumerate(es): put(off + n//(6 if off else 3), t)
            if kv:
                for n, t in enumerate(epi_kv(role)): put(18 + n//3, t)
            if C and "oldg" not in abl and ("ilv" in abl or (kv and "ilvQ" in abl)): put(14, "s_waitcnt vmcnt(0)")
            for u in range(7 if ("ilv" in abl or (kv and "ilvQ" in abl)) else 0):
                e = epi_group(role, u, 'nopk' not in abl)
                per = -(-len(e)//(8 if u < 6 else 5))
                for n, t in enumerate(e): put(8*u+11 + (1 if u == 0 else 0) + n//per, t)
        if last and not C and not ("ilv" in abl or (kv and "ilvQ" in abl)): put(0, "s_setprio 1" if "hiC" not in abl else "s_nop 0")
        if tail:
            for t in tail: put(63, t)
        def need(tags):
            if any(t in lq.q for t in tags): o(f"s_waitcnt lgkmcnt({lq.need(tags)})")
        def emit(t):
            if isinstance(t, tuple):
                if t[0] == "WAIT": need([t[1]])
                else: o(t[0]); lq.push(t[1])
            else: o(t)
        n = 0
        for u in range(8):
            if u == 5 and bar:
                lq.need(lq.q)
                if C:
                    o("s_waitcnt lgkmcnt(0)")
                    if "glow" in abl: o("s_setprio 0")
                    for t in gate_acc(gvm): o(t)
                    o(f"buffer_load_dword v{V_GW}, v{V_GO}, s[{SRD_G}:{SRD_G+3}], s{S_GK} offen")
                    o(f"s_add_u32 s{S_GK}, s{S_GK}, 128")
                    if cpf2:
                        lab = f"{name}_{role}_pc2"
                        o(f"""
                        s_getpc_b64 s[4:5]
                        {lab}:
                        v_lshlrev_b32 v{V_GT}, 7, v0
                        s_lshl_b32 s6, s{S_WN}, 13
                        v_add_u32 v{V_GT}, s6, v{V_GT}
                        v_min_u32 v{V_GT}, {name}_{role}_last-{lab}, v{V_GT}
                        global_load_dword v{V_PD}, v{V_GT}, s[4:5]
                        """)
                    if merged and first and "touch" in abl:
                        o(f"""
                        s_lshl_b32 s4, s{S_MT}, 3
                        s_add_u32 s4, s4, s{S_Q}
                        s_lshl_b32 s4, s4, 12
                        s_add_u32 s4, s4, {hx(WS_KV)}
                        v_and_b32 v{V_GT}, 15, v0
                        v_lshlrev_b32 v{V_GT}, 7, v{V_GT}
                        v_bfe_u32 v{V_GT+1}, v0, 4, 1
                        v_lshl_add_u32 v{V_GT}, v{V_GT+1}, 14, v{V_GT}
                        v_add_u32 v{V_GT}, s4, v{V_GT}
                        s_lshl_b32 s4, s{S_MT}, 5
                        s_add_u32 s4, s4, s{S_NT}
                        s_lshl_b32 s4, s4, 6
                        s_add_u32 s4, s4, {hx(WS_GATE)}
                        v_mov_b32 v{V_GT+1}, s4
                        v_cmp_gt_u32 vcc, {32 if kv else 0}, v0
                        s_cmp_lg_u32 s{S_WAVE}, 1
                        s_cbranch_scc1 {name}_{role}_nt
                        v_cndmask_b32 v{V_GT}, v{V_GT+1}, v{V_GT}, vcc
                        buffer_load_dword v{V_GT+1}, v{V_GT}, s[{SRD_WS}:{SRD_WS+3}], 0 offen sc1
                        {name}_{role}_nt:
                        """)
                    if merged and first:
                        o(f"v_mov_b32 v{V_PD}, 0\nbuffer_store_dword v{V_PD}, v{V_P}, s[{SRD_WS}:{SRD_WS+3}], 0 offen sc1")
                    if merged and dbg:
                        lab = f"{name}_{role}_nb"
                        o(f"""
                        s_sub_u32 s{S_D}, s{S_D}, 1
                        s_cmp_lg_u32 s{S_D}, 0
                        s_cbranch_scc1 {lab}
                        v_mov_b32 v{V_P}, 1
                        s_mov_b64 exec, 1
                        buffer_store_byte v{V_P}, v{V_PD}, s[{SRD_K}:{SRD_K+3}], s2 offen sc1
                        s_mov_b64 exec, -1
                        {lab}:
                        """)
                else:
                    o(f"s_waitcnt vmcnt({vm}) lgkmcnt(0)")
                if C and "glow" in abl: o("s_setprio 1")
                if "nobar" not in abl: o("s_barrier")
                if stamp and not C:
                    o(f"s_memtime s[4:5]\ns_waitcnt lgkmcnt(0)\ns_mov_b32 m0, s{ST+15}\nv_writelane_b32 v13, s4, m0\ns_add_u32 s{ST+15}, s{ST+15}, 1")
                if not C: burst(o, dl[:NUP])
                if not C and merged and w2pf: early_w(o, role)
                if C and w2pf and "swap14" in abl: o("s_setprio 0")
                if not C and w2pf and "swap14" in abl: o("s_setprio 2")
            for c in range(4):
                s = c if u % 2 == 0 else 3-c
                for e in range(2):
                    kh = e if c % 2 == 0 else 1-e
                    need([("W", cur, s, kh), ("x", u, kh)])
                    d = acc(u, s)
                    cc = "0" if (first and e == 0) else f"v[{d}:{d+3}]"
                    o(f"v_mfma_f32_16x16x32_bf16 v[{d}:{d+3}], {vr(wf(cur,s,kh),4)}, {vr(xf(u,kh),4)}, {cc}")
                    if kv and u < 2 and c == 3 and e == 1:
                        for k2 in range(2):
                            need([("kv", k2)])
                            d = KVA + u*4
                            cc = "0" if (first and k2 == 0) else f"v[{d}:{d+3}]"
                            w = vr(KVW+k2*4, 4); x = vr(xf(u, k2), 4)
                            if role == "K": o(f"v_mfma_f32_16x16x32_bf16 v[{d}:{d+3}], {w}, {x}, {cc}")
                            else: o(f"v_mfma_f32_16x16x32_bf16 v[{d}:{d+3}], {x}, {w}, {cc}")
                    for t in fill.get(n, []): emit(t)
                    n += 1
        if last:
            ilv = "ilv" in abl or (kv and "ilvQ" in abl)
            if not (ilv and kv): stp(o, 12)
            if C and not ilv and "oldg" not in abl: o("s_waitcnt vmcnt(0)")
            if C and not ilv and "hiC" not in abl: o("s_setprio 0")
            if ilv or "noshare" in abl:
                if ilv: o("s_nop 7")
                for u in range(7 if ilv else 0, 8):
                    for t in epi_group(role, u): o(t)
                if C:
                    stp(o, 6)
                    o(f"s_cmp_ge_u32 s{S_WAVE}, 4\ns_cbranch_scc1 {name}_fin")
                    for t in gate_fin(): o(t)
            elif C: o(f"s_branch {name}_{role}_epi")
            else:
                if "lowL" in abl: o("s_setprio 0")
                o.lab(f"{name}_{role}_epi")
                for u in range(8):
                    for t in epi_group(role, u, not ('nopk' in abl and u < NPK)): o(t)
                stp(o, 6)
                o(f"s_cmp_ge_u32 s{S_WAVE}, 4\ns_cbranch_scc1 {name}_{role}_nogate")
                for t in gate_fin(): o(t)
                o.lab(f"{name}_{role}_nogate")

    for role in "FKV":
      for half in "CL":
        kv = role != "F"; C = half == "C"
        rn = f"{name}_{role}{half}"
        a.raw(f"{rn}:")
        lq = LQ(15)
        if not C:
            if role == "F": a(f"s_add_u32 s{S_XT2}, s{S_XT2}, s{S_XT}")
            if kv: dKV(a, 0)
            dW(a, 1)
            if pf and not kv: p_setup(a)
            pre = NE if (pf and not kv and "epre" in abl) else 0
            burst(a, [pfl0() for _ in range(pre)])
            a(f"s_waitcnt vmcnt({8+pre})")
        stp(a, 12)
        a("s_barrier")
        stp(a, 10)
        if not C:
            if kv: dKV(a, 1)
            dX(a, XSZ)
            if pf and not kv and "epre" not in abl: burst(a, [pfl0() for _ in range(NE)])
        pro = []
        wi = iter([rd_w(0, 0, s, kh, j) for (s, kh) in WORDER for j in range(2)])
        for u in range(3):
            pro += [rd_x(role, 0, u, 0), rd_x(role, 0, u, 1)] + [next(wi) for _ in range(6 if u < 2 else 4)]
        if kv: pro += [rd_kv(0, 0, 0), rd_kv(0, 0, 1), rd_kv(0, 1, 0), rd_kv(0, 1, 1)]
        for t in pro: a(t[0]); lq.push(t[1])
        a(f"s_mov_b32 s{S_CNT}, {6 if kv else 5}")
        vm = 0 if kv else 8 + NPF
        gvm = 0
        stp(a, 4); stp(a, 5, True)
        stage(a, lq, role, half, 0, first=True, vm=(0 if kv else 8 + (NE if pf and 'epre' not in abl else 0)), gvm=0)
        a.raw(".p2align 6")
        a.raw(f"{rn}_loop:")
        b1 = Asm(); q0 = list(lq.q)
        if kv:
            stage(b1, lq, role, half, 1, vm=vm, gvm=gvm, dbg=True, tail=[f"s_cmp_eq_u32 s{S_CNT}, 0", f"s_cbranch_scc1 {rn}_tail"])
            q1 = list(lq.q)
            stage(b1, lq, role, half, 0, vm=vm, gvm=gvm, tail=[f"s_sub_u32 s{S_CNT}, s{S_CNT}, 1", f"s_branch {rn}_loop"])
            assert lq.q == q0
            a.l += b1.l
            a.raw(f"{rn}_tail:")
            lq.q = q1
        else:
            stage(b1, lq, role, half, 1, vm=vm, gvm=gvm, dbg=True)
            stage(b1, lq, role, half, 0, vm=vm, gvm=gvm, xstop=True, tail=[f"s_sub_u32 s{S_CNT}, s{S_CNT}, 1", f"s_cbranch_scc0 {rn}_loop"])
            assert lq.q == q0
            a.l += b1.l
            stage(a, lq, role, half, 1, vm=vm, gvm=gvm, dX_on=False, pf_on=False, cpf2=("cpf13" in abl))
        stage(a, lq, role, half, 0, dW_on=False, dX_on=False, pf_on=False, vm=0, gvm=gvm, w2pf=True, cpf2=("cpf14" in abl or (kv and "cpf13" in abl)))
        stp(a, 11)
        sh = "share15" in abl and ("ilv" in abl or (kv and "ilvQ" in abl))
        if sh and not C:
            a(f"s_branch {name}_{role}_s15")
            a.lab(f"{name}_{role}_last")
            continue
        if sh: a.lab(f"{name}_{role}_s15")
        stage(a, lq, role, half, 1, dW_on=False, dX_on=False, nxt_reads=False, bar=False, last=True)
        stp(a, 6); stp(a, 7, True)
        if not C: a.lab(f"{name}_{role}_last")
        a(f"s_branch {name}_fin")
    a.raw(f"{name}_fin:")
    if stamp:
        T = 96
        a("s_waitcnt vmcnt(0)")
        stp(a, 13); stp(a, 14, True)
        a(f"""
        s_lshl_b32 s4, s2, 3
        s_add_u32 s4, s4, s{S_WAVE}
        s_lshl_b32 s4, s4, 6
        s_add_u32 s4, s4, {hx(0x1E00000)}
        s_mov_b64 exec, -1
        v_mov_b32 v14, 0
        """)
        for i, (r, rel) in enumerate([(4,1),(6,1),(13,1),(2,0),(14,0),(0,0),(5,0),(7,0),(8,1),(9,1),(10,1),(11,1),(12,1)]):
            if rel: a(f"s_sub_u32 s{ST+r}, s{ST+r}, s{ST}")
            a(f"v_mov_b32 v{T+i}, s{ST+r}")
        a(f"v_lshlrev_b32 v15, 2, v0\ns_add_u32 s5, s4, 0x40000\ns_mov_b64 exec, 0xffff\nbuffer_store_dword v13, v15, s[{SRD_WS}:{SRD_WS+3}], s5 offen")
        a("s_mov_b64 exec, 1")
        for i in range(4):
            a(f"buffer_store_dwordx4 v[{T+4*i}:{T+4*i+3}], v14, s[{SRD_WS}:{SRD_WS+3}], s4 offen offset:{16*i}")
    if merged:
        if stamp: a("s_mov_b64 exec, -1")
        flag_addrs(a, 96, 97, False)
        a(f"s_mov_b32 s60, s{S_NT}")
        return a.text()
    a.raw(f"{name}_end:")
    a("s_endpgm")
    return a.text()

if __name__ == "__main__":
    import sys
    stamp = "stamp" in sys.argv
    s = "; @launch kernel=k1_kernel grid=(256,1,1) block=(512,1,1) lds=163840\n"
    s += '.amdgcn_target "amdgcn-amd-amdhsa--gfx950"\n.text\n' + gen_k1(stamp=stamp, abl=sys.argv[2:]) + kernel_desc("k1_kernel")
    open(sys.argv[1], "w").write(s)
```

```python
from common import *

RW = 30
PROG = 122880
CNT_LDS = PROG + 2048
KVB = 131072
K2_LDS = 163840

S_WAVE, S_W = 3, 33
SRD_WS, SRD_WD, SRD_WO, SRD_OUT = 8, 12, 16, 20
S_MI, S_NI, S_MT32 = 34, 35, 36
S_CNT = 37
S_HK, S_WK, S_WM, S_WEND, S_WW, S_KVK, S_KVM, S_RD = 38, 39, 40, 41, 42, 43, 44, 45
S_T = 46
S_NEED, S_CU = 58, 57
ST = 70
def m16(d, x, y, c=True): return f"v_mfma_f32_16x16x32_bf16 {vr(d,4)}, {vr(x,4)}, {vr(y,4)}, " + (vr(d,4) if c is True else ("0" if c is False else vr(c,4)))

def gen_k2(name="k2_kernel", stamp=False, abl=(), merged=False):
    a = Asm()
    def stp(o, i, real=False):
        if stamp:
            o(f"{'s_memrealtime' if real else 's_memtime'} s[4:5]\ns_waitcnt lgkmcnt(0)\ns_mov_b32 s{ST+i}, s4")
    prioA = 1; prioG = 0; HD = 10; FLAGU = 106; GP2 = 0; GPU_ = 96
    for x in abl:
        if x.startswith("pa"): prioA = int(x[2:])
        if x.startswith("pg"): prioG = int(x[2:])
        if x.startswith("fu"): FLAGU = int(x[2:])
        if x.startswith("gp"): GP2 = int(x[2:])
        if x.startswith("gu"): GPU_ = int(x[2:])
    nosync = "nosync" in abl
    SC1 = " sc1" if merged else ""
    if merged: a.raw(f"{name}:"); abl = list(abl) + ["nocpf"]
    else: a.raw(f".globl {name}\n.p2align 8\n.type {name},@function\n{name}:")
    if stamp: a(f"s_memtime s[{ST}:{ST+1}]\ns_memrealtime s[{ST+2}:{ST+3}]")
    a(f"""
    s_load_dwordx2 s[24:25], s[0:1], 96
    s_load_dwordx2 s[26:27], s[0:1], 64
    s_load_dwordx2 s[28:29], s[0:1], 32
    s_load_dwordx2 s[30:31], s[0:1], 80
    """)
    CW = 8
    for x in abl:
        if x.startswith("cw"): CW = int(x[2:])
    if "nocpf" not in abl:
        a(f"""
        s_cmp_ge_u32 s2, {CW}
        s_cbranch_scc1 {name}_nocpf
        s_getpc_b64 s[4:5]
        {name}_pc:
        s_sub_u32 s4, s4, {name}_pc-{name}
        s_subb_u32 s5, s5, 0
        v_lshlrev_b32 v2, 7, v0
        v_min_u32 v3, k2_kernel_end-{name}, v2
        global_load_dword v255, v3, s[4:5]
        {name}_nocpf:
        """)
    a(f"""
    """)
    if not merged:
        a(f"""
        s_cmp_ge_u32 s2, 256
        s_cbranch_scc1 {name}_end
        v_lshrrev_b32 v1, 6, v0
        v_and_b32 v0, 63, v0
        v_readfirstlane_b32 s{S_WAVE}, v1
        """)
    a(f"""
    s_and_b32 s4, s2, 7
    {"s_xor_b32 s4, s4, 1" if "xflip" in abl else ""}
    s_lshr_b32 s5, s2, 3
    s_lshr_b32 s6, s4, 1
    s_lshl_b32 s6, s6, 2
    s_and_b32 s7, s5, 3
    s_add_u32 s{S_MI}, s6, s7
    s_and_b32 s4, s4, 1
    s_lshl_b32 s4, s4, 3
    s_lshr_b32 s5, s5, 2
    s_add_u32 s{S_NI}, s4, s5
    s_and_b32 s{S_W}, s{S_WAVE}, 3
    s_lshl_b32 s4, s{S_MI}, 2
    s_add_u32 s{S_MT32}, s4, s{S_W}
    s_mov_b32 s{SRD_WS+2}, {hx(WS_SIZE)}
    s_mov_b32 s{SRD_WS+3}, 0x20000
    v_lshlrev_b32 v1, 4, v0
    s_cmp_ge_u32 s{S_WAVE}, 4
    s_cbranch_scc1 {name}_G
    """)
    VL = 1; VKV = 2
    VG = 4
    VT = 6
    SEL = 12
    Q = 16
    S = 32
    P = 64
    O = 80
    Ls = 112
    K = 128
    V = 144
    CB = 160
    MX = 176
    VSIG, VCHK, VONE, VCNT = 186, 187, 188, 189
    if prioA: a(f"s_setprio {prioA}")
    a(f"""
    s_lshl_b32 s4, s{S_MT32}, 5
    s_lshl_b32 s5, s{S_NI}, 1
    s_add_u32 s4, s4, s5
    s_lshl_b32 s4, s4, 11
    s_add_u32 s{S_T}, s4, {hx(WS_Q)}
    s_lshl_b32 s5, s{S_NI}, 7
    s_add_u32 s5, s5, s{S_MT32}
    s_lshl_b32 s5, s5, 11
    s_add_u32 s{S_T+1}, s5, {hx(WS_O)}
    s_add_u32 s{S_T+10}, s{S_T+1}, 0x20000
    s_lshl_b32 s{S_T+2}, s{S_MT32}, 8
    s_add_u32 s{S_T+2}, s{S_T+2}, {hx(WS_GATE)}
    v_and_b32 v{VT}, 15, v0
    v_lshlrev_b32 v{VT}, 3, v{VT}
    v_add_u32 v{VKV}, {hx(KVB)}, v{VL}
    s_waitcnt lgkmcnt(0)
    s_mov_b32 s{SRD_WS}, s24
    s_mov_b32 s{SRD_WS+1}, s25
    """)
    VGA = 3
    def g_loads():
        for i in range(2): a(f"buffer_load_dword v{VG+i}, v{VGA}, s[{SRD_WS}:{SRD_WS+3}], s{S_T+2} offen offset:{128*i}" + SC1)
    a(f"v_mov_b32 v{VGA}, v{VT}")
    def a_loads():
        for i in range(4): a(f"buffer_load_dwordx4 {vr(Q+4*i,4)}, v{VL}, s[{SRD_WS}:{SRD_WS+3}], s{S_T} offen offset:{1024*i}" + SC1)
        if not merged: g_loads()
    if merged: a("s_waitcnt vmcnt(0)\ns_barrier")
    else: a_loads()
    a(f"""
    v_and_b32 v{VT+1}, 3, v0
    v_cmp_eq_u32 vcc, 0, v{VT+1}
    v_mov_b32 v{VT+2}, 0x3f803f80
    s_mov_b32 s{S_CNT}, 7
    v_cndmask_b32 v{SEL}, 0, v{VT+2}, vcc
    v_cndmask_b32 v{SEL+1}, 0, v{VT+2}, vcc
    v_cndmask_b32 v{SEL+2}, 0, v{VT+2}, vcc
    v_cndmask_b32 v{SEL+3}, 0, v{VT+2}, vcc
    s_lshl_b32 s4, s{S_W}, 8
    s_add_u32 s4, s4, {hx(PROG+1024)}
    v_lshl_add_u32 v{VSIG}, v0, 2, s4
    v_lshlrev_b32 v{VCHK}, 8, v{VT+1}
    v_add_u32 v{VCHK}, {hx(PROG)}, v{VCHK}
    v_mov_b32 v{VONE}, 1
    s_mov_b32 s{S_NEED}, 0
    ds_write_b32 v{VSIG}, v{VONE}
    """)
    for r in list(range(P+8, P+16)) + list(range(O, O+48)) + list(range(V+8, V+16)): a(f"v_mov_b32 v{r}, 0")
    if merged:
        a("s_barrier"); a_loads()
    stp(a, 8)
    a("s_waitcnt lgkmcnt(0)\ns_barrier")
    stp(a, 9)
    lq = LQ(15)
    def rdK(o, t, u):
        o(f"ds_read_b128 {vr(K+(t&1)*8+u*4,4)}, v{VKV} offset:{((t >> 1) & 3)*8192 + (t & 1)*4096 + u*1024}"); lq.push(("K", t & 1))
    def rdV(o, t, s):
        o(f"ds_read_b128 {vr(V+(t&1)*8+s*4,4)}, v{VKV} offset:{((t >> 1) & 3)*8192 + (t & 1)*4096 + 2048 + s*1024}"); lq.push(("V", t & 1))
    def need(o, tags):
        if any(t in lq.q for t in tags): o(f"s_waitcnt lgkmcnt({lq.need(tags)})")
    def qk(h, par, c=False):
        return [m16(S+16*h+8*qs+4*u, K+8*par+4*u, Q+8*h+4*qs, c if c is False else c+8*h+4*qs) for (u, qs) in ((0,0),(0,1),(1,1),(1,0))]
    def pv(h, par):
        f = lambda s, qs: m16(O+16*h+8*qs+4*s, V+8*par+4*s, P+8*h+4*qs)
        g = lambda qs: m16(Ls+8*h+4*qs, SEL, P+8*h+4*qs)
        return [f(0,0), g(0), f(1,0), f(1,1), g(1), f(0,1)]
    rdK(a, 0, 0); rdK(a, 0, 1); rdK(a, 1, 0); rdK(a, 1, 1)
    a("s_waitcnt vmcnt(0)")
    need(a, [("K", 0)])
    for t in qk(0, 0): a(t)
    a("s_nop 7")
    stp(a, 4); stp(a, 5, True)
    SEQS = {
     "t1": "M e M e e M e M e e c c M e M e e M e M e c c M e M e c e e c e c c",
     "t2": "M e e M e e M e c c M e e M e c c M e e M e e M e c M e c M e e c c",
     "t3": "M e M e M e M e M e M e M e M e M e M e e e c c c e e c c e e c c c",
     "t6": "M e M e e M e M e e c c M e M e e c M e M e c c M e M e e c e c c",
     "t7": "M e e M e e M e e M e e c c M e e M e c c M e e M e c M e M e c c c",
     "t4": "M e M e e e M e M e c c c M e M e e M e M e c c M e M e c e e e c c",
     "t5": "M e M e M e M e e e c c c M e M e M e e e c c M e M e M e e c e c c",
    }
    seqn = "t1"
    for x in abl:
        if x in SEQS: seqn = x
    slow = Asm()
    def phase(o, t, h):
        b = 1-h
        tq = t if h == 0 else t+1
        tv = t-1 if h == 0 else t
        mf = qk(b, tq & 1) + pv(b, tv & 1)
        Sa, Pa = S+16*h, P+8*h
        e = iter([f"v_exp_f32 v{Sa+i}, v{Sa+i}" for i in range(16)])
        c = iter([f"v_cvt_pk_bf16_f32 v{Pa+i}, v{Sa+2*i}, v{Sa+2*i+1}" for i in range(8)])
        first = (t % 2 == 0 and h == 0); lastp = (t % 2 == 1 and h == 1)
        m = 0
        for x in SEQS[seqn].split():
            if x == "e": o(next(e))
            elif x == "c": o(next(c))
            else:
                if m == 9 and first and not nosync: o(f"v_cmp_gt_u32 vcc, s{S_NEED}, v{VCNT}")
                o(mf[m])
                if m in (0, 4):
                    if h == 0: rdV(o, t, m >> 2)
                    else: rdK(o, t+2, m >> 2)
                if m == 3 and h == 1: need(o, [("V", t & 1)])
                if m == 9 and h == 0 and not first: need(o, [("K", (t+1) & 1)])
                if m == 7 and first: need(o, [("K", (t+1) & 1), "cnt"])
                if not nosync:
                    if m == 2 and first:
                        o(f"ds_read_b32 v{VCNT}, v{VCHK}"); lq.push("cnt")
                    if m == 9 and first:
                        lab = f"{name}_A_w{t}"
                        o(f"s_cbranch_vccnz {lab}"); o.lab(lab + "r")
                        slow(f"""
                        {lab}:
                        {"s_nop 0" if "asl0" in abl else "s_sleep 1"}
                        ds_read_b32 v{VCNT}, v{VCHK}
                        s_waitcnt lgkmcnt(0)
                        v_cmp_gt_u32 vcc, s{S_NEED}, v{VCNT}
                        s_nop 4
                        s_cbranch_vccnz {lab}
                        s_branch {lab}r
                        """)
                    if m == 6 and lastp:
                        o(f"ds_add_u32 v{VSIG}, v{VONE}"); lq.push("sig")
                    if m == 8 and lastp: o(f"s_add_u32 s{S_NEED}, s{S_NEED}, 1")
                    if m == 9 and lastp and t == 1: o(f"s_max_u32 s{S_NEED}, s{S_NEED}, 3")
                m += 1
        assert m == 10 and next(e, None) is None and next(c, None) is None
    tmp = Asm(); lq.q = []
    for t in range(8): phase(tmp, t, 0); phase(tmp, t, 1)
    slow.l = []
    q0 = list(lq.q)
    a.raw(".p2align 6")
    a.raw(f"{name}_A_loop:")
    for t in range(8): phase(a, t, 0); phase(a, t, 1)
    assert lq.q == q0
    if stamp:
        a(f"s_memtime s[4:5]\ns_waitcnt lgkmcnt(0)\ns_mov_b32 m0, s{S_CNT}\nv_writelane_b32 v198, s4, m0")
    if merged:
        a(f"s_cmp_lg_u32 s{S_CNT}, 5\ns_cbranch_scc1 {name}_A_nog"); g_loads(); a.lab(f"{name}_A_nog")
    a(f"s_sub_u32 s{S_CNT}, s{S_CNT}, 1\ns_cbranch_scc0 {name}_A_loop")
    stp(a, 6); stp(a, 7, True)
    if merged: a("s_waitcnt vmcnt(0)")
    else: a("s_nop 0")
    for t in pv(1, 1): a(t)
    a.lab(f"{name}_A_fin")
    PO = K
    a("s_waitcnt lgkmcnt(0)")
    for i in range(4):
        r = S + 2*i
        a(f"v_rcp_f32 v{r}, v{Ls+4*i}\ns_nop 0\nv_mul_f32 v{r}, v{r}, v{VG+(i&1)}")
        for j in range(8): a(f"v_mul_f32 v{S+8+j}, v{O+8*i+j}, v{r}")
        for j in range(4): a(f"v_cvt_pk_bf16_f32 v{PO+4*i+j}, v{S+8+2*j}, v{S+8+2*j+1}")
        a(f"buffer_store_dwordx4 {vr(PO+4*i,4)}, v{VL}, s[{SRD_WS}:{SRD_WS+3}], s{S_T+1 if i < 2 else S_T+10} offen offset:{1024*(i&1)} sc1")
    a(f"s_cmp_eq_u32 s{S_NEED}, 0\ns_cbranch_scc1 {name}_A_sig")
    a(f"v_max3_f32 v{VT}, abs(v{O}), abs(v{O+1}), abs(v{O+2})")
    for i in range(3, 31, 2): a(f"v_max3_f32 v{VT}, v{VT}, abs(v{O+i}), abs(v{O+i+1})")
    a(f"""
    v_max_f32 v{VT}, v{VT}, abs(v{O+31})
    s_mov_b32 s4, {hx(f2u(2.0**-64))}
    s_mov_b32 s5, {hx(f2u(2.0**64))}
    s_mov_b32 s6, {hx(f2u(2.0**120))}
    v_cmp_gt_f32 s[{S_T+4}:{S_T+5}], s6, v{VT}
    """)
    for i in range(4):
        a(f"""
        v_cmp_lt_f32 s[{S_T+6}:{S_T+7}], s4, v{Ls+4*i}
        v_cmp_gt_f32 vcc, s5, v{Ls+4*i}
        s_nop 0
        s_and_b64 s[{S_T+4}:{S_T+5}], s[{S_T+4}:{S_T+5}], s[{S_T+6}:{S_T+7}]
        s_and_b64 s[{S_T+4}:{S_T+5}], s[{S_T+4}:{S_T+5}], vcc
        """)
    a(f"""
    s_cmp_eq_u64 s[{S_T+4}:{S_T+5}], -1
    {"s_branch" if "forcefb" in abl else "s_cbranch_scc0"} {name}_A_fb
    {name}_A_sig:
    """)
    a(f"""
    v_mov_b32 v{VT}, {hx(CNT_LDS)}
    s_lshl_b32 s4, s{S_MI}, 7
    s_lshl_b32 s5, s{S_NI}, 2
    s_add_u32 s4, s4, s5
    s_add_u32 s4, s4, {hx(WS_FLAG)}
    v_mov_b32 v{VT+3}, 0
    s_mov_b64 exec, 1
    s_waitcnt vmcnt(0)
    ds_add_rtn_u32 v{VT+2}, v{VT}, v{VONE}
    s_waitcnt lgkmcnt(0)
    v_readfirstlane_b32 s5, v{VT+2}
    s_nop 1
    s_cmp_lg_u32 s5, 3
    s_cbranch_scc1 {name}_fin
    buffer_store_dword v{VONE}, v{VT+3}, s[{SRD_WS}:{SRD_WS+3}], s4 offen sc1
    s_branch {name}_fin
    """)
    a.l += slow.l
    a.raw(f"{name}_A_fb:")
    a(f"s_waitcnt vmcnt(0)\ns_mov_b32 s{S_NEED}, 0")
    for i in range(4): a(f"v_mov_b32 v{MX+i}, 0xff800000")
    a(f"""
    s_mov_b32 s{S_T+3}, {hx(WS_KV)}
    s_mov_b32 s{S_CNT}, 63
    {name}_A_fb1:
    buffer_load_dwordx4 {vr(K,4)}, v{VL}, s[{SRD_WS}:{SRD_WS+3}], s{S_T+3} offen{SC1}
    buffer_load_dwordx4 {vr(K+4,4)}, v{VL}, s[{SRD_WS}:{SRD_WS+3}], s{S_T+3} offen offset:1024{SC1}
    s_add_u32 s{S_T+3}, s{S_T+3}, 4096
    s_waitcnt vmcnt(0)
    """)
    for h in range(2):
        for t in qk(h, 0): a(t)
    a("s_nop 7")
    for i in range(4):
        for j in range(0, 8, 2): a(f"v_max3_f32 v{MX+i}, v{MX+i}, v{S+8*i+j}, v{S+8*i+j+1}")
    a(f"s_sub_u32 s{S_CNT}, s{S_CNT}, 1\ns_cbranch_scc0 {name}_A_fb1")
    for op in ("v_permlane32_swap_b32", "v_permlane16_swap_b32"):
        for i in range(4): a(f"v_mov_b32 v{VT+i}, v{MX+i}")
        a("s_nop 1")
        for i in range(4): a(f"{op} v{VT+i}, v{MX+i}")
        a("s_nop 1")
        for i in range(4): a(f"v_max_f32 v{MX+i}, v{MX+i}, v{VT+i}")
    for i in range(16): a(f"v_sub_f32 v{CB+i}, 0, v{MX+(i>>2)}")
    for r in range(O, O+48): a(f"v_mov_b32 v{r}, 0")
    a(f"""
    s_mov_b32 s{S_T+3}, {hx(WS_KV)}
    s_mov_b32 s{S_CNT}, 63
    {name}_A_fb2:
    """)
    for i in range(2): a(f"buffer_load_dwordx4 {vr(K+4*i,4)}, v{VL}, s[{SRD_WS}:{SRD_WS+3}], s{S_T+3} offen offset:{1024*i}" + SC1)
    for i in range(2): a(f"buffer_load_dwordx4 {vr(V+4*i,4)}, v{VL}, s[{SRD_WS}:{SRD_WS+3}], s{S_T+3} offen offset:{2048+1024*i}" + SC1)
    a(f"s_add_u32 s{S_T+3}, s{S_T+3}, 4096\ns_waitcnt vmcnt(0)")
    for h in range(2):
        for t in qk(h, 0, CB): a(t)
    a("s_nop 7")
    for i in range(32): a(f"v_exp_f32 v{S+i}, v{S+i}")
    a("s_nop 0")
    for i in range(16): a(f"v_cvt_pk_bf16_f32 v{P+i}, v{S+2*i}, v{S+2*i+1}")
    a("s_nop 1")
    for h in range(2):
        for t in pv(h, 0): a(t)
    a(f"s_sub_u32 s{S_CNT}, s{S_CNT}, 1\ns_cbranch_scc0 {name}_A_fb2\ns_nop 7")
    a(f"s_branch {name}_A_fin")

    VA = 2
    VDW = 6
    V1G = 10
    VT = 14
    VSIG, VCHK, VONE, VCNT, VNEED = 20, 21, 22, 23, 24
    ACC = 32
    WF = 64
    H = 128
    U = 10
    VL2 = 25; V3 = 26; VFA = 27; VFV = 28
    def wf(par, e, ns): return WF + par*32 + e*16 + ns*4
    def hf(n, ts): return H + (n % HD)*8 + ts*4
    a.raw(f"{name}_G:")
    if prioG or merged: a(f"s_setprio {prioG}")
    a(f"""
    v_lshrrev_b32 v{VT}, 3, v0
    v_bfe_u32 v{VT+1}, v0, 1, 2
    v_lshrrev_b32 v{VT+2}, 4, v0
    v_xor_b32 v{VT+1}, v{VT+1}, v{VT+2}
    v_lshlrev_b32 v{VT}, 11, v{VT}
    v_lshl_add_u32 v{VT}, v{VT+1}, 5, v{VT}
    v_and_b32 v{VT+1}, 1, v0
    v_lshl_add_u32 v{VT}, v{VT+1}, 4, v{VT}
    s_lshl_b32 s4, s{S_NI}, 7
    s_lshl_b32 s5, s{S_W}, 14
    s_add_u32 s5, s5, s4
    v_add_u32 v{VDW}, s5, v{VT}
    v_add_u32 v{VDW+1}, 0x10000, v{VDW}
    v_add_u32 v{VDW+2}, 0x20000, v{VDW}
    s_lshl_b32 s{S_HK}, s{S_MT32}, 11
    v_add_u32 v{VL2}, 0x20000, v{VL}
    s_mov_b32 s{S_WK}, 0
    s_lshl_b32 s{S_WW}, s{S_W}, 10
    s_mov_b32 s{S_WM}, s{S_WW}
    s_add_u32 s{S_WEND}, s{S_WW}, {hx(RW*4096)}
    s_lshl_b32 s4, s{S_W}, 11
    s_add_u32 s{S_KVK}, s4, {hx(WS_KV)}
    s_add_u32 s{S_KVM}, s4, {hx(KVB)}
    s_mov_b32 s{SRD_WD+2}, 0x700000
    s_mov_b32 s{SRD_WD+3}, 0x20000
    s_mov_b32 s{SRD_WO+2}, 0x200000
    s_mov_b32 s{SRD_WO+3}, 0x20000
    s_mov_b32 s{SRD_OUT+2}, 0x400000
    s_mov_b32 s{SRD_OUT+3}, 0x20000
    s_lshl_b32 s{S_T+2}, s{S_MT32}, 8
    s_add_u32 s{S_T+2}, s{S_T+2}, {hx(WS_GATE+4)}
    s_waitcnt lgkmcnt(0)
    s_mov_b32 s{SRD_WS}, s24
    s_mov_b32 s{SRD_WS+1}, s25
    s_mov_b32 s{SRD_WD}, s26
    s_mov_b32 s{SRD_WD+1}, s27
    """)
    vq = LQ(63); lq = LQ(15); mainflag = {}; mark = {"n": 0}
    ev = {"vm": [], "lg": [], "cert": set(), "free": set(), "pc": set(), "pf": set()}
    def dKV():
        return [f"s_mov_b32 m0, s{S_KVM}", f"s_add_u32 s{S_KVM}, s{S_KVM}, 8192",
                (f"buffer_load_dwordx4 v{VL}, s[{SRD_WS}:{SRD_WS+3}], s{S_KVK} offen{SC1} lds", "vm", "KV"),
                (f"buffer_load_dwordx4 v{VL}, s[{SRD_WS}:{SRD_WS+3}], s{S_KVK} offen offset:1024{SC1} lds", "vm", "KV"),
                f"s_add_u32 s{S_KVK}, s{S_KVK}, 8192", f"s_and_b32 s{S_KVM}, s{S_KVM}, {hx(KVB | 0x7fff)}"]
    def dW3(u0):
        ld = lambda i: (f"buffer_load_dwordx4 v{VDW+i}, s[{SRD_WD}:{SRD_WD+3}], s{S_WK} offen lds", "vm", "W", u0+i)
        return [f"s_mov_b32 m0, s{S_WM}", "NOP", ld(0), f"s_add_u32 m0, s{S_WM}, 4096", "NOP", ld(1), f"s_add_u32 m0, s{S_WM}, 8192",
                f"s_add_u32 s{S_WM}, s{S_WM}, 12288", ld(2), f"s_add_u32 s{S_WK}, s{S_WK}, {hx(3*65536)}",
                f"s_cmp_eq_u32 s{S_WM}, s{S_WEND}", f"s_cselect_b32 s{S_WM}, s{S_WW}, s{S_WM}"]
    def dW1(n):
        wo = n >= 112; k = n - 112 if wo else n
        srd = SRD_WO if wo else SRD_WD
        r = [f"s_add_u32 m0, s{S_WW}, {hx(((n + R0) % RW)*4096)}", f"s_mov_b32 s{S_WK}, {hx(k*65536)}",
             (f"buffer_load_dwordx4 v{VDW}, s[{srd}:{srd+3}], s{S_WK} offen lds", "vm", "W", n)]
        return r
    def ldH(n, ts, ofrag):
        return (f"buffer_load_dwordx4 {vr(hf(n,ts),4)}, v{VL2 if n & 1 else VL}, s[{SRD_WS}:{SRD_WS+3}], s{S_HK} offen offset:{ts*1024}" + (" sc1" if ofrag or merged else ""), "vm", ("H", n % HD, ts))
    HADD = f"s_add_u32 s{S_HK}, s{S_HK}, 0x40000"
    def rdW(p, ns, j):
        r = wf((p >> 1) & 1, p & 1, ns) + 2*j
        return (f"ds_read_b64_tr_b16 {vr(r,2)}, v{VA+ns} offset:{(p % U)*4096 + j*2048}", "lg", ("W", (p >> 1) & 1, p & 1, ns), p)
    def emit(o, t):
        if t == "NOP": t = "s_nop 0"
        if isinstance(t, tuple) and t[1] == "vm" and mainflag.get("on"):
            if ("noH" in abl or "noO" in abl and "sc1" in t[0]) and t[2][0] == "H": return
            if "noW" in abl and t[2] == "W": return
        if isinstance(t, tuple):
            o(t[0]); (vq if t[1] == "vm" else lq).push(t[2])
            if t[1] == "vm": mark["n"] += 1; ev["vm"].append(t[3] if len(t) > 3 else None)
            else: ev["lg"].append(t[3] if len(t) > 3 else None)
            if len(t) > 3:
                n = t[3]
                if t[1] == "vm":
                    if n >= RW: assert n - RW in ev["free"], ("W ring overwritten early", n)
                else: assert n in ev["cert"], ("W unit read before certified", n)
        else: o(t)
    N01 = 10 if merged else 9
    R0 = 20 if merged else 0
    def first_loads():
        for t in dKV(): emit(a, t)
        if not merged:
            for t in dW3(0): emit(a, t)
        if not merged or "both" in abl:
            for n in range(2):
                for ts in range(2): emit(a, ldH(n, ts, False))
            a(HADD)
        if not merged:
            for t in dW3(3): emit(a, t)
        for t in dKV(): emit(a, t)
        return len(vq.q)
    if merged:
        a(f"""
        s_waitcnt vmcnt(0)
        s_barrier
        s_cmp_lg_u32 s{S_W}, 0
        s_cbranch_scc1 {name}_G_nosig
        {"s_cmp_lt_u32 s60, 28" if "wbl2" in abl else ""}
        {"s_cbranch_scc1 " + name + "_G_nowb" if "wbl2" in abl else ""}
        {"buffer_wbl2 sc1" if "wbl2" in abl else ""}
        s_waitcnt vmcnt(0)
        {name}_G_nowb:
        v_mov_b32 v97, 1
        buffer_store_dword v97, v96, s[{SRD_WS}:{SRD_WS+3}], 0 offen sc1
        {name}_G_nosig:
        """)
        stp(a, 15, True)
        a(f"""
        s_mov_b32 s{S_WK}, {hx(10*65536)}
        """)
        ev["cert"] |= set(range(10))
    else: nfirst = first_loads()
    a(f"""
    s_mov_b32 s{SRD_WO}, s28
    s_mov_b32 s{SRD_WO+1}, s29
    s_mov_b32 s{SRD_OUT}, s30
    s_mov_b32 s{SRD_OUT+1}, s31
    v_lshrrev_b32 v{VT}, 2, v0
    v_bfe_u32 v{VT+1}, v0, 3, 2
    v_lshlrev_b32 v{VT}, 7, v{VT}
    v_lshl_add_u32 v{VT}, v{VT+1}, 5, v{VT}
    v_and_b32 v{VT+1}, 3, v0
    v_lshl_add_u32 v{VA}, v{VT+1}, 3, v{VT}
    v_add_u32 v{VA}, {hx(R0*4096)}, v{VA}
    v_xor_b32 v{VA+1}, 32, v{VA}
    v_xor_b32 v{VA+2}, 64, v{VA}
    v_xor_b32 v{VA+3}, 0x60, v{VA}
    v_mov_b32 v{VT}, {hx(CNT_LDS)}
    v_mov_b32 v{VT+1}, 0
    ds_write_b32 v{VT}, v{VT+1}
    s_lshl_b32 s4, s{S_W}, 8
    s_add_u32 s4, s4, {hx(PROG)}
    v_lshl_add_u32 v{VSIG}, v0, 2, s4
    v_mov_b32 v{VONE}, 1
    ds_write_b32 v{VSIG}, v{VONE}
    v_and_b32 v{VCHK}, 7, v0
    v_lshlrev_b32 v{VCHK}, 8, v{VCHK}
    v_add_u32 v{VCHK}, {hx(PROG)}, v{VCHK}
    v_mov_b32 v{VONE}, 1
    v_bfe_u32 v{VNEED}, v0, 2, 1
    v_sub_u32 v{VNEED}, 1, v{VNEED}
    v_and_b32 v{VT+3}, 15, v0
    v_lshlrev_b32 v{VT+3}, 3, v{VT+3}
    s_mov_b32 s{S_RD}, {hx(R0*4096)}
    v_mov_b32 v{V3}, 3
    s_lshl_b32 s4, s{S_MI}, 7
    s_add_u32 s4, s4, {hx(WS_FLAG)}
    v_and_b32 v{VFA}, 15, v0
    v_lshl_add_u32 v{VFA}, v{VFA}, 2, s4
    s_mov_b32 s{S_CU}, {hx(U*4096)}
    """)
    if merged:
        a(f"""
        s_cmp_lg_u32 s{S_W}, 0
        s_cbranch_scc1 {name}_G_p1ok
        s_lshr_b32 s4, s{S_MI}, 1
        s_lshl_b32 s4, s4, 7
        s_add_u32 s4, s4, {hx(WS_F1)}
        s_and_b32 s5, s2, 7
        s_lshl_b32 s5, s5, 7
        s_add_u32 s5, s5, {hx(WS_FQ - 128)}
        v_mov_b32 v{VT}, s4
        v_mov_b32 v{VT+1}, s5
        v_cmp_gt_u32 vcc, 32, v0
        s_mov_b32 s5, 0x400000
        s_nop 0
        v_cndmask_b32 v{VT}, v{VT+1}, v{VT}, vcc
        v_lshl_add_u32 v{VT}, v0, 2, v{VT}
        {name}_G_p1:
        buffer_load_dword v{VT+1}, v{VT}, s[{SRD_WS}:{SRD_WS+3}], 0 offen sc1
        s_waitcnt vmcnt(0)
        v_cmp_eq_u32 vcc, 0, v{VT+1}
        s_sub_u32 s5, s5, 1
        s_cbranch_scc1 {name}_G_p1ok
        {"s_cbranch_vccnz " + name + "_G_p1" if "both" in abl else "s_cmp_lg_u32 vcc_hi, 0"}
        {"" if "both" in abl else "s_cbranch_scc1 " + name + "_G_p1"}
        {name}_G_p1ok:
        s_waitcnt lgkmcnt(0)
        s_barrier
        """)
        stp(a, 16, True)
        nfirst = first_loads()
    for i in range(32): a(f"v_mov_b32 v{ACC+i}, 0")
    stp(a, 8)
    n = len(vq.q) - nfirst; vq.q = vq.q[nfirst:]
    a(f"s_waitcnt vmcnt({n}) lgkmcnt(0)\ns_barrier")
    stp(a, 9)
    ev["cert"] |= set(range(6))
    if merged and "both" not in abl:
        a(f"""
        s_lshr_b32 s4, s{S_MI}, 1
        s_lshl_b32 s4, s4, 7
        s_add_u32 s4, s4, {hx(WS_F1)}
        v_and_b32 v{VT}, 31, v0
        v_lshlrev_b32 v{VT}, 2, v{VT}
        s_mov_b32 s5, 0x400000
        {name}_G_p2:
        buffer_load_dword v{VT+1}, v{VT}, s[{SRD_WS}:{SRD_WS+3}], s4 offen sc1
        s_waitcnt vmcnt(0)
        v_cmp_eq_u32 vcc, 0, v{VT+1}
        s_sub_u32 s5, s5, 1
        s_cbranch_scc1 {name}_G_p2ok
        s_cbranch_vccnz {name}_G_p2
        {name}_G_p2ok:
        """)
        stp(a, 17, True)
        for n in range(2):
            for ts in range(2): emit(a, ldH(n, ts, False))
        a(HADD)
    gslow = Asm(); sites = [0]
    def sync_signal(o, big=False, strict=False):
        n = min(mark["n"], len(vq.q))
        if big: n = min(n, len(vq.q) - 1 - max(i for i, t in enumerate(vq.q) if t == "KV"))
        if strict and "W" in vq.q: n = min(n, len(vq.q) - 1 - max(i for i, t in enumerate(vq.q) if t == "W"))
        vq.q = vq.q[len(vq.q)-n:]
        o(f"s_waitcnt vmcnt({n})")
        mark["n"] = 0
        ev["pc"] = set(ev["vm"][:len(ev["vm"])-len(vq.q)])
        done = ev["lg"][:len(ev["lg"])-len(lq.q)]
        ev["pf"] = {u for u in set(done) if u is not None and done.count(u) == 8}
        if nosync: return
        emit(o, (f"ds_add_u32 v{VSIG}, v{V3 if big else VONE}", "lg", "sig"))
        o(f"v_add_u32 v{VNEED}, {3 if big else 1}, v{VNEED}")
        if big:
            o(f"v_and_b32 v{VCHK}, {hx(~0x400)}, v{VCHK}")
            if GP2: o(f"s_setprio {GP2}")
    CNTRD = (f"ds_read_b32 v{VCNT}, v{VCHK}", "lg", "cnt")
    def sync_check(o):
        ev["cert"] |= ev["pc"]; ev["free"] |= ev["pf"]
        if nosync: return
        if "cnt" in lq.q: o(f"s_waitcnt lgkmcnt({lq.need(['cnt'])})")
        lab = f"{name}_G_w{sites[0]}"; sites[0] += 1
        o(f"v_cmp_gt_i32 vcc, v{VNEED}, v{VCNT}\ns_nop 0\ns_cbranch_vccnz {lab}"); o.lab(lab + "r")
        gslow(f"""
        {lab}:
        {"s_nop 0" if "gsl0" in abl else "s_sleep 2" if "gsl2" in abl else "s_sleep 1"}
        ds_read_b32 v{VCNT}, v{VCHK}
        s_waitcnt lgkmcnt(0)
        v_cmp_gt_i32 vcc, v{VNEED}, v{VCNT}
        s_nop 4
        s_cbranch_vccnz {lab}
        s_branch {lab}r
        """)
    mark["n"] = 0
    NSO = (0, 1, 2, 3)
    for ns in NSO:
        for e in range(2):
            for j in range(2): emit(a, rdW(e, ns, j))
    for n in range(2, 4):
        for ts in range(2): emit(a, ldH(n, ts, False))
    a(HADD)
    for t in dKV() + ([] if merged else dW3(6)): emit(a, t)
    for ts in range(2):
        emit(a, (f"buffer_load_dword v{V1G+2*ts}, v{VT+3}, s[{SRD_WS}:{SRD_WS+3}], s{S_T+2} offen offset:{128*ts}" + SC1, "vm", "g"))
    stp(a, 4); stp(a, 5, True)

    def block(o, n0, par0, nun=U, syncs=(0, 20, 40, 60), extra=None, loads=None, scale_after=None, pre=None, big=None, strict=None, early=None):
        extra = extra or {}; pre = pre or {}
        loads = loads or (lambda n, ts: ldH(n+HD, ts, False))
        fill = {}
        def put(m, t): fill.setdefault(m, []).append(t)
        for pp in range(nun//2):
            p = 2*pp; n = n0 + p; m0 = 16*pp
            if p == U-2:
                put(m0-2, f"s_cmp_eq_u32 s{S_RD}, {hx((RW-U)*4096)}"); put(m0-2, f"s_cselect_b32 s{S_T+1}, {hx(-(RW-U)*4096)}, s{S_CU}")
                put(m0-1, "ADV"); put(m0, f"s_add_u32 s{S_RD}, s{S_RD}, s{S_T+1}")
            if n + 2 < 144:
                i = 0
                for ns in NSO:
                    for e in range(2):
                        for j in range(2):
                            r = rdW(p+2+e + (2*U if False else 0), ns, j)
                            par = (par0 + pp + 1) & 1
                            reg = wf(par, e, ns) + 2*j
                            put(m0 + i, (f"ds_read_b64_tr_b16 {vr(reg,2)}, v{VA+ns} offset:{((p+2+e) % U)*4096 + j*2048}", "lg", ("W", par, e, ns), n+2+e))
                            i += 1
            if early and pp in early:
                q = early[pp]
                for i, (e, ts) in enumerate(((0,0),(1,0),(0,1),(1,1))): put(m0 + 1 + i, ldH(q+e, ts, False))
                put(m0 + 4, HADD)
            any_l = False
            for ts in range(2):
                for e in range(2):
                    l = loads(n+e, ts)
                    if l: put(m0 + (8+e if ts == 0 else 15), l); any_l = True
            if any_l: put(m0 + 15, HADD)
        for s_ in syncs:
            if not nosync: put(s_ + 4, CNTRD)
            put(s_ + 7, "CHECK")
        for m, l in extra.items():
            k = m
            for t in l:
                if t == "NOP": k += 1; continue
                put(k, t)
                if isinstance(t, tuple): k += 1
        for pp in range(nun//2):
            p = 2*pp; n = n0 + p; par = (par0 + pp) & 1
            if n in pre: pre[n](o)
            i = 0
            for ts in range(2):
                for c in range(4):
                    ns = c if ts == 0 else 3-c
                    for e0 in range(2):
                        e = e0 if c % 2 == 0 else 1-e0
                        m = 16*pp + i
                        if m in syncs: sync_signal(o, big == m, strict == m)
                        w = []
                        tg = [("H", (n+e) % HD, ts)]
                        if any(t in vq.q for t in tg): w.append(f"vmcnt({vq.need(tg)})")
                        tg = [("W", par, 0, ns), ("W", par, 1, ns)]
                        if any(t in lq.q for t in tg): w.append(f"lgkmcnt({lq.need(tg)})")
                        if w: o("s_waitcnt " + " ".join(w))
                        if not ("noGM" in abl and mainflag.get("on")):
                            o(m16(ACC + 16*ts + 4*ns, wf(par, e, ns), hf(n+e, ts)))
                        for x in fill.get(m, []):
                            if x == "CHECK": sync_check(o)
                            elif x == "ADV":
                                for k in range(4): o(f"v_add_u32 v{VA+k}, s{S_T+1}, v{VA+k}")
                            else: emit(o, x)
                        i += 1
            if scale_after == n+1:
                if "g" in vq.q: o(f"s_waitcnt vmcnt({vq.need(['g'])})")
                o("s_nop 7")
                for i in range(16): o(f"v_pk_mul_f32 {vr(ACC+2*i,2)}, {vr(ACC+2*i,2)}, {vr(V1G+2*(i>>3),2)} op_sel_hi:[1,0]")
                o("s_nop 1")
    mainx = lambda b: {s_+8: dKV() + dW3(N01 + 12*b + 3*i) for i, s_ in enumerate((0, 20, 40, 60))}
    mainflag['on'] = True
    first = {0: 6, 1: 10, 2: 14}
    block(a, 0, 0, extra=mainx(0), early={0: 4, 1: 8, 2: 12},
          loads=lambda n, ts: ldH(first[n//2] + (n & 1), ts, False) if n < 6 else ldH(n+HD, ts, False))
    keep = list(gslow.l); st0 = (list(vq.q), list(lq.q), mark["n"])
    b0 = Asm()
    for b in range(1, 5): block(b0, 10*b, b & 1, extra=mainx(b))
    gslow.l = keep
    sq = (list(vq.q), list(lq.q), mark["n"])
    assert sq[1:] == st0[1:] and len(st0[0]) >= len(sq[0]) and st0[0][len(st0[0])-len(sq[0]):] == sq[0], (st0, sq)
    b1 = Asm(); block(b1, 50, 1, extra=mainx(5)); block(b1, 60, 0, extra=mainx(6))
    assert (list(vq.q), list(lq.q), mark["n"]) == sq
    a(f"s_mov_b32 s{S_CNT}, 2")
    a.raw(".p2align 6")
    a.raw(f"{name}_G_loop:")
    a.l += b1.l
    a(f"s_sub_u32 s{S_CNT}, s{S_CNT}, 1\ns_cbranch_scc0 {name}_G_loop")
    if "cpf2" in abl:
        a(f"""
        s_getpc_b64 s[4:5]
        {name}_pc2:
        s_lshl_b32 s6, s{S_W}, 13
        v_lshl_add_u32 v{VT}, v0, 7, s6
        v_min_u32 v{VT}, {name}_end-{name}_pc2, v{VT}
        """)
        emit(a, (f"global_load_dword v{VT+1}, v{VT}, s[4:5]", "vm", "c"))
    block(a, 70, 1, syncs=(0, 20, 48), big=20, extra={8: dKV() + dW3(N01+84), 28: dW3(N01+87), 56: dW3(N01+90) + dW3(N01+93)})
    mainflag['on'] = False
    stp(a, 6); stp(a, 7, True)
    FLD = (f"buffer_load_dword v{VFV}, v{VFA}, s[{SRD_WS}:{SRD_WS+3}], 0 offen sc1", "vm", "flag")
    def flagwait(o):
        stp(o, 10)
        if "flag" in vq.q: o(f"s_waitcnt vmcnt({vq.need(['flag'])})")
        o(f"""
        v_cmp_ne_u32 vcc, 0, v{VFV}
        s_lshl_b32 s{S_HK}, s{S_MT32}, 11
        s_add_u32 s{S_HK}, s{S_HK}, {hx(WS_O)}
        s_cmp_eq_u64 vcc, -1
        s_cbranch_scc0 {name}_G_poll
        {name}_G_go:
        """)
        gslow(f"""
        {name}_G_poll:
        s_mov_b32 s5, 0x400000
        {name}_G_poll1:
        buffer_load_dword v{VFV}, v{VFA}, s[{SRD_WS}:{SRD_WS+3}], 0 offen sc1
        s_waitcnt vmcnt(0)
        v_cmp_ne_u32 vcc, 0, v{VFV}
        s_sub_u32 s5, s5, 1
        s_cbranch_scc1 {name}_G_go
        s_cmp_eq_u64 vcc, -1
        s_cbranch_scc1 {name}_G_go
        s_sleep 1
        s_branch {name}_G_poll1
        """)
        stp(o, 11)
        for m in range(112, FLAGU + HD):
            for ts in range(2): emit(o, ldH(m, ts, True))
            if m & 1: o(HADD)
    def tl(n, ts):
        m = n + HD
        if m < 112: return ldH(m, ts, False)
        if n < FLAGU or m > 143: return None
        return ldH(m, ts, True)
    nxt = [N01+96]
    def wd(k):
        r = []
        for _ in range(k):
            if nxt[0] > 143: break
            r += dW1(nxt[0]) + ["NOP"]*4; nxt[0] += 1
        return r
    pre = {FLAGU: flagwait}
    if GP2: pre[GPU_] = lambda o: o(f"s_setprio {prioG}")
    for i, n0 in enumerate(range(80, 144, 10)):
        if stamp: a(f"s_memtime s[4:5]\ns_waitcnt lgkmcnt(0)\nv_writelane_b32 v210, s4, {i}")
        ex = {8: wd(4 if (merged and n0 == 80) else 5), 48: wd(5)}
        if n0 <= FLAGU-4 < n0+10: ex[8*(FLAGU-4-n0) + 2] = [FLD]
        sy = (0, 40) if n0 < 120 else ((16,) if n0 == 120 else ())
        block(a, n0, i & 1, nun=min(U, 144-n0), syncs=sy, strict=(16 if n0 == 120 else None), extra=ex, loads=tl, scale_after=111, pre=pre)
    stp(a, 12)
    a(f"""
    v_and_b32 v{VT}, 15, v0
    v_lshlrev_b32 v{VT}, 11, v{VT}
    v_bfe_u32 v{VT+1}, v0, 4, 1
    v_lshl_add_u32 v{VT}, v{VT+1}, 5, v{VT}
    v_lshrrev_b32 v{VT+1}, 5, v0
    v_lshl_add_u32 v{VT}, v{VT+1}, 4, v{VT}
    v_add_u32 v{VT+1}, 0x8000, v{VT}
    s_lshl_b32 s4, s{S_MT32}, 16
    s_lshl_b32 s5, s{S_NI}, 7
    s_add_u32 s4, s4, s5
    """)
    for ts in (1, 0):
        for p in (1, 0):
            r = WF + (ts*2+p)*4
            for i in range(4): a(f"v_cvt_pk_bf16_f32 v{r+i}, v{ACC+16*ts+8*p+2*i}, v{ACC+16*ts+8*p+2*i+1}")
            a("s_nop 1")
            a(f"v_permlane16_swap_b32 v{r}, v{r+2}\nv_permlane16_swap_b32 v{r+1}, v{r+3}")
            a(f"buffer_store_dwordx4 {vr(r,4)}, v{VT+ts}, s[{SRD_OUT}:{SRD_OUT+3}], s4 offen offset:{64*p}" + (" sc1" if "osc1" in abl else "") + (" nt" if "ont" in abl else ""))
    a(f"s_branch {name}_fin")
    a.l += gslow.l
    a.raw(f"{name}_fin:")
    if stamp:
        T = 220
        a("s_waitcnt vmcnt(0)")
        stp(a, 13); stp(a, 14, True)
        a(f"""
        s_lshl_b32 s4, s2, 3
        s_add_u32 s4, s4, s{S_WAVE}
        s_lshl_b32 s4, s4, 6
        s_add_u32 s4, s4, {hx(0x1E80000)}
        s_mov_b64 exec, -1
        v_mov_b32 v219, 0
        """)
        for i, (r, rel) in enumerate([(4,1),(6,1),(13,1),(2,0),(14,0),(0,0),(5,0),(7,0),(8,1),(9,1),(10,1),(11,1),(12,1),(15,0),(16,0),(17,0)]):
            if rel: a(f"s_sub_u32 s{ST+r}, s{ST+r}, s{ST}")
            a(f"v_mov_b32 v{T+i}, s{ST+r}")
        a(f"v_lshlrev_b32 v218, 2, v0\ns_add_u32 s5, s4, 0x40000\ns_mov_b64 exec, 0xffff\ns_cmp_ge_u32 s{S_WAVE}, 4\ns_cselect_b64 vcc, -1, 0\nv_cndmask_b32 v198, v198, v210, vcc\nbuffer_store_dword v198, v218, s[{SRD_WS}:{SRD_WS+3}], s5 offen")
        a("s_mov_b64 exec, 1")
        for i in range(4):
            a(f"buffer_store_dwordx4 v[{T+4*i}:{T+4*i+3}], v219, s[{SRD_WS}:{SRD_WS+3}], s4 offen offset:{16*i}")
    a.raw(f"{name}_end:")
    a("s_endpgm")
    return a.text()
```

```python
from common import *

XSZ = 32768
WB = 98304; WSZ = 32768
KVB = 65536; KVSZ = 8192
K1_LDS = 163840

V_X0, V_X1, V_W0, V_W1, V_KV = 1, 2, 3, 4, 5
V_DX = 6
V_DW = 8
V_DKV = 12
V_P, V_PD, V_GA, V_GO, V_GX, V_GW, V_GZ = 6, 7, 8, 9, 10, 11, 12
V_GT = 14
V_ST, V_ST2 = 14, 15
KVW = 16
KVA = 24
WF = 32
XF = 96
ACC = 128
def acc(u, s): return ACC + (u*4+s)*4
def wf(st, s, kh): return WF + st*32 + s*8 + kh*4
def xf(u, kh): return XF + (u & 3)*8 + kh*4

S_WAVE = 3
SRD_X, SRD_W0, SRD_W1, SRD_K, SRD_V, SRD_WS, SRD_G, SRD_P = 8, 12, 16, 20, 24, 44, 48, 52
S_MT, S_NT, S_Q, S_WM, S_WN = 56, 57, 58, 59, 60
S_XA = 61
S_WK, S_KVK, S_WSTEP = 65, 66, 67
S_XT, S_XT1, S_XT2 = 68, 69, 70
S_WT, S_KVT = 71, 72
S_D, S_D2, S_CNT, S_C32 = 73, 74, 75, 76
S_PK, S_PSTEP, S_GK, S_MSK = 77, 78, 79, 80
S_ROT = 81
S_E0, S_E1, S_E2, S_E3 = 82, 83, 84, 85
ST = 86

def gen_k1(name="k1_kernel", stamp=False, abl=(), merged=False):
    PD = 1
    for x in abl:
        if x.startswith("pd"): PD = int(x[2:])
    pf = "nopf" not in abl
    NUPF = 10; NUPQ = 14; NPK = 3; NE = 0
    for x in abl:
        if x.startswith("ne"): NE = int(x[2:])
        if x.startswith("npk"): NPK = int(x[3:])
        if x.startswith("upf"): NUPF = int(x[3:])
        if x.startswith("upq"): NUPQ = int(x[3:])
    uniq = "uniq" in abl
    SCM = " sc1" if merged else ""
    SC = SCM if merged else (" sc0" if "ssc0" in abl else "") + (" sc1" if "ssc1" in abl else "") + (" nt" if "snt" in abl else "")
    a = Asm()
    def stp(o, i, real=False):
        if stamp:
            o(f"{'s_memrealtime' if real else 's_memtime'} s[4:5]\ns_waitcnt lgkmcnt(0)\ns_mov_b32 s{ST+i}, s4")
    T = 96
    END = "k2_kernel_end" if merged else f"{name}_end"
    a.raw(f".globl {name}\n.p2align 8\n.type {name},@function\n{name}:")
    if stamp: a(f"s_memtime s[{ST}:{ST+1}]\ns_memrealtime s[{ST+2}:{ST+3}]")
    a(f"""
    s_load_dwordx4 s[28:31], s[0:1], 0
    s_load_dwordx4 s[36:39], s[0:1], 48
    s_load_dwordx4 s[32:35], s[0:1], 16
    s_load_dwordx2 s[40:41], s[0:1], 72
    s_load_dwordx2 s[42:43], s[0:1], 96
    """)
    CW = 8
    for x in abl:
        if x.startswith("cw"): CW = int(x[2:])
    if "nocpf" not in abl:
        a(f"""
        s_cmp_ge_u32 s2, {CW}
        s_cbranch_scc1 {name}_nocpf
        s_getpc_b64 s[4:5]
        {name}_pc:
        s_sub_u32 s4, s4, {name}_pc-{name}
        s_subb_u32 s5, s5, 0
        v_lshlrev_b32 v2, 7, v0
        v_min_u32 v3, k2_kernel_end-{name}, v2
        global_load_dword v255, v3, s[4:5]
        v_add_u32 v2, 0x10000, v2
        v_min_u32 v3, k2_kernel_end-{name}, v2
        global_load_dword v255, v3, s[4:5]
        {name}_nocpf:
        """)
    a(f"""
    s_cmp_ge_u32 s2, 256
    s_cbranch_scc1 {END}
    v_lshrrev_b32 v1, 6, v0
    v_and_b32 v0, 63, v0
    v_readfirstlane_b32 s{S_WAVE}, v1
    s_and_b32 s4, s2, 7
    s_lshr_b32 s5, s2, 3
    """)
    if "xe" in abl or "xo" in abl:
        a(f"""
        {"s_xor_b32 s4, s4, 1" if "xo" in abl else ""}
        s_and_b32 s{S_MT}, s5, 7
        s_lshr_b32 s5, s5, 3
        s_lshr_b32 s6, s4, 1
        s_add_u32 s7, s6, 28
        s_mul_i32 s6, s6, 7
        s_add_u32 s6, s6, s5
        s_cmp_eq_u32 s5, 3
        s_cselect_b32 s7, s7, s6
        s_add_u32 s6, s6, 3
        s_and_b32 s4, s4, 1
        s_cselect_b32 s{S_NT}, s6, s7
        """)
    elif "x84" in abl:
        a(f"""
        s_and_b32 s{S_MT}, s5, 7
        s_lshr_b32 s5, s5, 3
        s_mul_i32 s6, s4, 3
        s_add_u32 s6, s6, s5
        s_add_u32 s7, s4, 28
        s_cmp_eq_u32 s5, 3
        s_cselect_b32 s6, s7, s6
        s_lshl_b32 s7, s4, 2
        s_add_u32 s7, s7, s5
        s_sub_u32 s7, s7, 4
        s_cmp_lt_u32 s4, 4
        s_cselect_b32 s{S_NT}, s6, s7
        """)
    else:
        a(f"""
        s_and_b32 s6, s4, 1
        s_lshl_b32 s6, s6, 2
        s_and_b32 s7, s5, 3
        s_add_u32 s{S_MT}, s6, s7
        s_lshr_b32 s4, s4, 1
        s_lshr_b32 s5, s5, 2
        s_add_u32 s6, s4, 28
        s_mul_i32 s4, s4, 7
        s_add_u32 s4, s4, s5
        s_cmp_eq_u32 s5, 7
        s_cselect_b32 s{S_NT}, s6, s4
        """)
    a(f"""
    s_lshr_b32 s{S_WM}, s{S_WAVE}, 2
    s_and_b32 s{S_WN}, s{S_WAVE}, 3
    s_sub_u32 s{S_Q}, s{S_NT}, 28
    s_cselect_b32 s{S_Q}, 0, s{S_Q}
    s_cselect_b32 s4, 7168, 0
    s_cselect_b32 s5, 0, 2048
    s_add_u32 s4, s4, s5
    s_lshl_b32 s5, s{S_NT}, 8
    s_lshl_b32 s6, s{S_Q}, 9
    s_cmp_ge_u32 s{S_NT}, 28
    s_cselect_b32 s5, s6, s5
    s_lshl_b32 s{S_WSTEP}, s4, 6
    s_mov_b32 s{SRD_X+2}, 0x400000
    s_mov_b32 s{SRD_X+3}, 0x20000
    s_mov_b32 s{SRD_W0+3}, 0x20000
    s_mov_b32 s{SRD_W1+3}, 0x20000
    s_mov_b32 s{SRD_WS+2}, {hx(WS_SIZE)}
    s_mov_b32 s{SRD_WS+3}, 0x20000
    s_mov_b32 s{S_C32}, {hx(XSZ)}
    s_cmp_lt_u32 s{S_WAVE}, 4
    s_cbranch_scc1 {name}_cpro
    """)
    def srd_w(o):
        o(f"""
        s_add_u32 s6, s30, 256
        s_addc_u32 s7, s31, 0
        s_cmp_ge_u32 s{S_NT}, 28
        s_cselect_b32 s{SRD_W0}, s30, s36
        s_cselect_b32 s{SRD_W0+1}, s31, s37
        s_cselect_b32 s{SRD_W1}, s6, s38
        s_cselect_b32 s{SRD_W1+1}, s7, s39
        s_mov_b32 s6, 0x700000
        s_cselect_b32 s{SRD_W0+2}, 0x200000, s6
        s_cselect_b32 s{SRD_W1+2}, 0x1fff00, s6
        s_mov_b32 s{SRD_X}, s28
        s_mov_b32 s{SRD_X+1}, s29
        """)
    def lds_addrs(o):
        o(f"""
        v_and_b32 v{T}, 15, v0
        v_lshrrev_b32 v{T+1}, 4, v0
        s_lshl_b32 s6, s{S_WM}, 14
        v_lshlrev_b32 v{T+2}, 7, v{T}
        v_add_u32 v{T+2}, s6, v{T+2}
        v_lshrrev_b32 v{T+3}, 1, v{T}
        v_xor_b32 v{T+3}, v{T+3}, v{T+1}
        v_lshl_add_u32 v{V_X0}, v{T+3}, 4, v{T+2}
        v_xor_b32 v{V_X1}, 64, v{V_X0}
        v_bfe_u32 v{T+2}, v0, 2, 2
        v_and_b32 v{T+3}, 3, v0
        v_lshl_add_u32 v{T+4}, v{T+1}, 3, v{T+2}
        v_and_b32 v{T+5}, 1, v{T+1}
        v_lshl_or_b32 v{T+6}, v{T+5}, 2, v{T+2}
        s_lshl_b32 s6, s{S_WN}, 1
        v_xor_b32 v{T+6}, s6, v{T+6}
        v_lshlrev_b32 v{T+6}, 5, v{T+6}
        v_lshl_add_u32 v{T+6}, v{T+4}, 8, v{T+6}
        v_lshl_add_u32 v{T+6}, v{T+3}, 3, v{T+6}
        v_add_u32 v{V_W0}, {hx(WB)}, v{T+6}
        v_xor_b32 v{V_W1}, 32, v{V_W0}
        s_and_b32 s6, s{S_WN}, 1
        v_xor_b32 v{T+5}, s6, v{T+5}
        v_lshlrev_b32 v{T+5}, 5, v{T+5}
        v_lshl_add_u32 v{T+5}, v{T+4}, 6, v{T+5}
        v_lshl_add_u32 v{T+5}, v{T+3}, 3, v{T+5}
        s_lshr_b32 s6, s{S_WN}, 1
        s_lshl_b32 s6, s6, 12
        s_add_u32 s6, s6, {hx(KVB)}
        v_add_u32 v{V_KV}, s6, v{T+5}
        s_mov_b32 s{SRD_WS}, s42
        s_mov_b32 s{SRD_WS+1}, s43
        s_mov_b32 s{S_XT1}, {hx(XSZ)}
        s_mov_b32 s{S_XT2}, {hx(2*XSZ)}
        """)
    def flag_addrs(o, v, t, with_o):
        o(f"""
        s_lshl_b32 s4, s{S_MT}, 2
        s_add_u32 s4, s4, s{S_Q}
        s_lshl_b32 s4, s4, 2
        s_add_u32 s4, s4, {hx(WS_FQ - 256)}
        v_lshl_add_u32 v{t}, v0, 7, s4
        s_cmp_ge_u32 s{S_NT}, 28
        s_cselect_b32 s5, {2+NREP}, 2
        v_mov_b32 v{v}, 0x7fffff00
        v_cmp_gt_u32 vcc, s5, v0
        s_lshl_b32 s4, s{S_MT}, 5
        s_add_u32 s4, s4, s{S_NT}
        v_cndmask_b32 v{v}, v{v}, v{t}, vcc
        s_lshl_b32 s4, s4, 2
        s_add_u32 s4, s4, {hx(WS_F1)}
        v_writelane_b32 v{v}, s4, 1
        """)
        if with_o:
            o(f"""
            s_and_b32 s4, s2, 7
            s_lshr_b32 s5, s2, 3
            s_lshr_b32 s6, s4, 1
            s_lshl_b32 s6, s6, 2
            s_and_b32 s7, s5, 3
            s_add_u32 s6, s6, s7
            s_and_b32 s4, s4, 1
            s_lshl_b32 s4, s4, 3
            s_lshr_b32 s5, s5, 2
            s_add_u32 s4, s4, s5
            s_lshl_b32 s6, s6, 5
            s_add_u32 s4, s4, s6
            s_lshl_b32 s4, s4, 2
            s_add_u32 s4, s4, {hx(WS_FLAG)}
            """)
        else: o("s_mov_b32 s4, 0x7fffff00")
        o(f"v_writelane_b32 v{v}, s4, 0")
    def dispatch(o, h):
        o(f"""
        s_cmp_lt_u32 s{S_NT}, 28
        s_cbranch_scc1 {name}_F{h}
        s_cmp_lt_u32 s{S_WN}, 2
        s_cbranch_scc1 {name}_K{h}
        s_branch {name}_V{h}
        """)
    a(f"""
    v_lshrrev_b32 v{T}, 3, v0
    v_lshrrev_b32 v{T+1}, 4, v0
    v_and_b32 v{T+2}, 7, v0
    v_lshlrev_b32 v{T}, 11, v{T}
    v_xor_b32 v{T+2}, v{T+1}, v{T+2}
    v_lshl_add_u32 v{V_DX}, v{T+2}, 4, v{T}
    v_xor_b32 v{V_DX+1}, 64, v{V_DX}
    v_add_u32 v{V_DX+1}, 0x4000, v{V_DX+1}
    s_lshl_b32 s6, s{S_WN}, 4
    v_add_u32 v{T+3}, s6, v{T+1}
    v_mul_lo_u32 v{T+3}, v{T+3}, s4
    v_bfe_u32 v{T+2}, v0, 1, 3
    v_xor_b32 v{T}, v{T+1}, v{T+2}
    v_lshlrev_b32 v{T}, 5, v{T}
    v_and_b32 v{T+2}, 1, v0
    v_lshl_add_u32 v{T}, v{T+2}, 4, v{T}
    v_add3_u32 v{V_DW}, v{T}, v{T+3}, s5
    s_lshl_b32 s6, s4, 2
    v_add_u32 v{V_DW+1}, s6, v{V_DW}
    v_xor_b32 v{T}, 0x80, v{T}
    v_add3_u32 v{V_DW+2}, v{T}, v{T+3}, s5
    s_lshl_b32 s7, s4, 3
    v_add_u32 v{V_DW+2}, s7, v{V_DW+2}
    v_add_u32 v{V_DW+3}, s6, v{V_DW+2}
    s_lshl_b32 s6, s{S_WN}, 1
    s_and_b32 s7, s6, 2
    s_add_u32 s7, s7, s{S_Q}
    s_and_b32 s6, s6, 4
    s_lshl_b32 s4, s{S_MT}, 3
    s_add_u32 s6, s6, s4
    s_and_b32 s4, s7, 3
    s_add_u32 s4, s4, s6
    s_lshl_b32 s{S_XA}, s4, 16
    s_add_u32 s7, s7, 1
    s_and_b32 s4, s7, 3
    s_add_u32 s4, s4, s6
    s_lshl_b32 s{S_XA+2}, s4, 16
    s_add_u32 s{S_XA+1}, s{S_XA}, 0x8000
    s_add_u32 s{S_XA+3}, s{S_XA+2}, 0x8000
    s_lshl_b32 s{S_XT}, s{S_WN}, 13
    s_lshl_b32 s{S_WT}, s{S_WN}, 12
    s_add_u32 s{S_WT}, s{S_WT}, {hx(WB)}
    s_lshl_b32 s{S_KVT}, s{S_WN}, 10
    s_add_u32 s{S_KVT}, s{S_KVT}, {hx(KVB)}
    s_mov_b32 s{S_WK}, 0
    s_mov_b32 s{S_KVK}, 0
    v_lshrrev_b32 v{T}, 2, v0
    s_lshl_b32 s6, s{S_WN}, 4
    v_add_u32 v{T}, s6, v{T}
    v_lshlrev_b32 v{T}, 6, v{T}
    v_lshrrev_b32 v{T+1}, 5, v0
    v_lshlrev_b32 v{T+1}, 1, v{T+1}
    v_and_b32 v{T+2}, 3, v0
    v_xor_b32 v{T+1}, v{T+1}, v{T+2}
    v_lshl_add_u32 v{V_DKV}, v{T+1}, 4, v{T}
    s_mov_b32 s{SRD_K+2}, 0x10000
    s_mov_b32 s{SRD_K+3}, 0x20000
    s_mov_b32 s{SRD_V+2}, 0x10000
    s_mov_b32 s{SRD_V+3}, 0x20000
    s_waitcnt lgkmcnt(0)
    """)
    stp(a, 8)
    srd_w(a)
    a(f"""
    s_mov_b32 s{SRD_K}, s32
    s_mov_b32 s{SRD_K+1}, s33
    s_mov_b32 s{SRD_V}, s34
    s_mov_b32 s{SRD_V+1}, s35
    """)
    def dma(vo, srd, so, mb, mo, post=()):
        pol = " nt" if ("wnt" in abl and srd in (SRD_W0, SRD_W1)) or ("xnt" in abl and srd == SRD_X) else ""
        return [f"s_add_u32 m0, s{mb}, {hx(mo)}" if mo else f"s_mov_b32 m0, s{mb}",
                f"buffer_load_dwordx4 v{vo}, s[{srd}:{srd+3}], s{so} offen{pol} lds"] + list(post)
    def dWl(slot):
        r = []
        for i in range(4):
            r.append(dma(V_DW+i, SRD_W0, S_WK, S_WT, slot*WSZ + i*1024))
            r.append(dma(V_DW+i, SRD_W1, S_WK, S_WT, slot*WSZ + 16384 + i*1024))
        r[-1] += [f"s_add_u32 s{S_WK}, s{S_WK}, s{S_WSTEP}"]
        return r
    def dXl(off):
        return [dma(V_DX+(i & 1), SRD_X, S_XA+(i >> 1), S_XT, off + i*1024,
                    post=([f"s_add_u32 s{S_XA+(i>>1)}, s{S_XA+(i>>1)}, 128"] if i & 1 else [])) for i in range(8)]
    def dXc():
        r = [dma(16+(i & 1), SRD_X, S_XA+(i >> 1), S_WT, i*1024,
                 post=([f"s_add_u32 s{S_XA+(i>>1)}, s{S_XA+(i>>1)}, 128"] if i & 1 else [])) for i in range(8)]
        r[-1] += [f"s_add_u32 s{S_WT}, s{S_WT}, {hx(XSZ)}", f"s_cmp_ge_u32 s{S_WT}, {hx(3*XSZ)}", f"s_cselect_b32 s4, {hx(3*XSZ)}, 0", f"s_sub_u32 s{S_WT}, s{S_WT}, s4"]
        return r
    def cx_setup(o):
        o(f"""
        v_lshrrev_b32 v18, 3, v0
        v_lshrrev_b32 v19, 4, v0
        v_and_b32 v20, 7, v0
        v_lshlrev_b32 v18, 11, v18
        v_xor_b32 v20, v19, v20
        v_lshl_add_u32 v16, v20, 4, v18
        v_xor_b32 v17, 64, v16
        v_add_u32 v17, 0x4000, v17
        s_lshl_b32 s4, s{S_MT}, 2
        s_add_u32 s4, s4, s{S_WN}
        s_lshl_b32 s4, s4, 17
        s_add_u32 s{S_XA}, s4, 256
        s_add_u32 s{S_XA+1}, s{S_XA}, 0x8000
        s_add_u32 s{S_XA+2}, s{S_XA}, 0x10000
        s_add_u32 s{S_XA+3}, s{S_XA}, 0x18000
        s_lshl_b32 s{S_WT}, s{S_WN}, 13
        s_add_u32 s{S_WT}, s{S_WT}, {hx(2*XSZ)}
        s_mov_b32 s{SRD_X}, s28
        s_mov_b32 s{SRD_X+1}, s29
        """)
    def cq_setup(o):
        o(f"""
        v_lshrrev_b32 v{V_GT}, 3, v0
        v_lshrrev_b32 v{V_GX}, 4, v0
        v_and_b32 v{V_DX+1}, 7, v0
        v_lshlrev_b32 v{V_GT}, 11, v{V_GT}
        v_xor_b32 v{V_DX+1}, v{V_GX}, v{V_DX+1}
        v_lshl_add_u32 v{V_DX}, v{V_DX+1}, 4, v{V_GT}
        v_xor_b32 v{V_DX+1}, 64, v{V_DX}
        v_add_u32 v{V_DX+1}, 0x4000, v{V_DX+1}
        s_lshl_b32 s6, s{S_WN}, 1
        s_and_b32 s7, s6, 2
        s_add_u32 s7, s7, s{S_Q}
        s_and_b32 s6, s6, 4
        s_lshl_b32 s4, s{S_MT}, 3
        s_add_u32 s6, s6, s4
        s_and_b32 s4, s7, 3
        s_add_u32 s4, s4, s6
        s_lshl_b32 s4, s4, 16
        s_add_u32 s{S_XA}, s4, 256
        s_add_u32 s{S_XA+1}, s4, 0x8100
        s_add_u32 s7, s7, 1
        s_and_b32 s4, s7, 3
        s_add_u32 s4, s4, s6
        s_lshl_b32 s4, s4, 16
        s_add_u32 s{S_XA+2}, s4, 256
        s_add_u32 s{S_XA+3}, s4, 0x8100
        s_lshl_b32 s{S_XT}, s{S_WN}, 13
        s_mov_b32 s{SRD_X}, s28
        s_mov_b32 s{SRD_X+1}, s29
        """)
    def dKVl(slot):
        return [dma(V_DKV, SRD_K, S_KVK, S_KVT, slot*KVSZ),
                dma(V_DKV, SRD_V, S_KVK, S_KVT, slot*KVSZ+4096, post=[f"s_add_u32 s{S_KVK}, s{S_KVK}, 4096"])]
    def dKVc(slot):
        return [dma(V_GO, SRD_G, S_KVK, S_XT, slot*KVSZ + KVB), dma(V_GO, SRD_G, S_KVK, S_XT, slot*KVSZ + KVB + 1024)]
    def burst(o, l):
        for g in l:
            o(g[0]); o("s_nop 0")
            for t in g[1:]: o(t)
    def dW(o, slot): burst(o, dWl(slot))
    def dX(o, off): burst(o, dXl(off))
    def dKV(o, slot): burst(o, dKVl(slot))
    if "xfirst" in abl: dX(a, 0); dW(a, 0)
    elif "xmix" in abl:
        l1, l2 = dWl(0), dXl(0)
        burst(a, [g for p in zip(l2, l1) for g in p])
    else: dW(a, 0); dX(a, 0)
    if "kv0e" in abl:
        a(f"s_cmp_lt_u32 s{S_NT}, 28\ns_cbranch_scc1 {name}_nokv0"); dKV(a, 0); a.lab(f"{name}_nokv0")
    if "w1e" in abl: dW(a, 1)
    stp(a, 9)
    if stamp: a(f"s_mov_b32 s{ST+15}, 0")
    lds_addrs(a)
    dispatch(a, "L")
    a.raw(f"{name}_cpro:")
    if "noprio" not in abl: a("s_setprio 1")
    a(f"""
    s_mov_b32 s{SRD_G+2}, 0x800
    s_mov_b32 s{SRD_G+3}, 0x20000
    s_lshl_b32 s4, s{S_NT}, 2
    s_add_u32 s4, s4, s{S_WN}
    s_lshl_b32 s4, s4, 1
    v_lshrrev_b32 v{T}, 5, v0
    v_add_u32 v{T}, s4, v{T}
    s_lshl_b32 s5, s{S_Q}, 5
    v_subrev_u32 v{T+1}, s5, v{T}
    v_and_b32 v{T+1}, 127, v{T+1}
    v_and_b32 v{T}, 128, v{T}
    v_or_b32 v{T}, v{T}, v{T+1}
    v_bfe_u32 v{T+1}, v{T}, 1, 3
    v_bfe_u32 v{T+2}, v0, 2, 3
    v_xor_b32 v{T+1}, v{T+1}, v{T+2}
    v_lshlrev_b32 v{T}, 7, v{T}
    v_lshl_add_u32 v{T}, v{T+1}, 4, v{T}
    v_and_b32 v{T+1}, 3, v0
    v_lshl_add_u32 v{V_GA}, v{T+1}, 2, v{T}
    v_and_b32 v{V_GO}, 31, v0
    v_lshlrev_b32 v{V_GO}, 2, v{V_GO}
    v_mov_b32 v{V_GZ}, 0
    v_mov_b32 v{V_GZ+1}, 0
    s_mov_b32 s{S_MSK}, 0xffff0000
    s_mov_b32 s{S_GK}, 0
    s_mov_b32 s{S_XT}, 0
    s_waitcnt lgkmcnt(0)
    """)
    stp(a, 8)
    a(f"""
    s_mov_b32 s{SRD_G}, s40
    s_mov_b32 s{SRD_G+1}, s41
    buffer_load_dword v{V_GW}, v{V_GO}, s[{SRD_G}:{SRD_G+3}], s{S_GK} offen
    s_add_u32 s{S_GK}, s{S_GK}, 128
    """)
    if "tlb" in abl:
        a(f"""
        s_cmp_ge_u32 s2, 16
        s_cbranch_scc1 {name}_notlb
        s_load_dwordx2 s[{SRD_K}:{SRD_K+1}], s[0:1], 64
        s_load_dwordx2 s[{SRD_V}:{SRD_V+1}], s[0:1], 32
        s_load_dwordx2 s[{SRD_P}:{SRD_P+1}], s[0:1], 80
        s_mov_b32 s{SRD_K+2}, 0x700000
        s_mov_b32 s{SRD_K+3}, 0x20000
        s_mov_b32 s{SRD_V+2}, 0x200000
        s_mov_b32 s{SRD_V+3}, 0x20000
        s_mov_b32 s{SRD_P+2}, 0x400000
        s_mov_b32 s{SRD_P+3}, 0x20000
        s_mov_b32 s{SRD_WS}, s42
        s_mov_b32 s{SRD_WS+1}, s43
        s_mov_b32 s{SRD_W0}, s36
        s_mov_b32 s{SRD_W0+1}, s37
        s_mov_b32 s{SRD_W0+2}, 0x700000
        s_mov_b32 s{SRD_W1}, s38
        s_mov_b32 s{SRD_W1+1}, s39
        s_mov_b32 s{SRD_W1+2}, 0x700000
        v_and_b32 v{T}, 31, v0
        v_lshlrev_b32 v{T}, 20, v{T}
        s_waitcnt lgkmcnt(0)
        s_cmp_eq_u32 s{S_WAVE}, 0
        s_cbranch_scc0 {name}_notlb
        buffer_load_dword v255, v{T}, s[{SRD_W0}:{SRD_W0+3}], 0 offen sc1
        buffer_load_dword v255, v{T}, s[{SRD_W1}:{SRD_W1+3}], 0 offen sc1
        buffer_load_dword v255, v{T}, s[{SRD_K}:{SRD_K+3}], 0 offen sc1
        buffer_load_dword v255, v{T}, s[{SRD_V}:{SRD_V+3}], 0 offen sc1
        buffer_load_dword v255, v{T}, s[{SRD_P}:{SRD_P+3}], 0 offen sc1
        buffer_load_dword v255, v{T}, s[{SRD_WS}:{SRD_WS+3}], 0 offen sc1
        {name}_notlb:
        """)
    stp(a, 9)
    lds_addrs(a)
    if merged:
        a(f"""
        v_mov_b32 v{V_P}, 0x7fffff00
        s_mov_b32 s{S_D}, 0
        s_mov_b32 s{SRD_K}, s42
        s_mov_b32 s{SRD_K+1}, s43
        s_mov_b32 s{SRD_K+2}, 0
        s_mov_b32 s{SRD_K+3}, 0x20000
        s_cmp_lg_u32 s{S_WAVE}, 0
        s_cbranch_scc1 {name}_noclr
        s_load_dwordx2 s[{SRD_K}:{SRD_K+1}], s[0:1], 88
        s_mov_b32 s{SRD_K+2}, 256
        s_mov_b32 s{SRD_K+3}, 0x20000
        """)
        flag_addrs(a, V_P, V_PD, True)
        a(f"""
        s_lshr_b32 s{S_D}, s2, 3
        s_mul_i32 s{S_D}, s{S_D}, 6
        s_lshr_b32 s{S_D}, s{S_D}, 5
        s_add_u32 s{S_D}, s{S_D}, 1
        s_waitcnt lgkmcnt(0)
        {name}_noclr:
        """)
    dispatch(a, "C")

    LT = 0; lid = [0]
    def lab_id():
        lid[0] += 1; return lid[0]
    for x in abl:
        if x.startswith("lt"): LT = int(x[2:])
    W2U = 40
    for x in abl:
        if x.startswith('wu'): W2U = int(x[2:])
    cx = "cx" in abl
    CQ = 0
    for x in abl:
        if x.startswith("cq"): CQ = int(x[2:])
    w2 = "now2" not in abl
    VP, VP2, VPD = 16, 17, 18
    PFL = [[f"s_nop 0", f"buffer_load_dword v{VPD}, v{VP}, s[{SRD_P}:{SRD_P+3}], s{S_PK} offen", f"s_add_u32 s{S_PK}, s{S_PK}, s{S_PSTEP}"]]
    if "pnt" in abl:
        cnt = [0]
        def pfl0():
            cnt[0] += 1; l = f"{name}_pn{cnt[0]}"
            return [f"s_cmp_eq_u32 s{S_D}, 0", f"s_cbranch_scc1 {l}a", f"buffer_load_dword v{VPD}, v{VP}, s[{SRD_P}:{SRD_P+3}], s{S_PK} offen", f"s_branch {l}b", f"{l}a:",
                    f"buffer_load_dword v{VPD}, v{VP}, s[{SRD_P}:{SRD_P+3}], s{S_PK} offen nt", f"{l}b:", f"s_add_u32 s{S_PK}, s{S_PK}, s{S_PSTEP}"]
    else: pfl0 = lambda: PFL[0]
    if w2: PFL.append([f"s_nop 0", f"buffer_load_dword v{VPD}, v{VP2}, s[{SRD_K}:{SRD_K+3}], s{S_KVT} offen", f"v_add_u32 v{VP2}, s{S_KVK}, v{VP2}" if any(x.startswith("w2d") for x in abl) else f"s_add_u32 s{S_KVT}, s{S_KVT}, s{S_KVK}"])
    VP3 = 19
    WL = 0
    for x in abl:
        if x.startswith("wl"): WL = int(x[2:])
    if WL: PFL.append([f"s_nop 0", f"buffer_load_dword v{VPD}, v{VP3}, s[{SRD_WS}:{SRD_WS+3}], s{S_GK} offen", f"s_add_u32 s{S_GK}, s{S_GK}, {hx(896*WL*128)}"])
    NPF = len(PFL) if pf else 0
    def p_setup(o):
        T = 20
        o(f"""
        s_load_dwordx2 s[24:25], s[0:1], 64
        s_load_dwordx2 s[26:27], s[0:1], 32
        s_mul_i32 s6, s{S_MT}, 28
        s_add_u32 s6, s6, s{S_NT}
        v_lshrrev_b32 v{T}, 2, v0
        v_lshlrev_b32 v{T}, 7, v{T}
        s_lshl_b32 s7, s6, 11
        v_add_u32 v{T}, s7, v{T}
        v_min_u32 v{T+1}, 9, v0
        s_mul_i32 s7, s6, 10
        v_add_u32 v{T+1}, s7, v{T+1}
        v_min_u32 v{T+1}, 2047, v{T+1}
        v_lshlrev_b32 v{T+1}, 11, v{T+1}
        v_lshrrev_b32 v{VP2}, 3, v0
        v_lshlrev_b32 v{VP2}, 7, v{VP2}
        s_cmp_ge_u32 s6, 128
        s_cselect_b32 s7, 3, 127
        s_and_b32 s7, s7, s6
        s_lshl_b32 s7, s7, 10
        v_add_u32 v{T+2}, s7, v{VP2}
        s_cmp_ge_u32 s6, 128
        s_cselect_b32 s7, 1, 32
        s_lshl_b32 s7, s7, 12
        s_cmp_eq_u32 s{S_WN}, 2
        s_cselect_b64 vcc, -1, 0
        s_cselect_b32 s{S_PSTEP}, 128, s{S_WSTEP}
        v_cndmask_b32 v{VP}, v{T}, v{T+1}, vcc
        s_cselect_b32 s{SRD_P}, s{SRD_X}, s{SRD_W0}
        s_cselect_b32 s{SRD_P+1}, s{SRD_X+1}, s{SRD_W0+1}
        s_cselect_b32 s{SRD_P+2}, s{SRD_X+2}, s{SRD_W0+2}
        s_cmp_eq_u32 s{S_WN}, 1
        s_cselect_b32 s{SRD_P}, s{SRD_W1}, s{SRD_P}
        s_cselect_b32 s{SRD_P+1}, s{SRD_W1+1}, s{SRD_P+1}
        s_cmp_eq_u32 s{S_WN}, 3
        s_cselect_b64 vcc, -1, 0
        s_cselect_b32 s{S_PSTEP}, s7, s{S_PSTEP}
        v_cndmask_b32 v{VP}, v{VP}, v{T+2}, vcc
        s_mul_i32 s{S_PK}, s{S_PSTEP}, {2+PD-NE}
        s_cmp_ge_u32 s6, 132
        s_cselect_b32 s4, s34, s32
        s_cselect_b32 s7, s35, s33
        s_cmp_ge_u32 s6, 136
        s_cselect_b32 s5, 0, 0x10000
        s_cmp_lt_u32 s6, 128
        s_cselect_b32 s4, s30, s4
        s_cselect_b32 s7, s31, s7
        s_cselect_b32 s5, 0x200000, s5
        s_cmp_eq_u32 s{S_WN}, 3
        s_cselect_b32 s{SRD_P}, s4, s{SRD_P}
        s_cselect_b32 s{SRD_P+1}, s7, s{SRD_P+1}
        s_cselect_b32 s{SRD_P+2}, s5, s{SRD_P+2}
        s_mov_b32 s{SRD_P+3}, 0x20000
        s_mul_i32 s4, s6, 3
        s_add_u32 s4, s4, s{S_WN}
        s_mov_b32 s5, 0x700000
        s_mov_b32 s7, {672*1024}
        """)
        if "x84" in abl:
            o(f"""
            v_lshrrev_b32 v{T}, 3, v0
            s_lshl_b32 s5, s{S_MT}, 3
            v_add_u32 v{T}, s5, v{T}
            v_mul_u32_u24 v{T}, 7168, v{T}
            v_bfe_u32 v{T+1}, v0, 2, 1
            v_lshl_add_u32 v{T}, v{T+1}, 7, v{T}
            s_lshl_b32 s5, s{S_NT}, 8
            v_add_u32 v{T}, s5, v{T}
            s_cmp_lt_u32 s{S_WN}, 2
            s_cselect_b64 vcc, -1, 0
            s_lshr_b32 s5, s2, 3
            v_cndmask_b32 v{VP}, v{VP}, v{T}, vcc
            s_mul_i32 s5, s5, 3
            v_lshrrev_b32 v{T}, 4, v0
            v_min_u32 v{T}, 2, v{T}
            v_add_u32 v{T}, s5, v{T}
            v_min_u32 v{T}, 63, v{T}
            v_lshlrev_b32 v{T}, 11, v{T}
            v_bfe_u32 v{T+1}, v0, 2, 2
            v_lshl_add_u32 v{T}, v{T+1}, 7, v{T}
            s_and_b32 s5, s2, 7
            s_lshl_b32 s7, s5, 9
            v_add_u32 v{T}, s7, v{T}
            v_lshrrev_b32 v{T+1}, 3, v0
            s_and_b32 s7, s{S_NT}, 3
            s_lshl_b32 s7, s7, 10
            v_lshl_add_u32 v{T+1}, v{T+1}, 7, s7
            s_cmp_lt_u32 s5, 4
            s_cselect_b64 vcc, -1, 0
            s_cselect_b32 s{S_D}, 0, 1
            v_cndmask_b32 v{T}, v{T+1}, v{T}, vcc
            s_cselect_b32 s{S_D2}, 32, 1
            s_lshl_b32 s{S_D2}, s{S_D2}, 12
            s_mov_b32 s7, 0
            s_cmp_eq_u32 s{S_MT}, 0
            s_cselect_b32 s7, 0x10000, 0
            s_cmp_eq_u32 s5, 5
            s_cselect_b32 s{S_E0}, s34, s32
            s_cselect_b32 s{S_E1}, s35, s33
            s_cmp_ge_u32 s5, 6
            s_cselect_b32 s7, 0, s7
            s_cmp_lt_u32 s5, 4
            s_cselect_b32 s{S_E0}, s30, s{S_E0}
            s_cselect_b32 s{S_E1}, s31, s{S_E1}
            s_cselect_b32 s7, 0x200000, s7
            s_cmp_eq_u32 s{S_WN}, 3
            s_cselect_b64 vcc, -1, 0
            s_cselect_b32 s{SRD_P}, s{S_E0}, s{SRD_P}
            v_cndmask_b32 v{VP}, v{VP}, v{T}, vcc
            s_cselect_b32 s{SRD_P+1}, s{S_E1}, s{SRD_P+1}
            s_cselect_b32 s{SRD_P+2}, s7, s{SRD_P+2}
            s_cselect_b32 s{S_PSTEP}, s{S_D2}, s{S_PSTEP}
            s_cselect_b32 s{S_D}, s{S_D}, 0
            s_mul_i32 s{S_PK}, s{S_PSTEP}, {2+PD-NE}
            s_cmp_eq_u32 s{S_WN}, 2
            s_cselect_b32 s{S_D}, 1, s{S_D}
            s_mov_b32 s5, 0x700000
            s_mov_b32 s7, {672*1024}
            """)
        else:
            o(f"s_cmp_lt_u32 s{S_WN}, 2\ns_cselect_b32 s{S_D}, 0, 1")
        o(f"""
        s_waitcnt lgkmcnt(0)
        s_cmp_eq_u32 s{S_WN}, 3
        s_cselect_b32 s4, s6, s4
        s_cselect_b32 s{SRD_K}, s26, s24
        s_cselect_b32 s{SRD_K+1}, s27, s25
        s_cselect_b32 s{SRD_K+2}, 0x200000, s5
        s_cselect_b32 s{S_KVK}, {224*1024}, s7
        s_lshl_b32 s{S_KVT}, s4, 10
        """)
        if "w2h" in abl: o(f"s_cmp_eq_u32 s{S_WN}, 3\ns_cselect_b32 s{SRD_K+2}, 0, {hx(W2U*65536)}")
        if "nox" in abl: o(f"s_cmp_eq_u32 s{S_WN}, 2\ns_cselect_b32 s{SRD_P+2}, 0, s{SRD_P+2}")
        for x in abl:
            if x.startswith("w2d"):
                o(f"""
                s_lshl_b32 s{S_KVK}, s{S_KVK}, 1
                s_lshl_b32 s{S_KVT}, s{S_KVT}, 1
                s_mul_i32 s4, s{S_KVK}, {int(x[3:])}
                v_lshrrev_b32 v{VP2}, 2, v0
                v_lshlrev_b32 v{VP2}, 7, v{VP2}
                v_add_u32 v{VP2}, s{S_KVT}, v{VP2}
                v_subrev_u32 v{VP2}, s4, v{VP2}
                s_mov_b32 s{S_KVT}, 0
                """)
        if WL:
            o(f"""
            s_lshl_b32 s4, s6, 2
            s_add_u32 s4, s4, s{S_WN}
            s_mul_i32 s{S_GK}, s4, {WL*128}
            v_min_u32 v{VP3}, {WL-1}, v0
            v_lshlrev_b32 v{VP3}, 7, v{VP3}
            """)
    WORDER = [(0,0),(0,1),(1,1),(1,0),(2,0),(2,1),(3,1),(3,0)]
    def rd_w(st, slot, s, kh, j):
        blk, b = s >> 1, s & 1
        r = wf(st, s, kh) + j*2
        return (f"ds_read_b64_tr_b16 v[{r}:{r+1}], v{V_W0+b} offset:{slot*WSZ + blk*16384 + kh*8192 + j*1024}", ("W", st, s, kh))
    def rd_x(role, slot, u, kh):
        r = xf(u, kh)
        off = u*2048 + (0 if role == "F" else slot*XSZ)
        return (f"ds_read_b128 v[{r}:{r+3}], v{V_X0+kh} offset:{off}", ("x", u, kh))
    def rd_kv(slot, kh, j):
        r = KVW + kh*4 + j*2
        return (f"ds_read_b64_tr_b16 v[{r}:{r+1}], v{V_KV} offset:{slot*KVSZ + kh*2048 + j*256}", ("kv", kh))

    def gate_acc(nvm, t=V_GT):
        return [f"s_waitcnt vmcnt({nvm})",
                f"v_lshlrev_b32 v{t}, 16, v{V_GX}", f"v_and_b32 v{t+1}, s{S_MSK}, v{V_GX}",
                f"v_lshlrev_b32 v{V_GX}, 16, v{V_GW}", f"v_and_b32 v{V_GW}, s{S_MSK}, v{V_GW}",
                *([f"v_pk_mul_f32 v[{t}:{t+1}], v[{t}:{t+1}], v[{V_GX}:{V_GW}]"] if "gpk" in abl else
                  [f"v_mul_f32 v{t}, v{t}, v{V_GX}", f"v_mul_f32 v{t+1}, v{t+1}, v{V_GW}"]),
                f"v_cvt_pk_bf16_f32 v{t+1}, v{t}, v{t+1}",
                f"v_lshlrev_b32 v{t}, 16, v{t+1}", f"v_and_b32 v{t+1}, s{S_MSK}, v{t+1}",
                *([f"v_pk_add_f32 v[{V_GZ}:{V_GZ+1}], v[{V_GZ}:{V_GZ+1}], v[{t}:{t+1}]"] if "gpk" in abl else
                  [f"v_add_f32 v{V_GZ}, v{V_GZ}, v{t}", f"v_add_f32 v{V_GZ+1}, v{V_GZ+1}, v{t+1}"])]
    def gate_fin():
        z = V_GZ; t = V_GX
        g = [] if "oldg" in abl else gate_acc(63, 56)[1:]
        g += [f"v_add_f32 v{z}, v{z}, v{z+1}"]
        for sh in ("row_shr:1", "row_shr:2", "row_shr:4", "row_shr:8"):
            g += ["s_nop 1", f"v_add_f32_dpp v{z}, v{z}, v{z} {sh} row_mask:0xf bank_mask:0xf bound_ctrl:1"]
        g += ["s_nop 1", f"v_add_f32_dpp v{z}, v{z}, v{z} row_bcast:15 row_mask:0xa bank_mask:0xf",
              f"v_cvt_pk_bf16_f32 v{t}, v{z}, v{z}", f"v_lshlrev_b32 v{t}, 16, v{t}",
              f"v_mul_f32 v{t}, {hx(f2u(-LOG2E))}, v{t}", f"v_exp_f32 v{t}, v{t}",
              f"s_lshl_b32 s4, s{S_MT}, 5", f"v_add_f32 v{t}, 1.0, v{t}",
              f"v_rcp_f32 v{t}, v{t}", f"s_add_u32 s4, s4, s{S_NT}", f"v_cvt_pk_bf16_f32 v{t}, v{t}, v{t}", f"v_lshlrev_b32 v{t}, 16, v{t}",
              f"v_sub_f32 v{t+1}, 1.0, v{t}", f"v_cvt_pk_bf16_f32 v{t+1}, v{t+1}, v{t+1}", f"v_lshlrev_b32 v{t+1}, 16, v{t+1}",
              f"v_lshrrev_b32 v{z}, 5, v0", f"v_lshlrev_b32 v{z}, 3, v{z}",
              "s_lshl_b32 s4, s4, 2", f"s_add_u32 s4, s4, s{S_WN}", "s_lshl_b32 s4, s4, 4", f"s_add_u32 s4, s4, {hx(WS_GATE)}",
              "s_mov_b32 exec_lo, 0x80000000", "s_mov_b32 exec_hi, 0x80000000",
              f"buffer_store_dwordx2 v[{t}:{t+1}], v{z}, s[{SRD_WS}:{SRD_WS+3}], s4 offen" + SCM,
              "s_mov_b64 exec, -1"]
        if not merged:
            g += [f"s_lshl_b32 s4, s2, 3", f"s_add_u32 s4, s4, s{S_WAVE}", "s_cmp_ge_u32 s4, 8", f"s_cbranch_scc1 {name}_fin",
              f"v_lshlrev_b32 v{z}, 2, v0", f"v_mov_b32 v{z+1}, 0", "s_and_b32 s4, s4, 3", "s_lshl_b32 s4, s4, 9", f"s_add_u32 s4, s4, {hx(WS_FLAG)}",
              f"buffer_store_dword v{z+1}, v{z}, s[{SRD_WS}:{SRD_WS+3}], s4 offen",
              f"buffer_store_dword v{z+1}, v{z}, s[{SRD_WS}:{SRD_WS+3}], s4 offen offset:256"]
        return g

    def epi_group(role, u, pk=True):
        e = []
        TE = WF
        if role == "F":
            G = acc(u, 0); U = acc(u, 2)
            if pk:
                for i in range(4): e.append(f"v_pk_mul_f32 v[{G+2*i}:{G+2*i+1}], v[{G+2*i}:{G+2*i+1}], s[{S_E0}:{S_E1}]")
            else:
                for i in range(8): e.append(f"v_mul_f32 v{G+i}, s{S_E0}, v{G+i}")
            for i in range(8): e.append(f"v_exp_f32 v{G+i}, v{G+i}")
            if pk:
                for i in range(4): e.append(f"v_pk_add_f32 v[{G+2*i}:{G+2*i+1}], v[{G+2*i}:{G+2*i+1}], 1.0 op_sel_hi:[1,0]")
            else:
                for i in range(8): e.append(f"v_add_f32 v{G+i}, 1.0, v{G+i}")
            for i in range(8): e.append(f"v_rcp_f32 v{G+i}, v{G+i}")
            if pk:
                for i in range(4): e.append(f"v_pk_mul_f32 v[{U+2*i}:{U+2*i+1}], v[{U+2*i}:{U+2*i+1}], v[{G+2*i}:{G+2*i+1}]")
            else:
                for i in range(8): e.append(f"v_mul_f32 v{U+i}, v{U+i}, v{G+i}")
            o = TE + (u & 1)*4
            for i in range(4): e.append(f"v_cvt_pk_bf16_f32 v{o+i}, v{U+2*i}, v{U+2*i+1}")
            if LT: e.append(f"s_cmp_ge_u32 s{S_NT}, {LT}\ns_cbranch_scc1 {name}_ns{lab_id()}")
            if "nohst" not in abl: e.append(f"buffer_store_dwordx4 v[{o}:{o+3}], v{V_ST}, s[{SRD_WS}:{SRD_WS+3}], s{S_E2} offen offset:{(u&1)*1024}" + SC)
            if LT: e[-1] = e.pop(-2) + "\n" + e[-1] + f"\n{name}_ns{lid[0]}:"
            if u & 1 and u < 7: e.append(f"s_add_u32 s{S_E2}, s{S_E2}, 2048")
        else:
            if u % 2 == 0:
                e += [f"s_add_u32 s4, s{S_Q}, {u>>1}", "s_and_b32 s4, s4, 3", f"s_add_u32 s4, s4, s{S_E2}", "s_lshl_b32 s4, s4, 16", f"s_add_u32 s4, s4, s{S_E3}"]
            for blk in range(2):
                R = acc(u, 2*blk)
                if pk:
                    for i in range(4): e.append(f"v_pk_mul_f32 v[{R+2*i}:{R+2*i+1}], v[{R+2*i}:{R+2*i+1}], s[{S_E0}:{S_E1}]")
                else:
                    for i in range(8): e.append(f"v_mul_f32 v{R+i}, s{S_E0}, v{R+i}")
                o = TE + 8 + blk*4
                for i in range(4): e.append(f"v_cvt_pk_bf16_f32 v{o+i}, v{R+2*i}, v{R+2*i+1}")
                e.append(f"buffer_store_dwordx4 v[{o}:{o+3}], v{V_ST if blk == 0 else V_ST2}, s[{SRD_WS}:{SRD_WS+3}], s4 offen offset:{(u&1)*1024}" + ("" if "qplain" in abl and (not merged or "wbl2" in abl) else SC))
        return e
    def epi_setup(role):
        TE = WF + 16
        e = [f"v_lshlrev_b32 v{V_ST}, 4, v0",
             f"s_lshl_b32 s4, s{S_MT}, 3", f"s_lshl_b32 s5, s{S_WM}, 2", f"s_add_u32 s{S_E2}, s4, s5"]
        if role == "F":
            e += [f"s_lshl_b32 s5, s{S_NT}, 2", f"s_add_u32 s5, s5, s{S_WN}", "s_lshl_b32 s5, s5, 6", f"s_add_u32 s4, s5, s{S_E2}",
                  f"s_lshl_b32 s{S_E2}, s4, 11", f"s_mov_b32 s{S_E0}, {hx(f2u(-LOG2E))}", f"s_mov_b32 s{S_E1}, {hx(f2u(-LOG2E))}"]
        else:
            e += [f"s_lshl_b32 s7, s{S_Q}, 3", f"s_add_u32 s7, s7, s{S_WN}", "s_lshl_b32 s7, s7, 11", f"s_add_u32 s{S_E3}, s7, {hx(WS_Q)}",
                  f"s_mov_b32 s{S_E0}, {hx(f2u(QSCALE))}", f"s_mov_b32 s{S_E1}, {hx(f2u(QSCALE))}", f"v_add_u32 v{V_ST2}, 0x2000, v{V_ST}"]
        return e
    def epi_kv(role):
        TE = WF + 16
        e = [f"s_add_u32 s5, s{S_E2}, s{S_Q}", "s_lshl_b32 s5, s5, 12", f"s_and_b32 s6, s{S_WN}, 1"]
        cv = [f"v_cvt_pk_bf16_f32 v{TE+4+i}, v{KVA+2*i}, v{KVA+2*i+1}" for i in range(4)]
        if role == "K":
            e += ["s_lshl_b32 s6, s6, 3", "s_add_u32 s5, s5, s6", f"s_add_u32 s5, s5, {hx(WS_KV)}"] + cv
            e += [f"buffer_store_dwordx2 v[{TE+4}:{TE+5}], v{V_ST}, s[{SRD_WS}:{SRD_WS+3}], s5 offen" + SCM,
                  f"buffer_store_dwordx2 v[{TE+6}:{TE+7}], v{V_ST}, s[{SRD_WS}:{SRD_WS+3}], s5 offen offset:1024" + SCM]
        else:
            e += ["s_lshl_b32 s6, s6, 10", "s_add_u32 s5, s5, s6", f"s_add_u32 s5, s5, {hx(WS_KV+2048)}"] + cv
            e += [f"buffer_store_dwordx4 v[{TE+4}:{TE+7}], v{V_ST}, s[{SRD_WS}:{SRD_WS+3}], s5 offen" + SCM]
        return e

    def early_w(o, role):
        lab = f"{name}_{role}_dbg"
        o(f"""
        s_load_dwordx2 s[{SRD_K}:{SRD_K+1}], s[0:1], 64
        s_load_dwordx2 s[{SRD_V}:{SRD_V+1}], s[0:1], 88
        s_mov_b32 s{SRD_K+2}, 0x700000
        s_mov_b32 s{SRD_V+2}, 256
        s_mov_b32 s{SRD_V+3}, 0x20000
        v_lshrrev_b32 v9, 3, v0
        v_bfe_u32 v10, v0, 1, 2
        v_lshrrev_b32 v11, 4, v0
        v_xor_b32 v10, v10, v11
        v_lshlrev_b32 v9, 11, v9
        v_lshl_add_u32 v9, v10, 5, v9
        v_and_b32 v10, 1, v0
        v_lshl_add_u32 v9, v10, 4, v9
        s_and_b32 s4, s2, 1
        s_lshl_b32 s4, s4, 3
        s_lshr_b32 s5, s2, 5
        s_add_u32 s4, s4, s5
        s_lshl_b32 s4, s4, 7
        s_lshl_b32 s5, s{S_WN}, 14
        s_add_u32 s5, s5, s4
        v_add_u32 v6, s5, v9
        v_add_u32 v7, 0x10000, v6
        v_add_u32 v8, 0x20000, v6
        s_lshl_b32 s6, s{S_WN}, 10
        s_add_u32 s6, s6, {hx(20*4096)}
        v_lshlrev_b32 v9, 2, v0
        s_waitcnt lgkmcnt(0)
        """)
        o(f"buffer_load_dword v10, v9, s[{SRD_V}:{SRD_V+3}], 0 offen sc1")
        for n in range(10):
            o(f"s_add_u32 m0, s6, {n*4096}" if n else "s_mov_b32 m0, s6")
            o(f"s_mov_b32 s7, {hx((n//3)*3*65536)}")
            o(f"buffer_load_dwordx4 v{6 + n % 3}, s[{SRD_K}:{SRD_K+3}], s7 offen lds")
    def stage(o, lq, role, half, par, first=False, dW_on=True, dX_on=True, pf_on=True, nxt_reads=True, vm=None, bar=True, last=False, tail=None, gvm=1, w2pf=False, xstop=False, dbg=False, cpf2=False):
        cur, nxt = par, 1-par
        kv = role != "F"
        C = half == "C"
        fill = {}
        def put(slot, t):
            txt = t[0] if isinstance(t, tuple) else t
            if "nolds" in abl and txt.startswith("ds_"): return
            fill.setdefault(slot, []).append(t)
        put(0, rd_x(role, cur, 3, 0)); put(1, rd_x(role, cur, 3, 1))
        for u in range(4):
            put(8*u+8, rd_x(role, cur, u+4, 0)); put(8*u+9, rd_x(role, cur, u+4, 1))
        if C:
            put(2 if last else 26, (f"ds_read_b32 v{V_GX}, v{V_GA} offset:{0 if role == 'F' else cur*XSZ}", ("g",)))
        if nxt_reads:
            if role == "F":
                put(34, f"s_cmp_eq_u32 s{S_XT}, s{S_XT2}")
                put(34, f"s_cselect_b32 s{S_D2}, {hx(-2*XSZ)}, s{S_C32}")
                put(35, f"v_add_u32 v{V_X0}, s{S_D2}, v{V_X0}")
                put(36, f"v_add_u32 v{V_X1}, s{S_D2}, v{V_X1}")
                if C: put(37, f"v_add_u32 v{V_GA}, s{S_D2}, v{V_GA}")
                put(62, f"s_add_u32 s{S_XT}, s{S_XT}, s{S_D2}")
            for u in range(3):
                put(8*u+40, rd_x(role, nxt, u, 0)); put(8*u+41, rd_x(role, nxt, u, 1))
            wslots = [42,43,44,45,46,47,50,51,52,53,54,55,58,59,60,61]
            for n, (s, kh) in enumerate(WORDER):
                put(wslots[2*n], rd_w(nxt, nxt, s, kh, 0)); put(wslots[2*n+1], rd_w(nxt, nxt, s, kh, 1))
            if kv:
                ks_ = (48, 49, 56, 57) if "kve" in abl else (62, 62, 63, 63)
                put(ks_[0], rd_kv(nxt, 0, 0)); put(ks_[1], rd_kv(nxt, 0, 1)); put(ks_[2], rd_kv(nxt, 1, 0)); put(ks_[3], rd_kv(nxt, 1, 1))
        dl = []; NUP = NUPQ if kv else NUPF + (1 if WL else 0)
        if not C:
            if kv and dW_on and not ("ckv" in abl): dl += dKVl(cur)
            if dW_on: dl += dWl(cur)
            if pf and pf_on and not kv: dl += [pfl0()] + PFL[1:]
            if dX_on and not (cx and role == "F"): dl += dXl(0 if role == "F" else cur*XSZ)[:8 - (CQ if kv else 0)]
            for n, g in enumerate(dl[NUP:]):
                put(40 + 2*n, g[0])
                for t in g[1:]: put(41 + 2*n, t)
            if first and role == "F" and not cx:
                for n, g in enumerate(dXl(2*XSZ)):
                    put(2 + 3*n, g[0])
                    for t in g[1:]: put(3 + 3*n, t)
        if last:
            off = 0
            if C and "oldg" in abl:
                ga = gate_acc(0)
                put(6, ("WAIT", ("g",)))
                for n, t in enumerate(ga): put(6 + n//4, t)
                off = 9
            es = epi_setup(role)
            for n, t in enumerate(es): put(off + n//(6 if off else 3), t)
            if kv:
                for n, t in enumerate(epi_kv(role)): put(18 + n//3, t)
            if C and "oldg" not in abl and ("ilv" in abl or (kv and "ilvQ" in abl)): put(14, "s_waitcnt vmcnt(0)")
            for u in range(7 if ("ilv" in abl or (kv and "ilvQ" in abl)) else 0):
                e = epi_group(role, u, 'nopk' not in abl)
                per = -(-len(e)//(8 if u < 6 else 5))
                for n, t in enumerate(e): put(8*u+11 + (1 if u == 0 else 0) + n//per, t)
        if last and not C and not ("ilv" in abl or (kv and "ilvQ" in abl)): put(0, "s_setprio 1" if "hiC" not in abl else "s_nop 0")
        if tail:
            for t in tail: put(63, t)
        def need(tags):
            if any(t in lq.q for t in tags): o(f"s_waitcnt lgkmcnt({lq.need(tags)})")
        def emit(t):
            if isinstance(t, tuple):
                if t[0] == "WAIT": need([t[1]])
                else: o(t[0]); lq.push(t[1])
            else: o(t)
        n = 0
        for u in range(8):
            if u == 5 and bar:
                lq.need(lq.q)
                if C:
                    o("s_waitcnt lgkmcnt(0)")
                    if "glow" in abl: o("s_setprio 0")
                    for t in gate_acc(gvm)[:(1 if (kv and "nogq" in abl) else 99)]: o(t)
                    o(f"buffer_load_dword v{V_GW}, v{V_GO}, s[{SRD_G}:{SRD_G+3}], s{S_GK} offen")
                    o(f"s_add_u32 s{S_GK}, s{S_GK}, 128")
                    if cpf2:
                        lab = f"{name}_{role}_pc2"
                        o(f"""
                        s_getpc_b64 s[4:5]
                        {lab}:
                        v_lshlrev_b32 v{V_GT}, 7, v0
                        s_lshl_b32 s6, s{S_WN}, 13
                        v_add_u32 v{V_GT}, s6, v{V_GT}
                        v_min_u32 v{V_GT}, {name}_{role}_last-{lab}, v{V_GT}
                        global_load_dword v{V_PD}, v{V_GT}, s[4:5]
                        """)
                    if merged and w2pf and "cpf3" in abl:
                        lab = f"{name}_{role}_pc3"
                        o(f"""
                        s_cmp_ge_u32 s2, 16
                        s_cbranch_scc1 {lab}n
                        s_getpc_b64 s[4:5]
                        {lab}:
                        s_add_u32 s4, s4, {name}_fin-{lab}
                        s_addc_u32 s5, s5, 0
                        v_lshlrev_b32 v{V_GT}, 7, v0
                        s_lshl_b32 s6, s{S_WN}, 13
                        v_add_u32 v{V_GT}, s6, v{V_GT}
                        v_min_u32 v{V_GT}, k2_kernel_end-{name}_fin, v{V_GT}
                        global_load_dword v{V_PD}, v{V_GT}, s[4:5]
                        {lab}n:
                        """)
                    if merged and first and "touch" in abl:
                        o(f"""
                        s_lshl_b32 s4, s{S_MT}, 3
                        s_add_u32 s4, s4, s{S_Q}
                        s_lshl_b32 s4, s4, 12
                        s_add_u32 s4, s4, {hx(WS_KV)}
                        v_and_b32 v{V_GT}, 15, v0
                        v_lshlrev_b32 v{V_GT}, 7, v{V_GT}
                        v_bfe_u32 v{V_GT+1}, v0, 4, 1
                        v_lshl_add_u32 v{V_GT}, v{V_GT+1}, 14, v{V_GT}
                        v_add_u32 v{V_GT}, s4, v{V_GT}
                        s_lshl_b32 s4, s{S_MT}, 5
                        s_add_u32 s4, s4, s{S_NT}
                        s_lshl_b32 s4, s4, 6
                        s_add_u32 s4, s4, {hx(WS_GATE)}
                        v_mov_b32 v{V_GT+1}, s4
                        v_cmp_gt_u32 vcc, {32 if kv else 0}, v0
                        s_cmp_lg_u32 s{S_WAVE}, 1
                        s_cbranch_scc1 {name}_{role}_nt
                        v_cndmask_b32 v{V_GT}, v{V_GT+1}, v{V_GT}, vcc
                        buffer_load_dword v{V_GT+1}, v{V_GT}, s[{SRD_WS}:{SRD_WS+3}], 0 offen sc1
                        {name}_{role}_nt:
                        """)
                    if merged and first:
                        o(f"v_mov_b32 v{V_PD}, 0\nbuffer_store_dword v{V_PD}, v{V_P}, s[{SRD_WS}:{SRD_WS+3}], 0 offen sc1")
                    if merged and dbg:
                        lab = f"{name}_{role}_nb"
                        o(f"""
                        s_sub_u32 s{S_D}, s{S_D}, 1
                        s_cmp_lg_u32 s{S_D}, 0
                        s_cbranch_scc1 {lab}
                        v_mov_b32 v{V_GT}, 1
                        v_mov_b32 v{V_GT+1}, 0
                        s_mov_b64 exec, 1
                        buffer_store_byte v{V_GT}, v{V_GT+1}, s[{SRD_K}:{SRD_K+3}], s2 offen sc1
                        s_mov_b64 exec, -1
                        {lab}:
                        """)
                    if cx and role == "F" and dW_on: burst(o, dXc())
                    if CQ and kv:
                        if first: cq_setup(o)
                        else:
                            burst(o, (dKVc(nxt) if "ckv" in abl else []) + dXl(nxt*XSZ)[8-CQ:]); o("s_waitcnt vmcnt(0)")
                else:
                    o(f"s_waitcnt vmcnt({vm}) lgkmcnt(0)")
                if C and "glow" in abl: o("s_setprio 1")
                if "nobar" not in abl: o("s_barrier")
                if stamp and not C:
                    o(f"s_memtime s[4:5]\ns_waitcnt lgkmcnt(0)\ns_mov_b32 m0, s{ST+15}\nv_writelane_b32 v13, s4, m0\ns_add_u32 s{ST+15}, s{ST+15}, 1")
                if not C: burst(o, dl[:NUP])
                if not C and merged and w2pf: early_w(o, role)
                if C and w2pf and "swap14" in abl: o("s_setprio 0")
                if not C and w2pf and "swap14" in abl: o("s_setprio 2")
            for c in range(4):
                s = c if u % 2 == 0 else 3-c
                for e in range(2):
                    kh = e if c % 2 == 0 else 1-e
                    need([("W", cur, s, kh), ("x", u, kh)])
                    d = acc(u, s)
                    cc = "0" if (first and e == 0) else f"v[{d}:{d+3}]"
                    o(f"v_mfma_f32_16x16x32_bf16 v[{d}:{d+3}], {vr(wf(cur,s,kh),4)}, {vr(xf(u,kh),4)}, {cc}")
                    if kv and u < 2 and c == 3 and e == 1:
                        for k2 in range(2):
                            need([("kv", k2)])
                            d = KVA + u*4
                            cc = "0" if (first and k2 == 0) else f"v[{d}:{d+3}]"
                            w = vr(KVW+k2*4, 4); x = vr(xf(u, k2), 4)
                            if role == "K": o(f"v_mfma_f32_16x16x32_bf16 v[{d}:{d+3}], {w}, {x}, {cc}")
                            else: o(f"v_mfma_f32_16x16x32_bf16 v[{d}:{d+3}], {x}, {w}, {cc}")
                    for t in fill.get(n, []): emit(t)
                    n += 1
        if last:
            ilv = "ilv" in abl or (kv and "ilvQ" in abl)
            if not (ilv and kv): stp(o, 12)
            if C and not ilv and "oldg" not in abl: o("s_waitcnt vmcnt(0)")
            if C and not ilv and "hiC" not in abl: o("s_setprio 0")
            if ilv or "noshare" in abl:
                if ilv: o("s_nop 7")
                for u in range(7 if ilv else 0, 8):
                    for t in epi_group(role, u): o(t)
                if C:
                    stp(o, 6)
                    o(f"s_cmp_ge_u32 s{S_WAVE}, 4\ns_cbranch_scc1 {name}_fin")
                    for t in gate_fin(): o(t)
            elif C: o(f"s_branch {name}_{role}_epi")
            else:
                if "lowL" in abl: o("s_setprio 0")
                o.lab(f"{name}_{role}_epi")
                for u in range(8):
                    for t in epi_group(role, u, not ('nopk' in abl and u < NPK)): o(t)
                stp(o, 6)
                o(f"s_cmp_ge_u32 s{S_WAVE}, 4\ns_cbranch_scc1 {name}_{role}_nogate")
                for t in gate_fin(): o(t)
                o.lab(f"{name}_{role}_nogate")

    for role in "FKV":
      for half in "CL":
        kv = role != "F"; C = half == "C"
        rn = f"{name}_{role}{half}"
        a.raw(f"{rn}:")
        lq = LQ(15)
        if not C:
            if role == "F": a(f"s_add_u32 s{S_XT2}, s{S_XT2}, s{S_XT}")
            if kv and "kv0e" not in abl: dKV(a, 0)
            if "w1e" not in abl: dW(a, 1)
            if pf and not kv: p_setup(a)
            pre = NE if (pf and not kv and "epre" in abl) else 0
            burst(a, [pfl0() for _ in range(pre)])
            a(f"s_waitcnt vmcnt({8+pre})")
        if C and cx and role == "F": cx_setup(a)
        stp(a, 12)
        a("s_barrier")
        stp(a, 10)
        if not C:
            if kv: dKV(a, 1)
            dX(a, XSZ)
            if pf and not kv and "epre" not in abl: burst(a, [pfl0() for _ in range(NE)])
        pro = []
        wi = iter([rd_w(0, 0, s, kh, j) for (s, kh) in WORDER for j in range(2)])
        for u in range(3):
            if kv and "kve" in abl and u > 0: pro += [rd_x(role, 0, u, 0), rd_kv(0, u-1, 0), rd_x(role, 0, u, 1), rd_kv(0, u-1, 1)]
            else: pro += [rd_x(role, 0, u, 0), rd_x(role, 0, u, 1)]
            pro += [next(wi) for _ in range(6 if u < 2 else 4)]
        if kv and "kve" not in abl: pro += [rd_kv(0, 0, 0), rd_kv(0, 0, 1), rd_kv(0, 1, 0), rd_kv(0, 1, 1)]
        for t in pro: a(t[0]); lq.push(t[1])
        a(f"s_mov_b32 s{S_CNT}, {6 if kv else 5}")
        vm = 0 if kv else (0 if cx else 8) + NPF
        gvm = 0
        stp(a, 4); stp(a, 5, True)
        stage(a, lq, role, half, 0, first=True, vm=(0 if kv else (0 if cx else 8) + (NE if pf and 'epre' not in abl else 0)), gvm=0)
        a.raw(".p2align 6")
        a.raw(f"{rn}_loop:")
        b1 = Asm(); q0 = list(lq.q)
        if kv:
            stage(b1, lq, role, half, 1, vm=vm, gvm=gvm, dbg=True, tail=[f"s_cmp_eq_u32 s{S_CNT}, 0", f"s_cbranch_scc1 {rn}_tail"])
            q1 = list(lq.q)
            stage(b1, lq, role, half, 0, vm=vm, gvm=gvm, tail=[f"s_sub_u32 s{S_CNT}, s{S_CNT}, 1", f"s_branch {rn}_loop"])
            assert lq.q == q0
            a.l += b1.l
            a.raw(f"{rn}_tail:")
            lq.q = q1
        else:
            stage(b1, lq, role, half, 1, vm=vm, gvm=gvm, dbg=True)
            stage(b1, lq, role, half, 0, vm=vm, gvm=gvm, xstop=True, tail=[f"s_sub_u32 s{S_CNT}, s{S_CNT}, 1", f"s_cbranch_scc0 {rn}_loop"])
            assert lq.q == q0
            a.l += b1.l
            stage(a, lq, role, half, 1, vm=vm, gvm=gvm, dX_on=False, pf_on=False, cpf2=("cpf13" in abl))
        stage(a, lq, role, half, 0, dW_on=False, dX_on=False, pf_on=False, vm=0, gvm=gvm, w2pf=True, cpf2=("cpf14" in abl or (kv and "cpf13" in abl)))
        stp(a, 11)
        sh = "share15" in abl and ("ilv" in abl or (kv and "ilvQ" in abl))
        if sh and not C:
            a(f"s_branch {name}_{role}_s15")
            a.lab(f"{name}_{role}_last")
            continue
        if sh: a.lab(f"{name}_{role}_s15")
        stage(a, lq, role, half, 1, dW_on=False, dX_on=False, nxt_reads=False, bar=False, last=True)
        stp(a, 6); stp(a, 7, True)
        if not C: a.lab(f"{name}_{role}_last")
        a(f"s_branch {name}_fin")
    a.raw(f"{name}_fin:")
    if stamp:
        T = 96
        a("s_waitcnt vmcnt(0)")
        stp(a, 13); stp(a, 14, True)
        a(f"""
        s_lshl_b32 s4, s2, 3
        s_add_u32 s4, s4, s{S_WAVE}
        s_lshl_b32 s4, s4, 6
        s_add_u32 s4, s4, {hx(0x1E00000)}
        s_mov_b64 exec, -1
        v_mov_b32 v14, 0
        """)
        for i, (r, rel) in enumerate([(4,1),(6,1),(13,1),(2,0),(14,0),(0,0),(5,0),(7,0),(8,1),(9,1),(10,1),(11,1),(12,1)]):
            if rel: a(f"s_sub_u32 s{ST+r}, s{ST+r}, s{ST}")
            a(f"v_mov_b32 v{T+i}, s{ST+r}")
        a(f"v_lshlrev_b32 v15, 2, v0\ns_add_u32 s5, s4, 0x40000\ns_mov_b64 exec, 0xffff\nbuffer_store_dword v13, v15, s[{SRD_WS}:{SRD_WS+3}], s5 offen")
        a("s_mov_b64 exec, 1")
        for i in range(4):
            a(f"buffer_store_dwordx4 v[{T+4*i}:{T+4*i+3}], v14, s[{SRD_WS}:{SRD_WS+3}], s4 offen offset:{16*i}")
    if merged:
        if stamp: a("s_mov_b64 exec, -1")
        flag_addrs(a, 96, 97, False)
        a(f"""
        s_cmp_lg_u32 s{S_WAVE}, 4
        s_cbranch_scc1 {name}_dbg_ok
        s_mov_b32 s5, 0x20000
        s_waitcnt vmcnt(18)
        {name}_dbg:
        v_cmp_ne_u32 vcc, 0x01010101, v10
        s_sub_u32 s5, s5, 1
        s_cbranch_scc1 {name}_dbg_ok
        s_cbranch_vccz {name}_dbg_ok
        buffer_load_dword v10, v9, s[{SRD_V}:{SRD_V+3}], 0 offen sc1
        s_waitcnt vmcnt(0)
        s_branch {name}_dbg
        {name}_dbg_ok:
        s_mov_b32 s60, s{S_NT}
        """)
        return a.text()
    a.raw(f"{name}_end:")
    a("s_endpgm")
    return a.text()

if __name__ == "__main__":
    import sys
    stamp = "stamp" in sys.argv
    s = "; @launch kernel=k1_kernel grid=(256,1,1) block=(512,1,1) lds=163840\n"
    s += '.amdgcn_target "amdgcn-amd-amdhsa--gfx950"\n.text\n' + gen_k1(stamp=stamp, abl=sys.argv[2:]) + kernel_desc("k1_kernel")
    open(sys.argv[1], "w").write(s)
```

```python
from common import *

RW = 30
PROG = 122880
CNT_LDS = PROG + 2048
KVB = 131072
K2_LDS = 163840

S_WAVE, S_W = 3, 33
SRD_WS, SRD_WD, SRD_WO, SRD_OUT = 8, 12, 16, 20
S_MI, S_NI, S_MT32 = 34, 35, 36
S_CNT = 37
S_HK, S_WK, S_WM, S_WEND, S_WW, S_KVK, S_KVM, S_RD = 38, 39, 40, 41, 42, 43, 44, 45
S_T = 46
S_NEED, S_CU, S_NEED2, S_P1, S_P2 = 58, 57, 59, 61, 62
ST = 70
def m16(d, x, y, c=True): return f"v_mfma_f32_16x16x32_bf16 {vr(d,4)}, {vr(x,4)}, {vr(y,4)}, " + (vr(d,4) if c is True else ("0" if c is False else vr(c,4)))

def gen_k2(name="k2_kernel", stamp=False, abl=(), merged=False):
    a = Asm()
    def stp(o, i, real=False):
        if stamp:
            o(f"{'s_memrealtime' if real else 's_memtime'} s[4:5]\ns_waitcnt lgkmcnt(0)\ns_mov_b32 s{ST+i}, s4")
    prioA = 1; prioG = 0; HD = 10; FLAGU = 106; GP2 = 0; GPU_ = 96; W2U = 40; PI = 0; SLP = 0; OB = 2; OS = 1
    for x in abl:
        if x.startswith("pa"): prioA = int(x[2:])
        if x.startswith("pg"): prioG = int(x[2:])
        if x.startswith("fu"): FLAGU = int(x[2:])
        if x.startswith("ob"): OB = int(x[2:])
        if x.startswith("os") and x[2:].isdigit(): OS = int(x[2:])
        if x.startswith("wu"): W2U = int(x[2:])
        if x.startswith("pi"): PI = int(x[2:])
        if x.startswith("sl"): SLP = int(x[2:])
        if x.startswith("gp"): GP2 = int(x[2:])
        if x.startswith("gu"): GPU_ = int(x[2:])
    nosync = "nosync" in abl
    PRE = merged and "pre" in abl
    if PRE: abl = list(abl) + ["kv4"]
    GOFF = 3 if PRE else 0
    SC1 = " sc1" if merged else ""
    SCK = "" if "kplain" in abl else SC1
    if merged: a.raw(f"{name}:"); abl = list(abl) + ["nocpf"]
    else: a.raw(f".globl {name}\n.p2align 8\n.type {name},@function\n{name}:")
    if stamp: a(f"s_memtime s[{ST}:{ST+1}]\ns_memrealtime s[{ST+2}:{ST+3}]")
    a(f"""
    s_load_dwordx2 s[24:25], s[0:1], 96
    s_load_dwordx2 s[26:27], s[0:1], 64
    s_load_dwordx2 s[28:29], s[0:1], 32
    s_load_dwordx2 s[30:31], s[0:1], 80
    """)
    CW = 8
    for x in abl:
        if x.startswith("cw"): CW = int(x[2:])
    if "nocpf" not in abl:
        a(f"""
        s_cmp_ge_u32 s2, {CW}
        s_cbranch_scc1 {name}_nocpf
        s_getpc_b64 s[4:5]
        {name}_pc:
        s_sub_u32 s4, s4, {name}_pc-{name}
        s_subb_u32 s5, s5, 0
        v_lshlrev_b32 v2, 7, v0
        v_min_u32 v3, k2_kernel_end-{name}, v2
        global_load_dword v255, v3, s[4:5]
        {name}_nocpf:
        """)
    a(f"""
    """)
    if not merged:
        a(f"""
        s_cmp_ge_u32 s2, 256
        s_cbranch_scc1 {name}_end
        v_lshrrev_b32 v1, 6, v0
        v_and_b32 v0, 63, v0
        v_readfirstlane_b32 s{S_WAVE}, v1
        """)
    a(f"""
    s_and_b32 s4, s2, 7
    {"s_xor_b32 s4, s4, 1" if "xflip" in abl else ""}
    s_lshr_b32 s5, s2, 3
    s_lshr_b32 s6, s4, 1
    s_lshl_b32 s6, s6, 2
    s_and_b32 s7, s5, 3
    s_add_u32 s{S_MI}, s6, s7
    s_and_b32 s4, s4, 1
    s_lshl_b32 s4, s4, 3
    s_lshr_b32 s5, s5, 2
    s_add_u32 s{S_NI}, s4, s5
    s_and_b32 s{S_W}, s{S_WAVE}, 3
    s_lshl_b32 s4, s{S_MI}, 2
    s_add_u32 s{S_MT32}, s4, s{S_W}
    s_mov_b32 s{SRD_WS+2}, {hx(WS_SIZE)}
    s_mov_b32 s{SRD_WS+3}, 0x20000
    v_lshlrev_b32 v1, 4, v0
    s_cmp_ge_u32 s{S_WAVE}, 4
    s_cbranch_scc1 {name}_G
    """)
    VL = 1; VKV = 2
    VG = 4
    VT = 6
    SEL = 12
    Q = 16
    S = 32
    P = 64
    O = 80
    Ls = 112
    K = 128
    V = 144
    CB = 160
    MX = 176
    VSIG, VCHK, VONE, VCNT = 186, 187, 188, 189
    if prioA: a(f"s_setprio {prioA}")
    a(f"""
    s_lshl_b32 s4, s{S_MT32}, 5
    s_lshl_b32 s5, s{S_NI}, 1
    s_add_u32 s4, s4, s5
    s_lshl_b32 s4, s4, 11
    s_add_u32 s{S_T}, s4, {hx(WS_Q)}
    s_lshl_b32 s5, s{S_NI}, 7
    s_add_u32 s5, s5, s{S_MT32}
    s_lshl_b32 s5, s5, 11
    s_add_u32 s{S_T+1}, s5, {hx(WS_O)}
    s_add_u32 s{S_T+10}, s{S_T+1}, 0x20000
    s_lshl_b32 s{S_T+2}, s{S_MT32}, 8
    s_add_u32 s{S_T+2}, s{S_T+2}, {hx(WS_GATE)}
    v_and_b32 v{VT}, 15, v0
    v_lshlrev_b32 v{VT}, 3, v{VT}
    v_add_u32 v{VKV}, {hx(KVB)}, v{VL}
    s_waitcnt lgkmcnt(0)
    s_mov_b32 s{SRD_WS}, s24
    s_mov_b32 s{SRD_WS+1}, s25
    """)
    VGA = 3
    def g_loads():
        for i in range(2): a(f"buffer_load_dword v{VG+i}, v{VGA}, s[{SRD_WS}:{SRD_WS+3}], s{S_T+2} offen offset:{128*i}" + SC1)
    a(f"v_mov_b32 v{VGA}, v{VT}")
    def a_loads():
        for i in range(4): a(f"buffer_load_dwordx4 {vr(Q+4*i,4)}, v{VL}, s[{SRD_WS}:{SRD_WS+3}], s{S_T} offen offset:{1024*i}" + SC1)
        if not merged: g_loads()
    if PRE: pass
    elif merged: a("s_waitcnt vmcnt(0)\ns_barrier")
    else: a_loads()
    a(f"""
    v_and_b32 v{VT+1}, 3, v0
    v_cmp_eq_u32 vcc, 0, v{VT+1}
    v_mov_b32 v{VT+2}, 0x3f803f80
    s_mov_b32 s{S_CNT}, 7
    v_cndmask_b32 v{SEL}, 0, v{VT+2}, vcc
    v_cndmask_b32 v{SEL+1}, 0, v{VT+2}, vcc
    v_cndmask_b32 v{SEL+2}, 0, v{VT+2}, vcc
    v_cndmask_b32 v{SEL+3}, 0, v{VT+2}, vcc
    s_lshl_b32 s4, s{S_W}, 8
    s_add_u32 s4, s4, {hx(PROG+1024)}
    v_lshl_add_u32 v{VSIG}, v0, 2, s4
    v_lshlrev_b32 v{VCHK}, 8, v{VT+1}
    v_add_u32 v{VCHK}, {hx(PROG)}, v{VCHK}
    v_mov_b32 v{VONE}, 1
    s_mov_b32 s{S_NEED}, 0
    s_mov_b32 s{S_NEED2}, {2+GOFF}
    v_mov_b32 v{VT+2}, 0
    ds_write_b32 v{VSIG}, v{VT+2 if PRE else VONE}
    """)
    for r in list(range(P+8, P+16)) + list(range(O, O+48)) + list(range(V+8, V+16)): a(f"v_mov_b32 v{r}, 0")
    if PRE:
        a(f"""
        v_and_b32 v{VT}, 31, v0
        v_lshlrev_b32 v{VT}, 2, v{VT}
        v_mov_b32 v{VT+2}, {hx(CNT_LDS+8)}
        s_and_b32 s6, s2, {NREP-1}
        s_lshl_b32 s6, s6, 7
        s_add_u32 s6, s6, {hx(WS_FQ)}
        s_lshl_b32 s4, s{S_W}, 11
        s_add_u32 s{S_KVK}, s4, {hx(WS_KV)}
        s_add_u32 s{S_KVM}, s4, {hx(KVB)}
        s_mov_b32 s7, 0x20000
        s_waitcnt vmcnt(0) lgkmcnt(0)
        s_barrier
        s_cmp_lg_u32 s{S_W}, 0
        s_cbranch_scc1 {name}_A_q1
        {name}_A_q0:
        buffer_load_dword v{VT+1}, v{VT}, s[{SRD_WS}:{SRD_WS+3}], s6 offen sc1
        s_waitcnt vmcnt(0)
        v_cmp_eq_u32 vcc, 0, v{VT+1}
        s_sub_u32 s7, s7, 1
        s_cbranch_scc1 {name}_A_q0ok
        s_cbranch_vccnz {name}_A_q0
        {name}_A_q0ok:
        ds_write_b32 v{VT+2}, v{VONE}
        s_branch {name}_A_qok
        {name}_A_q1:
        ds_read_b32 v{VT+1}, v{VT+2}
        s_waitcnt lgkmcnt(0)
        v_cmp_eq_u32 vcc, 0, v{VT+1}
        s_nop 4
        s_cbranch_vccz {name}_A_qok
        s_sleep 1
        s_branch {name}_A_q1
        {name}_A_qok:
        """)
        stp(a, 8)
        for c in range(4):
            a(f"s_add_u32 m0, s{S_KVM}, {8192*c}\ns_add_u32 s4, s{S_KVK}, {8192*c}")
            a(f"buffer_load_dwordx4 v{VL}, s[{SRD_WS}:{SRD_WS+3}], s4 offen{SCK} lds")
            a(f"buffer_load_dwordx4 v{VL}, s[{SRD_WS}:{SRD_WS+3}], s4 offen offset:1024{SCK} lds")
            if c == 0: a_loads()
        a(f"""
        s_waitcnt vmcnt(0)
        ds_add_u32 v{VSIG}, v{VONE}
        {name}_A_s:
        ds_read_b32 v{VT+1}, v{VCHK} offset:1024
        s_waitcnt lgkmcnt(0)
        v_cmp_eq_u32 vcc, 0, v{VT+1}
        s_nop 4
        s_cbranch_vccnz {name}_A_s
        """)
        stp(a, 9)
    else:
        if merged:
            a("s_barrier"); a_loads()
        stp(a, 8)
        a("s_waitcnt lgkmcnt(0)\ns_barrier")
        stp(a, 9)
    lq = LQ(15)
    def rdK(o, t, u):
        o(f"ds_read_b128 {vr(K+(t&1)*8+u*4,4)}, v{VKV} offset:{((t >> 1) & 3)*8192 + (t & 1)*4096 + u*1024}"); lq.push(("K", t & 1))
    def rdV(o, t, s):
        o(f"ds_read_b128 {vr(V+(t&1)*8+s*4,4)}, v{VKV} offset:{((t >> 1) & 3)*8192 + (t & 1)*4096 + 2048 + s*1024}"); lq.push(("V", t & 1))
    def need(o, tags):
        if any(t in lq.q for t in tags): o(f"s_waitcnt lgkmcnt({lq.need(tags)})")
    def qk(h, par, c=False):
        return [m16(S+16*h+8*qs+4*u, K+8*par+4*u, Q+8*h+4*qs, c if c is False else c+8*h+4*qs) for (u, qs) in ((0,0),(0,1),(1,1),(1,0))]
    def pv(h, par):
        f = lambda s, qs: m16(O+16*h+8*qs+4*s, V+8*par+4*s, P+8*h+4*qs)
        g = lambda qs: m16(Ls+8*h+4*qs, SEL, P+8*h+4*qs)
        return [f(0,0), g(0), f(1,0), f(1,1), g(1), f(0,1)]
    rdK(a, 0, 0); rdK(a, 0, 1); rdK(a, 1, 0); rdK(a, 1, 1)
    a("s_waitcnt vmcnt(0)")
    need(a, [("K", 0)])
    for t in qk(0, 0): a(t)
    a("s_nop 7")
    stp(a, 4); stp(a, 5, True)
    SEQS = {
     "t1": "M e M e e M e M e e c c M e M e e M e M e c c M e M e c e e c e c c",
     "t2": "M e e M e e M e c c M e e M e c c M e e M e e M e c M e c M e e c c",
     "t3": "M e M e M e M e M e M e M e M e M e M e e e c c c e e c c e e c c c",
     "t6": "M e M e e M e M e e c c M e M e e c M e M e c c M e M e e c e c c",
     "t7": "M e e M e e M e e M e e c c M e e M e c c M e e M e c M e M e c c c",
     "t4": "M e M e e e M e M e c c c M e M e e M e M e c c M e M e c e e e c c",
     "t5": "M e M e M e M e e e c c c M e M e M e e e c c M e M e M e e c e c c",
    }
    seqn = "t1"
    for x in abl:
        if x in SEQS: seqn = x
    slow = Asm()
    def phase(o, t, h):
        b = 1-h
        tq = t if h == 0 else t+1
        tv = t-1 if h == 0 else t
        mf = qk(b, tq & 1) + pv(b, tv & 1)
        Sa, Pa = S+16*h, P+8*h
        e = iter([f"v_exp_f32 v{Sa+i}, v{Sa+i}" for i in range(16)])
        c = iter([f"v_cvt_pk_bf16_f32 v{Pa+i}, v{Sa+2*i}, v{Sa+2*i+1}" for i in range(8)])
        first = (t % 2 == 0 and h == 0); lastp = (t % 2 == 1 and h == 1)
        m = 0
        for x in SEQS[seqn].split():
            if x == "e": o(next(e))
            elif x == "c": o(next(c))
            else:
                if m == (9 if "cm9" in abl else 8) and first and not nosync: o(f"v_cmp_gt_u32 vcc, s{S_NEED}, v{VCNT}")
                o(mf[m])
                if m in (0, 4):
                    if h == 0: rdV(o, t, m >> 2)
                    else: rdK(o, t+2, m >> 2)
                if m == 3 and h == 1: need(o, [("V", t & 1)])
                if m == 9 and h == 0 and not first: need(o, [("K", (t+1) & 1)])
                if m == 7 and first: need(o, [("K", (t+1) & 1), "cnt"])
                if not nosync:
                    if m == 2 and first:
                        o(f"ds_read_b32 v{VCNT}, v{VCHK}"); lq.push("cnt")
                    if m == 9 and first:
                        lab = f"{name}_A_w{t}"
                        o(f"s_cbranch_vccnz {lab}"); o.lab(lab + "r")
                        slow(f"""
                        {lab}:
                        {"s_nop 0" if "asl0" in abl else "s_sleep 1"}
                        ds_read_b32 v{VCNT}, v{VCHK}
                        s_waitcnt lgkmcnt(0)
                        v_cmp_gt_u32 vcc, s{S_NEED}, v{VCNT}
                        s_nop 4
                        s_cbranch_vccnz {lab}
                        s_branch {lab}r
                        """)
                    if m == 6 and lastp:
                        o(f"ds_add_u32 v{VSIG}, v{VONE}"); lq.push("sig")
                    if "kv4" in abl:
                        if m == 7 and lastp: o(f"s_add_u32 s{S_NEED2}, s{S_NEED2}, 1")
                        if m == 8 and lastp: o(f"s_cmp_lt_u32 s{S_NEED2}, {5+GOFF}")
                        if m == 9 and lastp: o(f"s_cselect_b32 s{S_NEED}, 0, s{S_NEED2}")
                    else:
                        if m == 8 and lastp: o(f"s_add_u32 s{S_NEED}, s{S_NEED}, 1")
                        if m == 9 and lastp and t == 1: o(f"s_max_u32 s{S_NEED}, s{S_NEED}, 3")
                m += 1
        assert m == 10 and next(e, None) is None and next(c, None) is None
    tmp = Asm(); lq.q = []
    for t in range(8): phase(tmp, t, 0); phase(tmp, t, 1)
    slow.l = []
    q0 = list(lq.q)
    a.raw(".p2align 6")
    a.raw(f"{name}_A_loop:")
    for t in range(8): phase(a, t, 0); phase(a, t, 1)
    assert lq.q == q0
    if stamp:
        a(f"s_memtime s[4:5]\ns_waitcnt lgkmcnt(0)\ns_mov_b32 m0, s{S_CNT}\nv_writelane_b32 v198, s4, m0")
    if merged:
        a(f"s_cmp_eq_u32 s{S_CNT}, 5\ns_cbranch_scc1 {name}_A_g"); a.lab(f"{name}_A_nog")
        k_ = len(a.l); a.lab(f"{name}_A_g"); g_loads(); a(f"s_branch {name}_A_nog")
        slow.l += a.l[k_:]; del a.l[k_:]
    a(f"s_sub_u32 s{S_CNT}, s{S_CNT}, 1\ns_cbranch_scc0 {name}_A_loop")
    stp(a, 6); stp(a, 7, True)
    if merged: a("s_waitcnt vmcnt(0)")
    else: a("s_nop 0")
    for t in pv(1, 1): a(t)
    a.lab(f"{name}_A_fin")
    PO = K
    a("s_waitcnt lgkmcnt(0)")
    for i in range(4):
        r = S + 2*i
        a(f"v_rcp_f32 v{r}, v{Ls+4*i}\ns_nop 0\nv_mul_f32 v{r}, v{r}, v{VG+(i&1)}")
        for j in range(8): a(f"v_mul_f32 v{S+8+j}, v{O+8*i+j}, v{r}")
        for j in range(4): a(f"v_cvt_pk_bf16_f32 v{PO+4*i+j}, v{S+8+2*j}, v{S+8+2*j+1}")
        a(f"buffer_store_dwordx4 {vr(PO+4*i,4)}, v{VL}, s[{SRD_WS}:{SRD_WS+3}], s{S_T+1 if i < 2 else S_T+10} offen offset:{1024*(i&1)} sc1")
    a(f"s_cmp_eq_u32 s{S_NEED}, 0\ns_cbranch_scc1 {name}_A_sig")
    a(f"v_max3_f32 v{VT}, abs(v{O}), abs(v{O+1}), abs(v{O+2})")
    for i in range(3, 31, 2): a(f"v_max3_f32 v{VT}, v{VT}, abs(v{O+i}), abs(v{O+i+1})")
    a(f"""
    v_max_f32 v{VT}, v{VT}, abs(v{O+31})
    s_mov_b32 s4, {hx(f2u(2.0**-64))}
    s_mov_b32 s5, {hx(f2u(2.0**64))}
    s_mov_b32 s6, {hx(f2u(2.0**120))}
    v_cmp_gt_f32 s[{S_T+4}:{S_T+5}], s6, v{VT}
    """)
    for i in range(4):
        a(f"""
        v_cmp_lt_f32 s[{S_T+6}:{S_T+7}], s4, v{Ls+4*i}
        v_cmp_gt_f32 vcc, s5, v{Ls+4*i}
        s_nop 0
        s_and_b64 s[{S_T+4}:{S_T+5}], s[{S_T+4}:{S_T+5}], s[{S_T+6}:{S_T+7}]
        s_and_b64 s[{S_T+4}:{S_T+5}], s[{S_T+4}:{S_T+5}], vcc
        """)
    a(f"""
    s_cmp_eq_u64 s[{S_T+4}:{S_T+5}], -1
    {"s_branch" if "forcefb" in abl else "s_cbranch_scc0"} {name}_A_fb
    {name}_A_sig:
    """)
    a(f"""
    v_mov_b32 v{VT}, {hx(CNT_LDS)}
    s_lshl_b32 s4, s{S_MI}, 7
    s_lshl_b32 s5, s{S_NI}, 2
    s_add_u32 s4, s4, s5
    s_add_u32 s4, s4, {hx(WS_FLAG)}
    v_mov_b32 v{VT+3}, 0
    s_mov_b64 exec, 1
    s_waitcnt vmcnt(0)
    ds_add_rtn_u32 v{VT+2}, v{VT}, v{VONE}
    s_waitcnt lgkmcnt(0)
    v_readfirstlane_b32 s5, v{VT+2}
    s_nop 1
    s_cmp_lg_u32 s5, 3
    s_cbranch_scc1 {name}_fin
    buffer_store_dword v{VONE}, v{VT+3}, s[{SRD_WS}:{SRD_WS+3}], s4 offen sc1
    s_branch {name}_fin
    """)
    a.l += slow.l
    a.raw(f"{name}_A_fb:")
    a(f"s_waitcnt vmcnt(0)\ns_mov_b32 s{S_NEED}, 0")
    for i in range(4): a(f"v_mov_b32 v{MX+i}, 0xff800000")
    a(f"""
    s_mov_b32 s{S_T+3}, {hx(WS_KV)}
    s_mov_b32 s{S_CNT}, 63
    {name}_A_fb1:
    buffer_load_dwordx4 {vr(K,4)}, v{VL}, s[{SRD_WS}:{SRD_WS+3}], s{S_T+3} offen{SC1}
    buffer_load_dwordx4 {vr(K+4,4)}, v{VL}, s[{SRD_WS}:{SRD_WS+3}], s{S_T+3} offen offset:1024{SC1}
    s_add_u32 s{S_T+3}, s{S_T+3}, 4096
    s_waitcnt vmcnt(0)
    """)
    for h in range(2):
        for t in qk(h, 0): a(t)
    a("s_nop 7")
    for i in range(4):
        for j in range(0, 8, 2): a(f"v_max3_f32 v{MX+i}, v{MX+i}, v{S+8*i+j}, v{S+8*i+j+1}")
    a(f"s_sub_u32 s{S_CNT}, s{S_CNT}, 1\ns_cbranch_scc0 {name}_A_fb1")
    for op in ("v_permlane32_swap_b32", "v_permlane16_swap_b32"):
        for i in range(4): a(f"v_mov_b32 v{VT+i}, v{MX+i}")
        a("s_nop 1")
        for i in range(4): a(f"{op} v{VT+i}, v{MX+i}")
        a("s_nop 1")
        for i in range(4): a(f"v_max_f32 v{MX+i}, v{MX+i}, v{VT+i}")
    for i in range(16): a(f"v_sub_f32 v{CB+i}, 0, v{MX+(i>>2)}")
    for r in range(O, O+48): a(f"v_mov_b32 v{r}, 0")
    a(f"""
    s_mov_b32 s{S_T+3}, {hx(WS_KV)}
    s_mov_b32 s{S_CNT}, 63
    {name}_A_fb2:
    """)
    for i in range(2): a(f"buffer_load_dwordx4 {vr(K+4*i,4)}, v{VL}, s[{SRD_WS}:{SRD_WS+3}], s{S_T+3} offen offset:{1024*i}" + SC1)
    for i in range(2): a(f"buffer_load_dwordx4 {vr(V+4*i,4)}, v{VL}, s[{SRD_WS}:{SRD_WS+3}], s{S_T+3} offen offset:{2048+1024*i}" + SC1)
    a(f"s_add_u32 s{S_T+3}, s{S_T+3}, 4096\ns_waitcnt vmcnt(0)")
    for h in range(2):
        for t in qk(h, 0, CB): a(t)
    a("s_nop 7")
    for i in range(32): a(f"v_exp_f32 v{S+i}, v{S+i}")
    a("s_nop 0")
    for i in range(16): a(f"v_cvt_pk_bf16_f32 v{P+i}, v{S+2*i}, v{S+2*i+1}")
    a("s_nop 1")
    for h in range(2):
        for t in pv(h, 0): a(t)
    a(f"s_sub_u32 s{S_CNT}, s{S_CNT}, 1\ns_cbranch_scc0 {name}_A_fb2\ns_nop 7")
    a(f"s_branch {name}_A_fin")

    VA = 2
    VDW = 6
    V1G = 10
    VT = 14
    VSIG, VCHK, VONE, VCNT, VNEED = 20, 21, 22, 23, 24
    ACC = 32
    WF = 64
    H = 128
    U = 10
    VL2 = 25; V3 = 26; VFA = 27; VFV = 28; VP1 = 29; VP2 = 31; VPD = 9
    def wf(par, e, ns): return WF + par*32 + e*16 + ns*4
    slot = {}
    def hs(n): return slot.get(n, n % HD)
    def hf(n, ts): return H + hs(n)*8 + ts*4
    a.raw(f"{name}_G:")
    if prioG or merged: a(f"s_setprio {prioG}")
    a(f"""
    v_lshrrev_b32 v{VT}, 3, v0
    v_bfe_u32 v{VT+1}, v0, 1, 2
    v_lshrrev_b32 v{VT+2}, 4, v0
    v_xor_b32 v{VT+1}, v{VT+1}, v{VT+2}
    v_lshlrev_b32 v{VT}, 11, v{VT}
    v_lshl_add_u32 v{VT}, v{VT+1}, 5, v{VT}
    v_and_b32 v{VT+1}, 1, v0
    v_lshl_add_u32 v{VT}, v{VT+1}, 4, v{VT}
    s_lshl_b32 s4, s{S_NI}, 7
    s_lshl_b32 s5, s{S_W}, 14
    s_add_u32 s5, s5, s4
    v_add_u32 v{VDW}, s5, v{VT}
    v_add_u32 v{VDW+1}, 0x10000, v{VDW}
    v_add_u32 v{VDW+2}, 0x20000, v{VDW}
    s_lshl_b32 s{S_HK}, s{S_MT32}, 11
    v_add_u32 v{VL2}, 0x20000, v{VL}
    s_mov_b32 s{S_WK}, 0
    s_lshl_b32 s{S_WW}, s{S_W}, 10
    s_mov_b32 s{S_WM}, s{S_WW}
    s_add_u32 s{S_WEND}, s{S_WW}, {hx(RW*4096)}
    s_lshl_b32 s4, s{S_W}, 11
    s_add_u32 s{S_KVK}, s4, {hx(WS_KV)}
    s_add_u32 s{S_KVM}, s4, {hx(KVB)}
    s_mov_b32 s{SRD_WD+2}, 0x700000
    s_mov_b32 s{SRD_WD+3}, 0x20000
    s_mov_b32 s{SRD_WO+2}, 0x200000
    s_mov_b32 s{SRD_WO+3}, 0x20000
    s_mov_b32 s{SRD_OUT+2}, 0x400000
    s_mov_b32 s{SRD_OUT+3}, 0x20000
    s_lshl_b32 s{S_T+2}, s{S_MT32}, 8
    s_add_u32 s{S_T+2}, s{S_T+2}, {hx(WS_GATE+4)}
    s_waitcnt lgkmcnt(0)
    s_mov_b32 s{SRD_WS}, s24
    s_mov_b32 s{SRD_WS+1}, s25
    s_mov_b32 s{SRD_WD}, s26
    s_mov_b32 s{SRD_WD+1}, s27
    """)
    vq = LQ(63); lq = LQ(15); mainflag = {}; mark = {"n": 0}
    ev = {"vm": [], "lg": [], "cert": set(), "free": set(), "pc": set(), "pf": set()}
    def dKV():
        return [f"s_mov_b32 m0, s{S_KVM}", f"s_add_u32 s{S_KVM}, s{S_KVM}, 8192",
                (f"buffer_load_dwordx4 v{VL}, s[{SRD_WS}:{SRD_WS+3}], s{S_KVK} offen{SCK} lds", "vm", "KV"),
                (f"buffer_load_dwordx4 v{VL}, s[{SRD_WS}:{SRD_WS+3}], s{S_KVK} offen offset:1024{SCK} lds", "vm", "KV"),
                f"s_add_u32 s{S_KVK}, s{S_KVK}, 8192", f"s_and_b32 s{S_KVM}, s{S_KVM}, {hx(KVB | 0x7fff)}"]
    def dW3(u0):
        ld = lambda i: (f"buffer_load_dwordx4 v{VDW+i}, s[{SRD_WD}:{SRD_WD+3}], s{S_WK} offen lds", "vm", "W", u0+i)
        return [f"s_mov_b32 m0, s{S_WM}", "NOP", ld(0), f"s_add_u32 m0, s{S_WM}, 4096", "NOP", ld(1), f"s_add_u32 m0, s{S_WM}, 8192",
                f"s_add_u32 s{S_WM}, s{S_WM}, 12288", ld(2), f"s_add_u32 s{S_WK}, s{S_WK}, {hx(3*65536)}",
                f"s_cmp_eq_u32 s{S_WM}, s{S_WEND}", f"s_cselect_b32 s{S_WM}, s{S_WW}, s{S_WM}"]
    def dP():
        if "w2h" not in abl: return []
        return [(f"buffer_load_dword v{VPD}, v{VP1}, s[{SRD_WD}:{SRD_WD+3}], s{S_P1} offen", "vm", "p"), f"s_add_u32 s{S_P1}, s{S_P1}, {hx(12*65536)}",
                (f"buffer_load_dword v{VPD}, v{VP2}, s[{SRD_WO}:{SRD_WO+3}], s{S_P2} offen", "vm", "p"), f"s_add_u32 s{S_P2}, s{S_P2}, {hx(4*65536)}"]
    def dW1(n):
        wo = n >= 112; k = n - 112 if wo else n
        srd = SRD_WO if wo else SRD_WD
        r = [f"s_add_u32 m0, s{S_WW}, {hx(((n + R0) % RW)*4096)}", f"s_mov_b32 s{S_WK}, {hx(k*65536)}",
             (f"buffer_load_dwordx4 v{VDW}, s[{srd}:{srd+3}], s{S_WK} offen lds", "vm", "W", n)]
        return r
    def ldH(n, ts, ofrag):
        return (f"buffer_load_dwordx4 {vr(hf(n,ts),4)}, v{VL2 if n & 1 else VL}, s[{SRD_WS}:{SRD_WS+3}], s{S_HK} offen offset:{ts*1024}" + (" sc1" if (ofrag and "oplain" not in abl) or (merged and not ofrag and "hplain" not in abl) else ""), "vm", ("H", hs(n), ts))
    HADD = f"s_add_u32 s{S_HK}, s{S_HK}, 0x40000"
    def rdW(p, ns, j):
        r = wf((p >> 1) & 1, p & 1, ns) + 2*j
        return (f"ds_read_b64_tr_b16 {vr(r,2)}, v{VA+ns} offset:{(p % U)*4096 + j*2048}", "lg", ("W", (p >> 1) & 1, p & 1, ns), p)
    def emit(o, t):
        if t == "NOP": t = "s_nop 0"
        if isinstance(t, tuple) and t[1] == "vm" and mainflag.get("on"):
            if ("noH" in abl or "noO" in abl and "sc1" in t[0]) and t[2][0] == "H": return
            if "noW" in abl and t[2] == "W": return
        if isinstance(t, tuple):
            o(t[0]); (vq if t[1] == "vm" else lq).push(t[2])
            if t[1] == "vm": mark["n"] += 1; ev["vm"].append(t[3] if len(t) > 3 else None)
            else: ev["lg"].append(t[3] if len(t) > 3 else None)
            if len(t) > 3:
                n = t[3]
                if t[1] == "vm":
                    if n >= RW: assert n - RW in ev["free"], ("W ring overwritten early", n)
                else: assert n in ev["cert"] or "noW" in abl, ("W unit read before certified", n)
        else: o(t)
    N01 = 10 if merged else 9
    R0 = 20 if merged else 0
    def first_loads():
        for t in dKV(): emit(a, t)
        if not merged:
            for t in dW3(0): emit(a, t)
        if not merged:
            for n in range(2):
                for ts in range(2): emit(a, ldH(n, ts, False))
            a(HADD)
        if not merged:
            for t in dW3(3): emit(a, t)
        for t in dKV() + (dKV() + dKV() if "kv4" in abl else []): emit(a, t)
        return len(vq.q)
    if PRE:
        a(f"s_mov_b32 s{S_WK}, {hx(10*65536)}\ns_add_u32 s{S_KVK}, s{S_KVK}, {4*8192}")
        ev["cert"] |= set(range(10))
    elif merged:
        a(f"""
        s_waitcnt vmcnt(0)
        s_barrier
        s_cmp_lg_u32 s{S_W}, 0
        s_cbranch_scc1 {name}_G_nosig
        {"s_cmp_lt_u32 s60, 28" if "wbl2" in abl else ""}
        {"s_cbranch_scc1 " + name + "_G_nowb" if "wbl2" in abl else ""}
        {"buffer_wbl2 sc1" if "wbl2" in abl else ""}
        s_waitcnt vmcnt(0)
        {name}_G_nowb:
        v_mov_b32 v97, 1
        buffer_store_dword v97, v96, s[{SRD_WS}:{SRD_WS+3}], 0 offen sc1
        {name}_G_nosig:
        """)
        stp(a, 15, True)
        a(f"""
        s_mov_b32 s{S_WK}, {hx(10*65536)}
        """)
        ev["cert"] |= set(range(10))
    else: nfirst = first_loads()
    a(f"""
    s_mov_b32 s{SRD_WO}, s28
    s_mov_b32 s{SRD_WO+1}, s29
    s_mov_b32 s{SRD_OUT}, s30
    s_mov_b32 s{SRD_OUT+1}, s31
    v_lshrrev_b32 v{VT}, 2, v0
    v_bfe_u32 v{VT+1}, v0, 3, 2
    v_lshlrev_b32 v{VT}, 7, v{VT}
    v_lshl_add_u32 v{VT}, v{VT+1}, 5, v{VT}
    v_and_b32 v{VT+1}, 3, v0
    v_lshl_add_u32 v{VA}, v{VT+1}, 3, v{VT}
    v_add_u32 v{VA}, {hx(R0*4096)}, v{VA}
    v_xor_b32 v{VA+1}, 32, v{VA}
    v_xor_b32 v{VA+2}, 64, v{VA}
    v_xor_b32 v{VA+3}, 0x60, v{VA}
    v_mov_b32 v{VT}, {hx(CNT_LDS)}
    v_mov_b32 v{VT+1}, 0
    ds_write_b32 v{VT}, v{VT+1}
    {f"ds_write_b32 v{VT}, v{VT+1} offset:8" if PRE else ""}
    s_lshl_b32 s4, s{S_W}, 8
    s_add_u32 s4, s4, {hx(PROG)}
    v_lshl_add_u32 v{VSIG}, v0, 2, s4
    v_mov_b32 v{VONE}, 1
    ds_write_b32 v{VSIG}, v{VT+1 if PRE else VONE}
    v_and_b32 v{VCHK}, 7, v0
    v_lshlrev_b32 v{VCHK}, 8, v{VCHK}
    v_add_u32 v{VCHK}, {hx(PROG)}, v{VCHK}
    v_mov_b32 v{VONE}, 1
    v_bfe_u32 v{VNEED}, v0, 2, 1
    {f"v_mul_i32_i24 v{VNEED}, -4, v{VNEED}" if PRE else f"v_sub_u32 v{VNEED}, 1, v{VNEED}"}
    v_and_b32 v{VT+3}, 15, v0
    v_lshlrev_b32 v{VT+3}, 3, v{VT+3}
    s_mov_b32 s{S_RD}, {hx(R0*4096)}
    v_mov_b32 v{V3}, 3
    s_lshl_b32 s4, s2, 2
    s_add_u32 s4, s4, s{S_W}
    s_lshl_b32 s{S_P2}, s4, 8
    s_mul_i32 s{S_P1}, s4, 768
    s_add_u32 s{S_P1}, s{S_P1}, {hx(W2U*65536)}
    v_min_u32 v{VP1}, 5, v0
    v_lshlrev_b32 v{VP1}, 7, v{VP1}
    v_and_b32 v{VP2}, 1, v0
    v_lshlrev_b32 v{VP2}, 7, v{VP2}
    s_lshl_b32 s4, s{S_MI}, 7
    s_add_u32 s4, s4, {hx(WS_FLAG)}
    v_and_b32 v{VFA}, 15, v0
    v_lshl_add_u32 v{VFA}, v{VFA}, 2, s4
    s_mov_b32 s{S_CU}, {hx(U*4096)}
    """)
    if PRE:
        for i in range(32): a(f"v_mov_b32 v{ACC+i}, 0")
        a(f"""
        v_and_b32 v{VT}, 31, v0
        v_lshlrev_b32 v{VT}, 2, v{VT}
        v_mov_b32 v{VT+2}, {hx(CNT_LDS+4)}
        s_lshr_b32 s4, s{S_MI}, 1
        s_lshl_b32 s6, s4, 7
        s_add_u32 s6, s6, {hx(WS_F1)}
        s_lshl_b32 s5, 1, s60
        s_cmp_eq_u32 s4, s56
        s_cselect_b32 s5, s5, 0
        s_andn2_b32 s{S_T+5}, 0x0fffffff, s5
        s_mov_b32 s7, 0x20000
        s_cmp_lg_u32 s{S_W}, 0
        s_cbranch_scc1 {name}_G_b1
        buffer_load_dword v{VT+1}, v{VT}, s[{SRD_WS}:{SRD_WS+3}], s6 offen sc1
        s_waitcnt vmcnt(0)
        v_cmp_eq_u32 vcc, 0, v{VT+1}
        s_nop 1
        s_and_b32 s4, vcc_lo, s{S_T+5}
        v_mov_b32 v{VT+1}, s4
        ds_write_b32 v{VT+2}, v{VT+1}
        {name}_G_b1:
        s_waitcnt vmcnt(0) lgkmcnt(0)
        s_barrier
        s_cmp_lg_u32 s{S_W}, 0
        s_cbranch_scc1 {name}_G_h1
        v_mov_b32 v97, 1
        buffer_store_dword v97, v96, s[{SRD_WS}:{SRD_WS+3}], 0 offen sc1
        s_cmp_eq_u32 s4, 0
        s_cbranch_scc1 {name}_G_p2ok
        {name}_G_h0:
        buffer_load_dword v{VT+1}, v{VT}, s[{SRD_WS}:{SRD_WS+3}], s6 offen sc1
        s_waitcnt vmcnt(0)
        v_cmp_eq_u32 vcc, 0, v{VT+1}
        s_sub_u32 s7, s7, 1
        s_cbranch_scc1 {name}_G_h0ok
        s_and_b32 s4, vcc_lo, s{S_T+5}
        s_cbranch_scc0 {name}_G_h0ok
        s_sleep 4
        s_branch {name}_G_h0
        {name}_G_h0ok:
        v_mov_b32 v{VT+1}, 0
        ds_write_b32 v{VT+2}, v{VT+1}
        s_branch {name}_G_p2ok
        {name}_G_h1:
        ds_read_b32 v{VT+1}, v{VT+2}
        s_waitcnt lgkmcnt(0)
        v_cmp_ne_u32 vcc, 0, v{VT+1}
        s_nop 4
        s_cbranch_vccz {name}_G_p2ok
        s_sleep 1
        s_branch {name}_G_h1
        {name}_G_p2ok:
        s_waitcnt lgkmcnt(0)
        """)
        stp(a, 15, True); stp(a, 16, True); stp(a, 17, True); stp(a, 8); stp(a, 9)
        for n in range(2):
            for ts in range(2): emit(a, ldH(n, ts, False))
        a(HADD)
    else:
        if merged:
            a(f"""
            v_and_b32 v{VT}, 31, v0
            v_lshlrev_b32 v{VT}, 2, v{VT}
            s_lshr_b32 s6, s{S_MI}, 1
            s_lshl_b32 s6, s6, 7
            s_add_u32 s6, s6, {hx(WS_F1)}
            s_cmp_lg_u32 s{S_W}, 0
            s_cbranch_scc1 {name}_G_p1ok
            s_and_b32 s4, s2, {NREP-1}
            s_lshl_b32 s4, s4, 7
            s_add_u32 s4, s4, {hx(WS_FQ)}
            s_mov_b32 s5, 0x20000
            {name}_G_p1:
            buffer_load_dword v{VT+1}, v{VT}, s[{SRD_WS}:{SRD_WS+3}], s4 offen sc1
            s_waitcnt vmcnt(0)
            v_cmp_eq_u32 vcc, 0, v{VT+1}
            s_sub_u32 s5, s5, 1
            s_cbranch_scc1 {name}_G_p1ok
            s_cbranch_vccz {name}_G_p1ok
            {"s_sleep %d" % SLP if SLP else ""}
            s_branch {name}_G_p1
            {name}_G_p1ok:
            s_waitcnt lgkmcnt(0)
            s_barrier
            """)
            stp(a, 16, True)
            nfirst = first_loads()
            a(f"""
            s_cmp_lg_u32 s{S_W}, 0
            s_cbranch_scc1 {name}_G_nh
            buffer_load_dword v{VT+1}, v{VT}, s[{SRD_WS}:{SRD_WS+3}], s6 offen sc1
            v_mov_b32 v{VT+2}, {hx(CNT_LDS+4)}
            s_waitcnt vmcnt(0)
            v_cmp_eq_u32 vcc, 0, v{VT+1}
            s_nop 1
            v_mov_b32 v{VT+1}, vcc_lo
            ds_write_b32 v{VT+2}, v{VT+1}
            {name}_G_nh:
            """)
        for i in range(32): a(f"v_mov_b32 v{ACC+i}, 0")
        stp(a, 8)
        n = len(vq.q) - nfirst; vq.q = vq.q[nfirst:]
        a(f"s_waitcnt vmcnt({n}) lgkmcnt(0)\ns_barrier")
        stp(a, 9)
        ev["cert"] |= set(range(6))
        if merged:
            a(f"""
            v_mov_b32 v{VT+2}, {hx(CNT_LDS+4)}
            ds_read_b32 v{VT+1}, v{VT+2}
            s_mov_b32 s5, 0x20000
            s_waitcnt lgkmcnt(0)
            v_cmp_ne_u32 vcc, 0, v{VT+1}
            s_nop 4
            s_cbranch_vccz {name}_G_p2ok
            {name}_G_p2:
            buffer_load_dword v{VT+1}, v{VT}, s[{SRD_WS}:{SRD_WS+3}], s6 offen sc1
            s_waitcnt vmcnt(0)
            v_cmp_eq_u32 vcc, 0, v{VT+1}
            s_sub_u32 s5, s5, 1
            s_cbranch_scc1 {name}_G_p2ok
            s_cbranch_vccz {name}_G_p2ok
            s_sleep 8
            s_branch {name}_G_p2
            {name}_G_p2ok:
            """)
            stp(a, 17, True)
            for n in range(2):
                for ts in range(2): emit(a, ldH(n, ts, False))
            a(HADD)

    gslow = Asm(); sites = [0]
    def sync_signal(o, big=False, strict=False):
        nq = len(vq.q) if ("len" in abl or "len2" in abl) else 99
        n = min(mark["n"], len(vq.q))
        if "len" in abl or "len2" in abl:
            old = [i for i, t in enumerate(vq.q[:len(vq.q)-n]) if t in (("KV",) if ("len2" in abl and mark.get("kvonly")) else ("KV", "W"))]
            n = len(vq.q) - 1 - max(old) if old else len(vq.q)
        if big: n = min(n, len(vq.q) - 1 - max(i for i, t in enumerate(vq.q) if t == "KV"))
        if strict and "W" in vq.q: n = min(n, len(vq.q) - 1 - max(i for i, t in enumerate(vq.q) if t == "W"))
        vq.q = vq.q[len(vq.q)-n:]
        if n < nq: o(f"s_waitcnt vmcnt({n})")
        mark["n"] = 0
        ev["pc"] = set(ev["vm"][:len(ev["vm"])-len(vq.q)])
        done = ev["lg"][:len(ev["lg"])-len(lq.q)]
        ev["pf"] = {u for u in set(done) if u is not None and done.count(u) == 8}
        if nosync: return
        emit(o, (f"ds_add_u32 v{VSIG}, v{V3 if big else VONE}", "lg", "sig"))
        o(f"v_add_u32 v{VNEED}, {3 if big else 1}, v{VNEED}")
        if big:
            o(f"v_and_b32 v{VCHK}, {hx(~0x400)}, v{VCHK}")
            if GP2: o(f"s_setprio {GP2}")
    CNTRD = (f"ds_read_b32 v{VCNT}, v{VCHK}", "lg", "cnt")
    def sync_check(o):
        ev["cert"] |= ev["pc"]; ev["free"] |= ev["pf"]
        if nosync: return
        if "cnt" in lq.q: o(f"s_waitcnt lgkmcnt({lq.need(['cnt'])})")
        lab = f"{name}_G_w{sites[0]}"; sites[0] += 1
        o(f"v_cmp_gt_i32 vcc, v{VNEED}, v{VCNT}\ns_nop 0\ns_cbranch_vccnz {lab}"); o.lab(lab + "r")
        gslow(f"""
        {lab}:
        {"s_nop 0" if "gsl0" in abl else "s_sleep 2" if "gsl2" in abl else "s_sleep 1"}
        ds_read_b32 v{VCNT}, v{VCHK}
        s_waitcnt lgkmcnt(0)
        v_cmp_gt_i32 vcc, v{VNEED}, v{VCNT}
        s_nop 4
        s_cbranch_vccnz {lab}
        s_branch {lab}r
        """)
    mark["n"] = 0
    NSO = (0, 1, 2, 3)
    for ns in NSO:
        for e in range(2):
            for j in range(2): emit(a, rdW(e, ns, j))
    for n in range(2, 4):
        for ts in range(2): emit(a, ldH(n, ts, False))
    a(HADD)
    for t in ([] if "kv4" in abl else dKV()) + ([] if merged else dW3(6)): emit(a, t)
    GLD = [(f"buffer_load_dword v{V1G+2*ts}, v{VT+3}, s[{SRD_WS}:{SRD_WS+3}], s{S_T+2} offen offset:{128*ts}" + SC1, "vm", "g") for ts in range(2)]
    if not PRE:
        for t in GLD: emit(a, t)
    if "otouch" in abl:
        a(f"""
        s_lshl_b32 s5, s{S_NI}, 7
        s_add_u32 s5, s5, s{S_MT32}
        s_lshl_b32 s5, s5, 11
        s_add_u32 s5, s5, {hx(WS_O)}
        v_and_b32 v{VT}, 15, v0
        v_lshlrev_b32 v{VT}, 7, v{VT}
        v_bfe_u32 v{VT+1}, v0, 4, 1
        v_lshl_add_u32 v{VT}, v{VT+1}, 17, v{VT}
        """)
        emit(a, (f"buffer_load_dword v{VT+1}, v{VT}, s[{SRD_WS}:{SRD_WS+3}], s5 offen sc1", "vm", "c"))
    stp(a, 4); stp(a, 5, True)

    def block(o, n0, par0, nun=U, syncs=(0, 20, 40, 60), extra=None, loads=None, scale_after=None, pre=None, big=None, strict=None, early=None, gsched={}):
        extra = extra or {}; pre = pre or {}
        loads = loads or (lambda n, ts: ldH(n+HD, ts, False))
        fill = {}
        def put(m, t): fill.setdefault(m, []).append(t)
        for pp in range(nun//2):
            p = 2*pp; n = n0 + p; m0 = 16*pp
            if p == U-2:
                put(m0-2, f"s_cmp_eq_u32 s{S_RD}, {hx((RW-U)*4096)}"); put(m0-2, f"s_cselect_b32 s{S_T+1}, {hx(-(RW-U)*4096)}, s{S_CU}")
                put(m0-1, "ADV"); put(m0, f"s_add_u32 s{S_RD}, s{S_RD}, s{S_T+1}")
            if n + 2 < 144:
                i = 0
                for ns in NSO:
                    for e in range(2):
                        for j in range(2):
                            r = rdW(p+2+e + (2*U if False else 0), ns, j)
                            par = (par0 + pp + 1) & 1
                            reg = wf(par, e, ns) + 2*j
                            put(m0 + i, (f"ds_read_b64_tr_b16 {vr(reg,2)}, v{VA+ns} offset:{((p+2+e) % U)*4096 + j*2048}", "lg", ("W", par, e, ns), n+2+e))
                            i += 1
            if early and pp in early:
                q = early[pp]
                for i, (e, ts) in enumerate(((0,0),(1,0),(0,1),(1,1))): put(m0 + 1 + i, ldH(q+e, ts, False))
                put(m0 + 4, HADD)
            any_l = False
            for ts in range(2):
                for e in range(2):
                    l = loads(n+e, ts)
                    if l: put(m0 + (8+e if ts == 0 else 15), l); any_l = True
            if any_l: put(m0 + 15, HADD)
        for m in range(8*nun):
            for t in gsched.get(8*n0 + m, []): put(m, t)
        for s_ in syncs:
            if not nosync: put(s_ + 4, CNTRD)
            put(s_ + 7, "CHECK")
        for m, l in extra.items():
            k = m
            for t in l:
                if t == "NOP": k += 1; continue
                put(k, t)
                if isinstance(t, tuple): k += 1
        for pp in range(nun//2):
            p = 2*pp; n = n0 + p; par = (par0 + pp) & 1
            if n in pre: pre[n](o)
            i = 0
            for ts in range(2):
                for c in range(4):
                    ns = c if ts == 0 else 3-c
                    for e0 in range(2):
                        e = e0 if c % 2 == 0 else 1-e0
                        m = 16*pp + i
                        if m in syncs: sync_signal(o, big == m, strict == m)
                        w = []
                        tg = [("H", hs(n+e), ts)]
                        if any(t in vq.q for t in tg): w.append(f"vmcnt({vq.need(tg)})")
                        tg = [("W", par, 0, ns), ("W", par, 1, ns)]
                        if any(t in lq.q for t in tg): w.append(f"lgkmcnt({lq.need(tg)})")
                        if w: o("s_waitcnt " + " ".join(w))
                        if not ("noGM" in abl and mainflag.get("on")):
                            o(m16(ACC + 16*ts + 4*ns, wf(par, e, ns), hf(n+e, ts)))
                        for x in fill.get(m, []):
                            if x == "CHECK": sync_check(o)
                            elif x == "ADV":
                                for k in range(4): o(f"v_add_u32 v{VA+k}, s{S_T+1}, v{VA+k}")
                            else: emit(o, x)
                        i += 1
            if scale_after == n+1:
                if "g" in vq.q: o(f"s_waitcnt vmcnt({vq.need(['g'])})")
                o("s_nop 7")
                for i in range(16): o(f"v_pk_mul_f32 {vr(ACC+2*i,2)}, {vr(ACC+2*i,2)}, {vr(V1G+2*(i>>3),2)} op_sel_hi:[1,0]")
                o("s_nop 1")
    mainx = lambda b: {s_+8: ([] if ("kv4" in abl and b == 0 and i == 0) else dKV()) + dW3(N01 + 12*b + 3*i) + (dP() if i == PI else []) for i, s_ in enumerate((0, 20, 40, 60))}
    mainflag['on'] = True
    def lenient_check(b0, b1):
        import re
        def waits(l):
            r = {}; k = 0
            for t in l:
                if "s_waitcnt" in t:
                    for c in ("vmcnt", "lgkmcnt"):
                        m_ = re.search(c + r"\((\d+)\)", t)
                        if m_: r[(k, c)] = int(m_.group(1))
                else: k += 1
            return r, k
        w1, n1 = waits(b1.l); w0, n0_ = waits(b0.l)
        for (k, c), v in w0.items(): assert w1.get((k % n1, c), 99) <= v, ("loop text too lenient", k, c, v)
    nxt = [0]; HT = HD
    def wd(k, gap=4):
        r = []
        for _ in range(k):
            if nxt[0] > 143: break
            r += dW1(nxt[0]) + ["NOP"]*gap; nxt[0] += 1
        return r
    if PRE:
        TAIL0 = 90
        first = {0: 6, 1: 10, 2: 14}
        SY = (0, 20, 40, 60)
        gx = lambda b, kvs: {s_+8: kvs[i] + dW3(N01 + 12*b + 3*i) + (dP() if i == PI else []) for i, s_ in enumerate(SY)}
        block(a, 0, 0, extra=gx(0, [[], [], [], []]), early={0: 4, 1: 8, 2: 12},
              loads=lambda n, ts: ldH(first[n//2] + (n & 1), ts, False) if n < 6 else ldH(n+HD, ts, False))
        block(a, 10, 1, extra=gx(1, [GLD, dKV(), dKV(), dKV()]))
        allkv = lambda: [dKV(), dKV(), dKV(), dKV()]
        keep = list(gslow.l)
        b0 = Asm()
        for b in range(2, 6): block(b0, 10*b, b & 1, extra=gx(b, allkv()))
        gslow.l = keep
        sq = (list(vq.q), list(lq.q), mark["n"])
        b1 = Asm(); block(b1, 60, 0, extra=gx(6, allkv())); block(b1, 70, 1, extra=gx(7, allkv()))
        assert (list(vq.q), list(lq.q), mark["n"]) == sq
        lenient_check(b0, b1)
        a(f"s_mov_b32 s{S_CNT}, 2")
        a.raw(".p2align 6")
        a.raw(f"{name}_G_loop:")
        a.l += b1.l
        a(f"s_sub_u32 s{S_CNT}, s{S_CNT}, 1\ns_cbranch_scc0 {name}_G_loop")
        nxt[0] = N01 + 96
        block(a, 80, 0, syncs=(0, 20, 48), big=20, extra={8: dKV() + wd(3, 1), 28: wd(112 - nxt[0], 1), 56: wd(3, 1)})
    elif "r9" in abl:
        TAIL0 = 70
        first = {0: 6, 1: 10, 2: 14}
        block(a, 0, 0, extra=mainx(0), early={0: 4, 1: 8, 2: 12},
              loads=lambda n, ts: ldH(first[n//2] + (n & 1), ts, False) if n < 6 else ldH(n+HD, ts, False))
        SA, SB_ = (0, 18, 36, 54, 69), (8, 26, 44, 62)
        def body(o, b):
            u = N01 + 12 + 24*b
            block(o, 10+20*b, 1, syncs=SA, extra={s_+8: dKV() + (dW3(u + 3*i) if i < 4 else []) for i, s_ in enumerate(SA)})
            block(o, 20+20*b, 0, syncs=SB_, extra={s_+8: dKV() + dW3(u + 12 + 3*i) for i, s_ in enumerate(SB_)})
        keep = list(gslow.l)
        b0 = Asm(); body(b0, 0)
        gslow.l = keep
        sq = (list(vq.q), list(lq.q), mark["n"])
        b1 = Asm(); body(b1, 1)
        assert (list(vq.q), list(lq.q), mark["n"]) == sq
        a(f"s_mov_b32 s{S_CNT}, 1")
        a.raw(".p2align 6")
        a.raw(f"{name}_G_loop:")
        a.l += b1.l
        a(f"s_sub_u32 s{S_CNT}, s{S_CNT}, 1\ns_cbranch_scc0 {name}_G_loop")
        nxt[0] = N01 + 60
        block(a, 50, 1, syncs=SA, extra={8: dKV() + wd(3, 1), 26: dKV() + wd(3, 1), 44: dKV() + wd(3, 1), 62: dKV() + wd(2, 0), 77: dKV()})
        block(a, 60, 0, syncs=SB_, big=44, extra={16: dKV() + wd(4, 0), 34: dKV() + wd(3, 1), 52: wd(93 - nxt[0], 1), 70: wd(3, 1)})
    elif "r7" not in abl:
        TAIL0 = 80
        first = {0: 6, 1: 10, 2: 14}
        block(a, 0, 0, extra=mainx(0), early={0: 4, 1: 8, 2: 12},
              loads=lambda n, ts: ldH(first[n//2] + (n & 1), ts, False) if n < 6 else ldH(n+HD, ts, False))
        mark["kvonly"] = True
        keep = list(gslow.l); st0 = (list(vq.q), list(lq.q), mark["n"])
        b0 = Asm()
        for b in range(1, 5): block(b0, 10*b, b & 1, extra=mainx(b))
        gslow.l = keep
        sq = (list(vq.q), list(lq.q), mark["n"])
        b1 = Asm(); block(b1, 50, 1, extra=mainx(5)); block(b1, 60, 0, extra=mainx(6))
        assert (list(vq.q), list(lq.q), mark["n"]) == sq
        lenient_check(b0, b1)
        a(f"s_mov_b32 s{S_CNT}, 2")
        a.raw(".p2align 6")
        a.raw(f"{name}_G_loop:")
        a.l += b1.l
        a(f"s_sub_u32 s{S_CNT}, s{S_CNT}, 1\ns_cbranch_scc0 {name}_G_loop")
        mark["kvonly"] = False
        if "cpf2" in abl:
            a(f"""
            s_getpc_b64 s[4:5]
            {name}_pc2:
            s_lshl_b32 s6, s{S_W}, 13
            v_lshl_add_u32 v{VT}, v0, 7, s6
            v_min_u32 v{VT}, {name}_end-{name}_pc2, v{VT}
            """)
            emit(a, (f"global_load_dword v{VT+1}, v{VT}, s[4:5]", "vm", "c"))
        if "hx" in abl:
            HT = 16
            for i, n in enumerate((80, 81, 84, 85, 88, 89)): slot[n] = 10 + i
            for n, m in ((82, 70), (83, 71), (86, 72), (87, 73), (90, 74), (91, 75), (92, 76), (93, 77), (94, 78), (95, 79)): slot[n] = m % HD
            for n in range(96, 144): slot[n] = slot[n-16]
            reg = {70: 82, 72: 86, 74: 90, 76: 92, 78: 94}
            kw = dict(early={0: 80, 1: 84, 2: 88}, loads=lambda n, ts: ldH(reg[n & ~1] + (n & 1), ts, False))
        else: kw = {}
        block(a, 70, 1, syncs=(0, 20, 48), big=20, extra={8: dKV() + dW3(N01+84), 28: dW3(N01+87) + dP(), 56: dW3(N01+90) + dW3(N01+93)}, **kw)

        nxt[0] = N01 + 96
    else:
        TAIL0 = 90
        first = {0: 6, 1: 10, 2: 14}
        k0 = lambda i: [] if ("kv4" in abl and i == 0) else dKV()
        block(a, 0, 0, syncs=(0, 28, 56), extra={8: k0(0) + dW3(N01) + dW3(N01+3), 36: dKV() + dW3(N01+6), 64: dKV() + dW3(N01+9)}, early={0: 4, 1: 8, 2: 12},
              loads=lambda n, ts: ldH(first[n//2] + (n & 1), ts, False) if n < 6 else ldH(n+HD, ts, False))
        def body(o, b):
            u = N01 + 12 + 24*b
            block(o, 10+20*b, 1, syncs=(0, 22, 44, 64), extra={s_+8: dKV() + dW3(u + 3*i) for i, s_ in enumerate((0, 22, 44, 64))})
            block(o, 20+20*b, 0, syncs=(8, 32, 56), extra={16: dKV() + dW3(u+12) + dW3(u+15), 40: dKV() + dW3(u+18), 64: dKV() + dW3(u+21)})
        keep = list(gslow.l)
        b0 = Asm(); body(b0, 0); body(b0, 1)
        gslow.l = keep
        sq = (list(vq.q), list(lq.q), mark["n"])
        b1 = Asm(); body(b1, 2)
        assert (list(vq.q), list(lq.q), mark["n"]) == sq
        a(f"s_mov_b32 s{S_CNT}, 2")
        a.raw(".p2align 6")
        a.raw(f"{name}_G_loop:")
        a.l += b1.l
        a(f"s_sub_u32 s{S_CNT}, s{S_CNT}, 1\ns_cbranch_scc0 {name}_G_loop")
        nxt[0] = N01 + 84
        block(a, 70, 1, syncs=(0, 22, 44, 64), extra={8: dKV() + wd(4, 1), 30: dKV() + wd(101 - nxt[0], 1), 52: dKV() + wd(104 - nxt[0], 1), 72: dKV() + wd(2, 0)})
        block(a, 80, 0, syncs=(8, 32, 56), big=32, extra={16: dKV() + wd(110 - nxt[0], 1), 40: wd(113 - nxt[0], 1), 64: wd(3, 1)})
    mainflag['on'] = False
    stp(a, 6); stp(a, 7, True)
    FLD = (f"buffer_load_dword v{VFV}, v{VFA}, s[{SRD_WS}:{SRD_WS+3}], 0 offen sc1", "vm", "flag")
    def flagwait(o):
        stp(o, 10)
        if "flag" in vq.q: o(f"s_waitcnt vmcnt({vq.need(['flag'])})")
        o(f"""
        v_cmp_ne_u32 vcc, 0, v{VFV}
        s_lshl_b32 s{S_HK}, s{S_MT32}, 11
        s_add_u32 s{S_HK}, s{S_HK}, {hx(WS_O)}
        s_cmp_eq_u64 vcc, -1
        s_cbranch_scc0 {name}_G_poll
        {name}_G_go:
        """)
        gslow(f"""
        {name}_G_poll:
        s_mov_b32 s5, 0x20000
        {name}_G_poll1:
        buffer_load_dword v{VFV}, v{VFA}, s[{SRD_WS}:{SRD_WS+3}], 0 offen sc1
        s_waitcnt vmcnt(0)
        v_cmp_ne_u32 vcc, 0, v{VFV}
        s_sub_u32 s5, s5, 1
        s_cbranch_scc1 {name}_G_go
        s_cmp_eq_u64 vcc, -1
        s_cbranch_scc1 {name}_G_go
        s_sleep 1
        s_branch {name}_G_poll1
        """)
        stp(o, 11)
        def opf():
            o(f"""
            s_and_b32 s4, s{S_NI}, 7
            s_lshl_b32 s4, s4, 2
            s_add_u32 s4, s4, s{S_W}
            s_lshl_b32 s4, s4, 17
            s_lshl_b32 s5, s{S_MI}, 13
            s_add_u32 s4, s4, s5
            s_add_u32 s4, s4, {hx(WS_O)}
            v_lshlrev_b32 v{VT}, 7, v0
            """)
            emit(o, (f"buffer_load_dword v{VT+1}, v{VT}, s[{SRD_WS}:{SRD_WS+3}], s4 offen sc1", "vm", "c"))
        if "opf0" in abl: opf()
        for m in range(112, (FLAGU + HT) if "osch" not in abl else 112 + OB):
            for ts in range(2): emit(o, ldH(m, ts, True))
            if m & 1: o(HADD)
        if "opf1" in abl: opf()
    def tl(n, ts):
        m = n + HT
        if m < 112: return ldH(m, ts, False)
        if n < FLAGU or m > 143 or "osch" in abl: return None
        return ldH(m, ts, True)
    sched = {}
    if "osch" in abl:
        g = 8*FLAGU
        for m in range(112 + OB, 144, 2):
            for (e, ts) in ((0, 0), (1, 0), (0, 1), (1, 1)):
                free = 8*((m - HT) & ~1) + (7 if ts == 0 else 15)
                g = max(g, free)
                sched.setdefault(g, []).append(ldH(m+e, ts, True))
                if (e, ts) == (1, 1): sched[g].append(HADD)
                g += OS
    pre = {FLAGU: flagwait}
    if GP2: pre[GPU_] = lambda o: o(f"s_setprio {prioG}")
    for i, n0 in enumerate(range(60, 144, 10)):
        if n0 < TAIL0: continue
        if stamp: a(f"s_memtime s[4:5]\ns_waitcnt lgkmcnt(0)\nv_writelane_b32 v30, s4, {max(i-2, 0)}")
        if "r7" in abl or "r9" in abl or PRE: ex = {8: wd(n0 + 30 - nxt[0]), 48: wd(n0 + 34 - nxt[0])}
        else: ex = {8: wd(4 if (merged and n0 == 80) else 5), 48: wd(5)}
        if n0 <= FLAGU-4 < n0+10: ex[8*(FLAGU-4-n0) + 2] = [FLD]
        sy = (0, 40) if n0 < 120 else ((16,) if n0 == 120 else ())
        block(a, n0, i & 1, nun=min(U, 144-n0), syncs=sy, strict=(16 if n0 == 120 else None), extra=ex, loads=tl, scale_after=111, pre=pre, gsched=sched)
    stp(a, 12)
    a(f"""
    v_and_b32 v{VT}, 15, v0
    v_lshlrev_b32 v{VT}, 11, v{VT}
    v_bfe_u32 v{VT+1}, v0, 4, 1
    v_lshl_add_u32 v{VT}, v{VT+1}, 5, v{VT}
    v_lshrrev_b32 v{VT+1}, 5, v0
    v_lshl_add_u32 v{VT}, v{VT+1}, 4, v{VT}
    v_add_u32 v{VT+1}, 0x8000, v{VT}
    s_lshl_b32 s4, s{S_MT32}, 16
    s_lshl_b32 s5, s{S_NI}, 7
    s_add_u32 s4, s4, s5
    """)
    for ts in (1, 0):
        for p in (1, 0):
            r = WF + (ts*2+p)*4
            for i in range(4): a(f"v_cvt_pk_bf16_f32 v{r+i}, v{ACC+16*ts+8*p+2*i}, v{ACC+16*ts+8*p+2*i+1}")
            a("s_nop 1")
            a(f"v_permlane16_swap_b32 v{r}, v{r+2}\nv_permlane16_swap_b32 v{r+1}, v{r+3}")
            a(f"buffer_store_dwordx4 {vr(r,4)}, v{VT+ts}, s[{SRD_OUT}:{SRD_OUT+3}], s4 offen offset:{64*p}" + (" sc1" if "osc1" in abl else "") + (" nt" if "ont" in abl else ""))
    a(f"s_branch {name}_fin")
    a.l += gslow.l
    a.raw(f"{name}_fin:")
    if stamp:
        T = 220
        a("s_waitcnt vmcnt(0)")
        stp(a, 13); stp(a, 14, True)
        a(f"""
        s_lshl_b32 s4, s2, 3
        s_add_u32 s4, s4, s{S_WAVE}
        s_lshl_b32 s4, s4, 6
        s_add_u32 s4, s4, {hx(0x1E80000)}
        s_mov_b64 exec, -1
        v_mov_b32 v219, 0
        """)
        for i, (r, rel) in enumerate([(4,1),(6,1),(13,1),(2,0),(14,0),(0,0),(5,0),(7,0),(8,1),(9,1),(10,1),(11,1),(12,1),(15,0),(16,0),(17,0)]):
            if rel: a(f"s_sub_u32 s{ST+r}, s{ST+r}, s{ST}")
            a(f"v_mov_b32 v{T+i}, s{ST+r}")
        a(f"v_lshlrev_b32 v218, 2, v0\ns_add_u32 s5, s4, 0x40000\ns_mov_b64 exec, 0xffff\ns_cmp_ge_u32 s{S_WAVE}, 4\ns_cselect_b64 vcc, -1, 0\nv_cndmask_b32 v198, v198, v30, vcc\nbuffer_store_dword v198, v218, s[{SRD_WS}:{SRD_WS+3}], s5 offen")
        a("s_mov_b64 exec, 1")
        for i in range(4):
            a(f"buffer_store_dwordx4 v[{T+4*i}:{T+4*i+3}], v219, s[{SRD_WS}:{SRD_WS+3}], s4 offen offset:{16*i}")
    a.raw(f"{name}_end:")
    a("s_endpgm")
    return a.text()
```

```python
import sys
from common import *
import k1v8 as k1, k2v9 as k2
KN = "gated_mix__grouped_kv_mqa__glu_gated_glu__prompt_kernel"
DOC = """; ---------------------------------------------------------------------------------------------------------------
; Phase 1 (labels p1_*): x @ [Wgate|Wup|Wq|Wk|Wv] in 256x256 tiles (LDS-DMA rings, 16x16x32 bf16 MFMA in 2-chains).
; Phase 2 (labels p2_*): waves 0-3 run the multi-query attention for 128 rows x 2 heads, waves 4-7 accumulate
;   (2^-64 < l < 2^64) and on |O| falls back to a two-pass softmax with the true row maximum (p2_A_fb).
; ---------------------------------------------------------------------------------------------------------------
"""
def build(stamp=False, o1=(), o2=(), merged=False):
    s = open("ref.txt").read().split("; Override launch")[0]
    if merged:
        s += DOC
        s += "; @launch grid=(256,1,1) block=(512,1,1) lds=163840\n"
        s += '.amdgcn_target "amdgcn-amd-amdhsa--gfx950"\n.text\n'
        t = k1.gen_k1(stamp=stamp, abl=o1, merged=True) + k2.gen_k2(stamp=stamp, abl=o2, merged=True)
        t = t.replace("k1_kernel_", "p1_").replace("k2_kernel", "p2").replace("k1_kernel", KN)
        return s + t + kernel_desc(KN)
    s += "; @launch kernel=k1_kernel grid=(256,1,1) block=(512,1,1) lds=163840\n"
    s += "; @launch kernel=k2_kernel grid=(256,1,1) block=(512,1,1) lds=163840\n"
    s += '.amdgcn_target "amdgcn-amd-amdhsa--gfx950"\n.text\n'
    s += k1.gen_k1(stamp=stamp, abl=o1) + k2.gen_k2(stamp=stamp, abl=o2)
    s += kernel_desc("k1_kernel") + kernel_desc("k2_kernel")
    return s
if __name__ == "__main__":
    args = sys.argv[2:]
    o1 = [x[2:] for x in args if x.startswith("1:")]; o2 = [x[2:] for x in args if x.startswith("2:")]
    open(sys.argv[1], "w").write(build("stamp" in args, o1, o2, "merged" in args))
```

```python
from common import *

XSZ = 32768
WB = 98304; WSZ = 32768
KVB = 65536; KVSZ = 8192
K1_LDS = 163840

V_X0, V_X1, V_W0, V_W1, V_KV = 1, 2, 3, 4, 5
V_DX = 6
V_DW = 8
V_DKV = 12
V_P, V_PD, V_GA, V_GO, V_GX, V_GW, V_GZ = 6, 7, 8, 9, 10, 11, 12
V_GT = 14
V_ST, V_ST2 = 14, 15
KVW = 16
KVA = 24
WF = 32
XF = 96
ACC = 128
def acc(u, s): return ACC + (u*4+s)*4
def wf(st, s, kh): return WF + st*32 + s*8 + kh*4
def xf(u, kh): return XF + (u & 3)*8 + kh*4

S_WAVE = 3
SRD_X, SRD_W0, SRD_W1, SRD_K, SRD_V, SRD_WS, SRD_G, SRD_P = 8, 12, 16, 20, 24, 44, 48, 52
S_MT, S_NT, S_Q, S_WM, S_WN = 56, 57, 58, 59, 60
S_XA = 61
S_WK, S_KVK, S_WSTEP = 65, 66, 67
S_XT, S_XT1, S_XT2 = 68, 69, 70
S_WT, S_KVT = 71, 72
S_D, S_D2, S_CNT, S_C32 = 73, 74, 75, 76
S_PK, S_PSTEP, S_GK, S_MSK = 77, 78, 79, 80
S_ROT = 81
S_E0, S_E1, S_E2, S_E3 = 82, 83, 84, 85
ST = 86

def gen_k1(name="k1_kernel", stamp=False, abl=(), merged=False):
    PD = 1
    for x in abl:
        if x.startswith("pd"): PD = int(x[2:])
    pf = "nopf" not in abl
    NUPF = 10; NUPQ = 14; NPK = 3; NE = 0
    for x in abl:
        if x.startswith("ne"): NE = int(x[2:])
        if x.startswith("npk"): NPK = int(x[3:])
        if x.startswith("upf"): NUPF = int(x[3:])
        if x.startswith("upq"): NUPQ = int(x[3:])
    uniq = "uniq" in abl
    SCM = " sc1" if merged else ""
    SC = SCM if merged else (" sc0" if "ssc0" in abl else "") + (" sc1" if "ssc1" in abl else "") + (" nt" if "snt" in abl else "")
    a = Asm()
    def stp(o, i, real=False):
        if stamp:
            o(f"{'s_memrealtime' if real else 's_memtime'} s[4:5]\ns_waitcnt lgkmcnt(0)\ns_mov_b32 s{ST+i}, s4")
    T = 96
    END = "k2_kernel_end" if merged else f"{name}_end"
    a.raw(f".globl {name}\n.p2align 8\n.type {name},@function\n{name}:")
    if stamp: a(f"s_memtime s[{ST}:{ST+1}]\ns_memrealtime s[{ST+2}:{ST+3}]")
    a(f"""
    s_load_dwordx4 s[28:31], s[0:1], 0
    s_load_dwordx4 s[36:39], s[0:1], 48
    s_load_dwordx4 s[32:35], s[0:1], 16
    s_load_dwordx2 s[40:41], s[0:1], 72
    s_load_dwordx2 s[42:43], s[0:1], 96
    """)
    CW = 8
    for x in abl:
        if x.startswith("cw"): CW = int(x[2:])
    if "nocpf" not in abl:
        a(f"""
        s_sub_u32 s4, s2, {32 if "cpf32" in abl else 0}
        s_cmp_ge_u32 s4, {CW}
        s_cbranch_scc1 {name}_nocpf
        s_getpc_b64 s[4:5]
        {name}_pc:
        s_sub_u32 s4, s4, {name}_pc-{name}
        s_subb_u32 s5, s5, 0
        v_lshlrev_b32 v2, 7, v0
        v_min_u32 v3, k2_kernel_end-{name}, v2
        global_load_dword v255, v3, s[4:5]
        v_add_u32 v2, 0x10000, v2
        v_min_u32 v3, k2_kernel_end-{name}, v2
        global_load_dword v255, v3, s[4:5]
        {name}_nocpf:
        """)
    a(f"""
    s_cmp_ge_u32 s2, 256
    s_cbranch_scc1 {END}
    v_lshrrev_b32 v1, 6, v0
    v_and_b32 v0, 63, v0
    v_readfirstlane_b32 s{S_WAVE}, v1
    s_and_b32 s4, s2, 7
    s_lshr_b32 s5, s2, 3
    """)
    if "xe" in abl or "xo" in abl:
        a(f"""
        {"s_xor_b32 s4, s4, 1" if "xo" in abl else ""}
        s_and_b32 s{S_MT}, s5, 7
        s_lshr_b32 s5, s5, 3
        s_lshr_b32 s6, s4, 1
        s_add_u32 s7, s6, 28
        s_mul_i32 s6, s6, 7
        s_add_u32 s6, s6, s5
        s_cmp_eq_u32 s5, 3
        s_cselect_b32 s7, s7, s6
        s_add_u32 s6, s6, 3
        s_and_b32 s4, s4, 1
        s_cselect_b32 s{S_NT}, s6, s7
        """)
    elif "x84" in abl:
        a(f"""
        s_and_b32 s{S_MT}, s5, 7
        s_lshr_b32 s5, s5, 3
        s_mul_i32 s6, s4, 3
        s_add_u32 s6, s6, s5
        s_add_u32 s7, s4, 28
        s_cmp_eq_u32 s5, 3
        s_cselect_b32 s6, s7, s6
        s_lshl_b32 s7, s4, 2
        s_add_u32 s7, s7, s5
        s_sub_u32 s7, s7, 4
        s_cmp_lt_u32 s4, 4
        s_cselect_b32 s{S_NT}, s6, s7
        """)
    else:
        a(f"""
        s_and_b32 s6, s4, 1
        s_lshl_b32 s6, s6, 2
        s_and_b32 s7, s5, 3
        s_add_u32 s{S_MT}, s6, s7
        s_lshr_b32 s4, s4, 1
        s_lshr_b32 s5, s5, 2
        s_add_u32 s6, s4, 28
        s_mul_i32 s4, s4, 7
        s_add_u32 s4, s4, s5
        {"s_sub_u32 s4, s4, 1" if "qfirst" in abl else ""}
        s_cmp_eq_u32 s5, {0 if "qfirst" in abl else 7}
        s_cselect_b32 s{S_NT}, s6, s4
        """)
    a(f"""
    s_lshr_b32 s{S_WM}, s{S_WAVE}, 2
    s_and_b32 s{S_WN}, s{S_WAVE}, 3
    s_sub_u32 s{S_Q}, s{S_NT}, 28
    s_cselect_b32 s{S_Q}, 0, s{S_Q}
    s_cselect_b32 s4, 7168, 0
    s_cselect_b32 s5, 0, 2048
    s_add_u32 s4, s4, s5
    s_lshl_b32 s5, s{S_NT}, 8
    s_lshl_b32 s6, s{S_Q}, 9
    s_cmp_ge_u32 s{S_NT}, 28
    s_cselect_b32 s5, s6, s5
    s_lshl_b32 s{S_WSTEP}, s4, 6
    s_mov_b32 s{SRD_X+2}, 0x400000
    s_mov_b32 s{SRD_X+3}, 0x20000
    s_mov_b32 s{SRD_W0+3}, 0x20000
    s_mov_b32 s{SRD_W1+3}, 0x20000
    s_mov_b32 s{SRD_WS+2}, {hx(WS_SIZE)}
    s_mov_b32 s{SRD_WS+3}, 0x20000
    s_mov_b32 s{S_C32}, {hx(XSZ)}
    s_cmp_lt_u32 s{S_WAVE}, 4
    s_cbranch_scc1 {name}_cpro
    """)
    def srd_w(o):
        o(f"""
        s_add_u32 s6, s30, 256
        s_addc_u32 s7, s31, 0
        s_cmp_ge_u32 s{S_NT}, 28
        s_cselect_b32 s{SRD_W0}, s30, s36
        s_cselect_b32 s{SRD_W0+1}, s31, s37
        s_cselect_b32 s{SRD_W1}, s6, s38
        s_cselect_b32 s{SRD_W1+1}, s7, s39
        s_mov_b32 s6, 0x700000
        s_cselect_b32 s{SRD_W0+2}, 0x200000, s6
        s_cselect_b32 s{SRD_W1+2}, 0x1fff00, s6
        s_mov_b32 s{SRD_X}, s28
        s_mov_b32 s{SRD_X+1}, s29
        """)
    def lds_addrs(o):
        o(f"""
        v_and_b32 v{T}, 15, v0
        v_lshrrev_b32 v{T+1}, 4, v0
        s_lshl_b32 s6, s{S_WM}, 14
        v_lshlrev_b32 v{T+2}, 7, v{T}
        v_add_u32 v{T+2}, s6, v{T+2}
        v_lshrrev_b32 v{T+3}, 1, v{T}
        v_xor_b32 v{T+3}, v{T+3}, v{T+1}
        v_lshl_add_u32 v{V_X0}, v{T+3}, 4, v{T+2}
        v_xor_b32 v{V_X1}, 64, v{V_X0}
        v_bfe_u32 v{T+2}, v0, 2, 2
        v_and_b32 v{T+3}, 3, v0
        v_lshl_add_u32 v{T+4}, v{T+1}, 3, v{T+2}
        v_and_b32 v{T+5}, 1, v{T+1}
        v_lshl_or_b32 v{T+6}, v{T+5}, 2, v{T+2}
        s_lshl_b32 s6, s{S_WN}, 1
        v_xor_b32 v{T+6}, s6, v{T+6}
        v_lshlrev_b32 v{T+6}, 5, v{T+6}
        v_lshl_add_u32 v{T+6}, v{T+4}, 8, v{T+6}
        v_lshl_add_u32 v{T+6}, v{T+3}, 3, v{T+6}
        v_add_u32 v{V_W0}, {hx(WB)}, v{T+6}
        v_xor_b32 v{V_W1}, 32, v{V_W0}
        s_and_b32 s6, s{S_WN}, 1
        v_xor_b32 v{T+5}, s6, v{T+5}
        v_lshlrev_b32 v{T+5}, 5, v{T+5}
        v_lshl_add_u32 v{T+5}, v{T+4}, 6, v{T+5}
        v_lshl_add_u32 v{T+5}, v{T+3}, 3, v{T+5}
        s_lshr_b32 s6, s{S_WN}, 1
        s_lshl_b32 s6, s6, 12
        s_add_u32 s6, s6, {hx(KVB)}
        v_add_u32 v{V_KV}, s6, v{T+5}
        s_mov_b32 s{SRD_WS}, s42
        s_mov_b32 s{SRD_WS+1}, s43
        s_mov_b32 s{S_XT1}, {hx(XSZ)}
        s_mov_b32 s{S_XT2}, {hx(2*XSZ)}
        """)
    def flag_addrs(o, v, t, with_o):
        o(f"""
        s_lshl_b32 s4, s{S_MT}, 2
        s_add_u32 s4, s4, s{S_Q}
        s_lshl_b32 s4, s4, 2
        s_add_u32 s4, s4, {hx(WS_FQ - 256)}
        v_lshl_add_u32 v{t}, v0, 7, s4
        s_cmp_ge_u32 s{S_NT}, 28
        s_cselect_b32 s5, {2+NREP}, 2
        v_mov_b32 v{v}, 0x7fffff00
        v_cmp_gt_u32 vcc, s5, v0
        s_lshl_b32 s4, s{S_MT}, 5
        s_add_u32 s4, s4, s{S_NT}
        v_cndmask_b32 v{v}, v{v}, v{t}, vcc
        s_lshl_b32 s4, s4, 2
        s_add_u32 s4, s4, {hx(WS_F1)}
        v_writelane_b32 v{v}, s4, 1
        """)
        if with_o:
            o(f"""
            s_and_b32 s4, s2, 7
            s_lshr_b32 s5, s2, 3
            s_lshr_b32 s6, s4, 1
            s_lshl_b32 s6, s6, 2
            s_and_b32 s7, s5, 3
            s_add_u32 s6, s6, s7
            s_and_b32 s4, s4, 1
            s_lshl_b32 s4, s4, 3
            s_lshr_b32 s5, s5, 2
            s_add_u32 s4, s4, s5
            s_lshl_b32 s6, s6, 5
            s_add_u32 s4, s4, s6
            s_lshl_b32 s4, s4, 2
            s_add_u32 s4, s4, {hx(WS_FLAG)}
            """)
        else: o("s_mov_b32 s4, 0x7fffff00")
        o(f"v_writelane_b32 v{v}, s4, 0")
    def dispatch(o, h):
        o(f"""
        s_cmp_lt_u32 s{S_NT}, 28
        s_cbranch_scc1 {name}_F{h}
        s_cmp_lt_u32 s{S_WN}, 2
        s_cbranch_scc1 {name}_K{h}
        s_branch {name}_V{h}
        """)
    a(f"""
    v_lshrrev_b32 v{T}, 3, v0
    v_lshrrev_b32 v{T+1}, 4, v0
    v_and_b32 v{T+2}, 7, v0
    v_lshlrev_b32 v{T}, 11, v{T}
    v_xor_b32 v{T+2}, v{T+1}, v{T+2}
    v_lshl_add_u32 v{V_DX}, v{T+2}, 4, v{T}
    v_xor_b32 v{V_DX+1}, 64, v{V_DX}
    v_add_u32 v{V_DX+1}, 0x4000, v{V_DX+1}
    s_lshl_b32 s6, s{S_WN}, 4
    v_add_u32 v{T+3}, s6, v{T+1}
    v_mul_lo_u32 v{T+3}, v{T+3}, s4
    v_bfe_u32 v{T+2}, v0, 1, 3
    v_xor_b32 v{T}, v{T+1}, v{T+2}
    v_lshlrev_b32 v{T}, 5, v{T}
    v_and_b32 v{T+2}, 1, v0
    v_lshl_add_u32 v{T}, v{T+2}, 4, v{T}
    v_add3_u32 v{V_DW}, v{T}, v{T+3}, s5
    s_lshl_b32 s6, s4, 2
    v_add_u32 v{V_DW+1}, s6, v{V_DW}
    v_xor_b32 v{T}, 0x80, v{T}
    v_add3_u32 v{V_DW+2}, v{T}, v{T+3}, s5
    s_lshl_b32 s7, s4, 3
    v_add_u32 v{V_DW+2}, s7, v{V_DW+2}
    v_add_u32 v{V_DW+3}, s6, v{V_DW+2}
    s_lshl_b32 s6, s{S_WN}, 1
    s_and_b32 s7, s6, 2
    s_add_u32 s7, s7, s{S_Q}
    s_and_b32 s6, s6, 4
    s_lshl_b32 s4, s{S_MT}, 3
    s_add_u32 s6, s6, s4
    s_and_b32 s4, s7, 3
    s_add_u32 s4, s4, s6
    s_lshl_b32 s{S_XA}, s4, 16
    s_add_u32 s7, s7, 1
    s_and_b32 s4, s7, 3
    s_add_u32 s4, s4, s6
    s_lshl_b32 s{S_XA+2}, s4, 16
    s_add_u32 s{S_XA+1}, s{S_XA}, 0x8000
    s_add_u32 s{S_XA+3}, s{S_XA+2}, 0x8000
    s_lshl_b32 s{S_XT}, s{S_WN}, 13
    s_lshl_b32 s{S_WT}, s{S_WN}, 12
    s_add_u32 s{S_WT}, s{S_WT}, {hx(WB)}
    s_lshl_b32 s{S_KVT}, s{S_WN}, 10
    s_add_u32 s{S_KVT}, s{S_KVT}, {hx(KVB)}
    s_mov_b32 s{S_WK}, 0
    s_mov_b32 s{S_KVK}, 0
    v_lshrrev_b32 v{T}, 2, v0
    s_lshl_b32 s6, s{S_WN}, 4
    v_add_u32 v{T}, s6, v{T}
    v_lshlrev_b32 v{T}, 6, v{T}
    v_lshrrev_b32 v{T+1}, 5, v0
    v_lshlrev_b32 v{T+1}, 1, v{T+1}
    v_and_b32 v{T+2}, 3, v0
    v_xor_b32 v{T+1}, v{T+1}, v{T+2}
    v_lshl_add_u32 v{V_DKV}, v{T+1}, 4, v{T}
    s_mov_b32 s{SRD_K+2}, 0x10000
    s_mov_b32 s{SRD_K+3}, 0x20000
    s_mov_b32 s{SRD_V+2}, 0x10000
    s_mov_b32 s{SRD_V+3}, 0x20000
    s_waitcnt lgkmcnt(0)
    """)
    stp(a, 8)
    srd_w(a)
    a(f"""
    s_mov_b32 s{SRD_K}, s32
    s_mov_b32 s{SRD_K+1}, s33
    s_mov_b32 s{SRD_V}, s34
    s_mov_b32 s{SRD_V+1}, s35
    """)
    pro_nt = [True]
    def dma(vo, srd, so, mb, mo, post=()):
        pol = " nt" if ("wnt" in abl and srd in (SRD_W0, SRD_W1)) or ("xnt" in abl and srd == SRD_X) else ""
        if pro_nt[0] and (("pw" in abl and srd in (SRD_W0, SRD_W1)) or ("px" in abl and srd == SRD_X)): pol = " nt"
        return [f"s_add_u32 m0, s{mb}, {hx(mo)}" if mo else f"s_mov_b32 m0, s{mb}",
                f"buffer_load_dwordx4 v{vo}, s[{srd}:{srd+3}], s{so} offen{pol} lds"] + list(post)
    def dWl(slot):
        r = []
        for i in range(4):
            r.append(dma(V_DW+i, SRD_W0, S_WK, S_WT, slot*WSZ + i*1024))
            r.append(dma(V_DW+i, SRD_W1, S_WK, S_WT, slot*WSZ + 16384 + i*1024))
        r[-1] += [f"s_add_u32 s{S_WK}, s{S_WK}, s{S_WSTEP}"]
        return r
    def dXl(off):
        return [dma(V_DX+(i & 1), SRD_X, S_XA+(i >> 1), S_XT, off + i*1024,
                    post=([f"s_add_u32 s{S_XA+(i>>1)}, s{S_XA+(i>>1)}, 128"] if i & 1 else [])) for i in range(8)]
    def dXc():
        r = [dma(16+(i & 1), SRD_X, S_XA+(i >> 1), S_WT, i*1024,
                 post=([f"s_add_u32 s{S_XA+(i>>1)}, s{S_XA+(i>>1)}, 128"] if i & 1 else [])) for i in range(8)]
        r[-1] += [f"s_add_u32 s{S_WT}, s{S_WT}, {hx(XSZ)}", f"s_cmp_ge_u32 s{S_WT}, {hx(3*XSZ)}", f"s_cselect_b32 s4, {hx(3*XSZ)}, 0", f"s_sub_u32 s{S_WT}, s{S_WT}, s4"]
        return r
    def cx_setup(o):
        o(f"""
        v_lshrrev_b32 v18, 3, v0
        v_lshrrev_b32 v19, 4, v0
        v_and_b32 v20, 7, v0
        v_lshlrev_b32 v18, 11, v18
        v_xor_b32 v20, v19, v20
        v_lshl_add_u32 v16, v20, 4, v18
        v_xor_b32 v17, 64, v16
        v_add_u32 v17, 0x4000, v17
        s_lshl_b32 s4, s{S_MT}, 2
        s_add_u32 s4, s4, s{S_WN}
        s_lshl_b32 s4, s4, 17
        s_add_u32 s{S_XA}, s4, 256
        s_add_u32 s{S_XA+1}, s{S_XA}, 0x8000
        s_add_u32 s{S_XA+2}, s{S_XA}, 0x10000
        s_add_u32 s{S_XA+3}, s{S_XA}, 0x18000
        s_lshl_b32 s{S_WT}, s{S_WN}, 13
        s_add_u32 s{S_WT}, s{S_WT}, {hx(2*XSZ)}
        s_mov_b32 s{SRD_X}, s28
        s_mov_b32 s{SRD_X+1}, s29
        """)
    def cq_setup(o):
        o(f"""
        v_lshrrev_b32 v{V_GT}, 3, v0
        v_lshrrev_b32 v{V_GX}, 4, v0
        v_and_b32 v{V_DX+1}, 7, v0
        v_lshlrev_b32 v{V_GT}, 11, v{V_GT}
        v_xor_b32 v{V_DX+1}, v{V_GX}, v{V_DX+1}
        v_lshl_add_u32 v{V_DX}, v{V_DX+1}, 4, v{V_GT}
        v_xor_b32 v{V_DX+1}, 64, v{V_DX}
        v_add_u32 v{V_DX+1}, 0x4000, v{V_DX+1}
        s_lshl_b32 s6, s{S_WN}, 1
        s_and_b32 s7, s6, 2
        s_add_u32 s7, s7, s{S_Q}
        s_and_b32 s6, s6, 4
        s_lshl_b32 s4, s{S_MT}, 3
        s_add_u32 s6, s6, s4
        s_and_b32 s4, s7, 3
        s_add_u32 s4, s4, s6
        s_lshl_b32 s4, s4, 16
        s_add_u32 s{S_XA}, s4, 256
        s_add_u32 s{S_XA+1}, s4, 0x8100
        s_add_u32 s7, s7, 1
        s_and_b32 s4, s7, 3
        s_add_u32 s4, s4, s6
        s_lshl_b32 s4, s4, 16
        s_add_u32 s{S_XA+2}, s4, 256
        s_add_u32 s{S_XA+3}, s4, 0x8100
        s_lshl_b32 s{S_XT}, s{S_WN}, 13
        s_mov_b32 s{SRD_X}, s28
        s_mov_b32 s{SRD_X+1}, s29
        """)
    def dKVl(slot):
        return [dma(V_DKV, SRD_K, S_KVK, S_KVT, slot*KVSZ),
                dma(V_DKV, SRD_V, S_KVK, S_KVT, slot*KVSZ+4096, post=[f"s_add_u32 s{S_KVK}, s{S_KVK}, 4096"])]
    def dKVc(slot):
        return [dma(V_GO, SRD_G, S_KVK, S_XT, slot*KVSZ + KVB), dma(V_GO, SRD_G, S_KVK, S_XT, slot*KVSZ + KVB + 1024)]
    def burst(o, l):
        for g in l:
            o(g[0]); o("s_nop 0")
            for t in g[1:]: o(t)
    def dW(o, slot): burst(o, dWl(slot))
    def dX(o, off): burst(o, dXl(off))
    def dKV(o, slot): burst(o, dKVl(slot))
    if "xfirst" in abl: dX(a, 0); dW(a, 0)
    elif "xmix" in abl:
        l1, l2 = dWl(0), dXl(0)
        burst(a, [g for p in zip(l2, l1) for g in p])
    else: dW(a, 0); dX(a, 0)
    if "kv0e" in abl:
        a(f"s_cmp_lt_u32 s{S_NT}, 28\ns_cbranch_scc1 {name}_nokv0"); dKV(a, 0); a.lab(f"{name}_nokv0")
    if "w1e" in abl: dW(a, 1)
    stp(a, 9)
    if stamp: a(f"s_mov_b32 s{ST+15}, 0")
    lds_addrs(a)
    dispatch(a, "L")
    a.raw(f"{name}_cpro:")
    if "noprio" not in abl: a("s_setprio 1")
    a(f"""
    s_mov_b32 s{SRD_G+2}, 0x800
    s_mov_b32 s{SRD_G+3}, 0x20000
    s_lshl_b32 s4, s{S_NT}, 2
    s_add_u32 s4, s4, s{S_WN}
    s_lshl_b32 s4, s4, 1
    v_lshrrev_b32 v{T}, 5, v0
    v_add_u32 v{T}, s4, v{T}
    s_lshl_b32 s5, s{S_Q}, 5
    v_subrev_u32 v{T+1}, s5, v{T}
    v_and_b32 v{T+1}, 127, v{T+1}
    v_and_b32 v{T}, 128, v{T}
    v_or_b32 v{T}, v{T}, v{T+1}
    v_bfe_u32 v{T+1}, v{T}, 1, 3
    v_bfe_u32 v{T+2}, v0, 2, 3
    v_xor_b32 v{T+1}, v{T+1}, v{T+2}
    v_lshlrev_b32 v{T}, 7, v{T}
    v_lshl_add_u32 v{T}, v{T+1}, 4, v{T}
    v_and_b32 v{T+1}, 3, v0
    v_lshl_add_u32 v{V_GA}, v{T+1}, 2, v{T}
    v_and_b32 v{V_GO}, 31, v0
    v_lshlrev_b32 v{V_GO}, 2, v{V_GO}
    v_mov_b32 v{V_GZ}, 0
    v_mov_b32 v{V_GZ+1}, 0
    s_mov_b32 s{S_MSK}, 0xffff0000
    s_mov_b32 s{S_GK}, 0
    s_mov_b32 s{S_XT}, 0
    s_waitcnt lgkmcnt(0)
    """)
    stp(a, 8)
    a(f"""
    s_mov_b32 s{SRD_G}, s40
    s_mov_b32 s{SRD_G+1}, s41
    buffer_load_dword v{V_GW}, v{V_GO}, s[{SRD_G}:{SRD_G+3}], s{S_GK} offen
    s_add_u32 s{S_GK}, s{S_GK}, 128
    """)
    a.raw("@CP0@")
    if "tlb" in abl:
        a(f"""
        s_cmp_ge_u32 s2, 16
        s_cbranch_scc1 {name}_notlb
        s_load_dwordx2 s[{SRD_K}:{SRD_K+1}], s[0:1], 64
        s_load_dwordx2 s[{SRD_V}:{SRD_V+1}], s[0:1], 32
        s_load_dwordx2 s[{SRD_P}:{SRD_P+1}], s[0:1], 80
        s_mov_b32 s{SRD_K+2}, 0x700000
        s_mov_b32 s{SRD_K+3}, 0x20000
        s_mov_b32 s{SRD_V+2}, 0x200000
        s_mov_b32 s{SRD_V+3}, 0x20000
        s_mov_b32 s{SRD_P+2}, 0x400000
        s_mov_b32 s{SRD_P+3}, 0x20000
        s_mov_b32 s{SRD_WS}, s42
        s_mov_b32 s{SRD_WS+1}, s43
        s_mov_b32 s{SRD_W0}, s36
        s_mov_b32 s{SRD_W0+1}, s37
        s_mov_b32 s{SRD_W0+2}, 0x700000
        s_mov_b32 s{SRD_W1}, s38
        s_mov_b32 s{SRD_W1+1}, s39
        s_mov_b32 s{SRD_W1+2}, 0x700000
        v_and_b32 v{T}, 31, v0
        v_lshlrev_b32 v{T}, 20, v{T}
        s_waitcnt lgkmcnt(0)
        s_cmp_eq_u32 s{S_WAVE}, 0
        s_cbranch_scc0 {name}_notlb
        buffer_load_dword v255, v{T}, s[{SRD_W0}:{SRD_W0+3}], 0 offen sc1
        buffer_load_dword v255, v{T}, s[{SRD_W1}:{SRD_W1+3}], 0 offen sc1
        buffer_load_dword v255, v{T}, s[{SRD_K}:{SRD_K+3}], 0 offen sc1
        buffer_load_dword v255, v{T}, s[{SRD_V}:{SRD_V+3}], 0 offen sc1
        buffer_load_dword v255, v{T}, s[{SRD_P}:{SRD_P+3}], 0 offen sc1
        buffer_load_dword v255, v{T}, s[{SRD_WS}:{SRD_WS+3}], 0 offen sc1
        {name}_notlb:
        """)
    stp(a, 9)
    lds_addrs(a)
    if merged:
        a(f"""
        v_mov_b32 v{V_P}, 0x7fffff00
        s_mov_b32 s{S_D}, 0
        s_mov_b32 s{SRD_K}, s42
        s_mov_b32 s{SRD_K+1}, s43
        s_mov_b32 s{SRD_K+2}, 0
        s_mov_b32 s{SRD_K+3}, 0x20000
        s_cmp_lg_u32 s{S_WAVE}, 0
        s_cbranch_scc1 {name}_noclr
        s_load_dwordx2 s[{SRD_K}:{SRD_K+1}], s[0:1], 88
        s_mov_b32 s{SRD_K+2}, 256
        s_mov_b32 s{SRD_K+3}, 0x20000
        """)
        flag_addrs(a, V_P, V_PD, True)
        a(f"""
        s_lshr_b32 s{S_D}, s2, 3
        s_mul_i32 s{S_D}, s{S_D}, 6
        s_lshr_b32 s{S_D}, s{S_D}, 5
        s_add_u32 s{S_D}, s{S_D}, 1
        s_waitcnt lgkmcnt(0)
        {name}_noclr:
        """)
    dispatch(a, "C")

    LT = 0; lid = [0]
    def lab_id():
        lid[0] += 1; return lid[0]
    for x in abl:
        if x.startswith("lt"): LT = int(x[2:])
    W2U = 40
    for x in abl:
        if x.startswith('wu'): W2U = int(x[2:])
    cx = "cx" in abl
    CQ = 0
    for x in abl:
        if x.startswith("cq"): CQ = int(x[2:])
    w2 = "now2" not in abl
    VP, VP2, VPD = 16, 17, 18
    PFL = [[f"s_nop 0", f"buffer_load_dword v{VPD}, v{VP}, s[{SRD_P}:{SRD_P+3}], s{S_PK} offen", f"s_add_u32 s{S_PK}, s{S_PK}, s{S_PSTEP}"]]
    if "pnt" in abl:
        cnt = [0]
        def pfl0():
            cnt[0] += 1; l = f"{name}_pn{cnt[0]}"
            return [f"s_cmp_eq_u32 s{S_D}, 0", f"s_cbranch_scc1 {l}a", f"buffer_load_dword v{VPD}, v{VP}, s[{SRD_P}:{SRD_P+3}], s{S_PK} offen", f"s_branch {l}b", f"{l}a:",
                    f"buffer_load_dword v{VPD}, v{VP}, s[{SRD_P}:{SRD_P+3}], s{S_PK} offen nt", f"{l}b:", f"s_add_u32 s{S_PK}, s{S_PK}, s{S_PSTEP}"]
    else: pfl0 = lambda: PFL[0]
    if w2: PFL.append([f"s_nop 0", f"buffer_load_dword v{VPD}, v{VP2}, s[{SRD_K}:{SRD_K+3}], s{S_KVT} offen", f"v_add_u32 v{VP2}, s{S_KVK}, v{VP2}" if any(x.startswith("w2d") for x in abl) else f"s_add_u32 s{S_KVT}, s{S_KVT}, s{S_KVK}"])
    VP3 = 19
    WL = 0
    for x in abl:
        if x.startswith("wl"): WL = int(x[2:])
    if WL: PFL.append([f"s_nop 0", f"buffer_load_dword v{VPD}, v{VP3}, s[{SRD_WS}:{SRD_WS+3}], s{S_GK} offen", f"s_add_u32 s{S_GK}, s{S_GK}, {hx(896*WL*128)}"])
    NPF = len(PFL) if pf else 0
    def p_setup(o):
        T = 20
        o(f"""
        s_load_dwordx2 s[24:25], s[0:1], 64
        s_load_dwordx2 s[26:27], s[0:1], 32
        s_mul_i32 s6, s{S_MT}, 28
        s_add_u32 s6, s6, s{S_NT}
        v_lshrrev_b32 v{T}, 2, v0
        v_lshlrev_b32 v{T}, 7, v{T}
        s_lshl_b32 s7, s6, 11
        v_add_u32 v{T}, s7, v{T}
        v_min_u32 v{T+1}, 9, v0
        s_mul_i32 s7, s6, 10
        v_add_u32 v{T+1}, s7, v{T+1}
        v_min_u32 v{T+1}, 2047, v{T+1}
        v_lshlrev_b32 v{T+1}, 11, v{T+1}
        v_lshrrev_b32 v{VP2}, 3, v0
        v_lshlrev_b32 v{VP2}, 7, v{VP2}
        s_cmp_ge_u32 s6, 128
        s_cselect_b32 s7, 3, 127
        s_and_b32 s7, s7, s6
        s_lshl_b32 s7, s7, 10
        v_add_u32 v{T+2}, s7, v{VP2}
        s_cmp_ge_u32 s6, 128
        s_cselect_b32 s7, 1, 32
        s_lshl_b32 s7, s7, 12
        s_cmp_eq_u32 s{S_WN}, 2
        s_cselect_b64 vcc, -1, 0
        s_cselect_b32 s{S_PSTEP}, 128, s{S_WSTEP}
        v_cndmask_b32 v{VP}, v{T}, v{T+1}, vcc
        s_cselect_b32 s{SRD_P}, s{SRD_X}, s{SRD_W0}
        s_cselect_b32 s{SRD_P+1}, s{SRD_X+1}, s{SRD_W0+1}
        s_cselect_b32 s{SRD_P+2}, s{SRD_X+2}, s{SRD_W0+2}
        s_cmp_eq_u32 s{S_WN}, 1
        s_cselect_b32 s{SRD_P}, s{SRD_W1}, s{SRD_P}
        s_cselect_b32 s{SRD_P+1}, s{SRD_W1+1}, s{SRD_P+1}
        s_cmp_eq_u32 s{S_WN}, 3
        s_cselect_b64 vcc, -1, 0
        s_cselect_b32 s{S_PSTEP}, s7, s{S_PSTEP}
        v_cndmask_b32 v{VP}, v{VP}, v{T+2}, vcc
        s_mul_i32 s{S_PK}, s{S_PSTEP}, {2+PD-NE}
        s_cmp_ge_u32 s6, 132
        s_cselect_b32 s4, s34, s32
        s_cselect_b32 s7, s35, s33
        s_cmp_ge_u32 s6, 136
        s_cselect_b32 s5, 0, 0x10000
        s_cmp_lt_u32 s6, 128
        s_cselect_b32 s4, s30, s4
        s_cselect_b32 s7, s31, s7
        s_cselect_b32 s5, 0x200000, s5
        s_cmp_eq_u32 s{S_WN}, 3
        s_cselect_b32 s{SRD_P}, s4, s{SRD_P}
        s_cselect_b32 s{SRD_P+1}, s7, s{SRD_P+1}
        s_cselect_b32 s{SRD_P+2}, s5, s{SRD_P+2}
        s_mov_b32 s{SRD_P+3}, 0x20000
        s_mul_i32 s4, s6, 3
        s_add_u32 s4, s4, s{S_WN}
        s_mov_b32 s5, 0x700000
        s_mov_b32 s7, {672*1024}
        """)
        if "x84" in abl:
            o(f"""
            v_lshrrev_b32 v{T}, 3, v0
            s_lshl_b32 s5, s{S_MT}, 3
            v_add_u32 v{T}, s5, v{T}
            v_mul_u32_u24 v{T}, 7168, v{T}
            v_bfe_u32 v{T+1}, v0, 2, 1
            v_lshl_add_u32 v{T}, v{T+1}, 7, v{T}
            s_lshl_b32 s5, s{S_NT}, 8
            v_add_u32 v{T}, s5, v{T}
            s_cmp_lt_u32 s{S_WN}, 2
            s_cselect_b64 vcc, -1, 0
            s_lshr_b32 s5, s2, 3
            v_cndmask_b32 v{VP}, v{VP}, v{T}, vcc
            s_mul_i32 s5, s5, 3
            v_lshrrev_b32 v{T}, 4, v0
            v_min_u32 v{T}, 2, v{T}
            v_add_u32 v{T}, s5, v{T}
            v_min_u32 v{T}, 63, v{T}
            v_lshlrev_b32 v{T}, 11, v{T}
            v_bfe_u32 v{T+1}, v0, 2, 2
            v_lshl_add_u32 v{T}, v{T+1}, 7, v{T}
            s_and_b32 s5, s2, 7
            s_lshl_b32 s7, s5, 9
            v_add_u32 v{T}, s7, v{T}
            v_lshrrev_b32 v{T+1}, 3, v0
            s_and_b32 s7, s{S_NT}, 3
            s_lshl_b32 s7, s7, 10
            v_lshl_add_u32 v{T+1}, v{T+1}, 7, s7
            s_cmp_lt_u32 s5, 4
            s_cselect_b64 vcc, -1, 0
            s_cselect_b32 s{S_D}, 0, 1
            v_cndmask_b32 v{T}, v{T+1}, v{T}, vcc
            s_cselect_b32 s{S_D2}, 32, 1
            s_lshl_b32 s{S_D2}, s{S_D2}, 12
            s_mov_b32 s7, 0
            s_cmp_eq_u32 s{S_MT}, 0
            s_cselect_b32 s7, 0x10000, 0
            s_cmp_eq_u32 s5, 5
            s_cselect_b32 s{S_E0}, s34, s32
            s_cselect_b32 s{S_E1}, s35, s33
            s_cmp_ge_u32 s5, 6
            s_cselect_b32 s7, 0, s7
            s_cmp_lt_u32 s5, 4
            s_cselect_b32 s{S_E0}, s30, s{S_E0}
            s_cselect_b32 s{S_E1}, s31, s{S_E1}
            s_cselect_b32 s7, 0x200000, s7
            s_cmp_eq_u32 s{S_WN}, 3
            s_cselect_b64 vcc, -1, 0
            s_cselect_b32 s{SRD_P}, s{S_E0}, s{SRD_P}
            v_cndmask_b32 v{VP}, v{VP}, v{T}, vcc
            s_cselect_b32 s{SRD_P+1}, s{S_E1}, s{SRD_P+1}
            s_cselect_b32 s{SRD_P+2}, s7, s{SRD_P+2}
            s_cselect_b32 s{S_PSTEP}, s{S_D2}, s{S_PSTEP}
            s_cselect_b32 s{S_D}, s{S_D}, 0
            s_mul_i32 s{S_PK}, s{S_PSTEP}, {2+PD-NE}
            s_cmp_eq_u32 s{S_WN}, 2
            s_cselect_b32 s{S_D}, 1, s{S_D}
            s_mov_b32 s5, 0x700000
            s_mov_b32 s7, {672*1024}
            """)
        else:
            o(f"s_cmp_lt_u32 s{S_WN}, 2\ns_cselect_b32 s{S_D}, 0, 1")
        o(f"""
        s_waitcnt lgkmcnt(0)
        s_cmp_eq_u32 s{S_WN}, 3
        s_cselect_b32 s4, s6, s4
        s_cselect_b32 s{SRD_K}, s26, s24
        s_cselect_b32 s{SRD_K+1}, s27, s25
        s_cselect_b32 s{SRD_K+2}, 0x200000, s5
        s_cselect_b32 s{S_KVK}, {224*1024}, s7
        s_lshl_b32 s{S_KVT}, s4, 10
        """)
        if "w2h" in abl: o(f"s_cmp_eq_u32 s{S_WN}, 3\ns_cselect_b32 s{SRD_K+2}, 0, {hx(W2U*65536)}")
        if "nox" in abl: o(f"s_cmp_eq_u32 s{S_WN}, 2\ns_cselect_b32 s{SRD_P+2}, 0, s{SRD_P+2}")
        for x in abl:
            if x.startswith("w2d"):
                o(f"""
                s_lshl_b32 s{S_KVK}, s{S_KVK}, 1
                s_lshl_b32 s{S_KVT}, s{S_KVT}, 1
                s_mul_i32 s4, s{S_KVK}, {int(x[3:])}
                v_lshrrev_b32 v{VP2}, 2, v0
                v_lshlrev_b32 v{VP2}, 7, v{VP2}
                v_add_u32 v{VP2}, s{S_KVT}, v{VP2}
                v_subrev_u32 v{VP2}, s4, v{VP2}
                s_mov_b32 s{S_KVT}, 0
                """)
        if WL:
            o(f"""
            s_lshl_b32 s4, s6, 2
            s_add_u32 s4, s4, s{S_WN}
            s_mul_i32 s{S_GK}, s4, {WL*128}
            v_min_u32 v{VP3}, {WL-1}, v0
            v_lshlrev_b32 v{VP3}, 7, v{VP3}
            """)
    cp = Asm()
    for x in abl:
        if x.startswith("cp") and x[2:].isdigit():
            s0, n_ = int(x[2]), int(x[3])
            cp(f"s_cmp_ge_u32 s{S_NT}, 28\ns_cbranch_scc1 {name}_nocp0")
            if "cponly3" in abl: cp(f"s_cmp_lg_u32 s{S_WN}, 3\ns_cbranch_scc1 {name}_nocp0")
            srd_w(cp)
            t_ = Asm(); p_setup(t_)
            k_ = [i for i, l in enumerate(t_.l) if f"s_mov_b32 s{SRD_P+3}, 0x20000" in l][0]
            cp.l += t_.l[2:k_+1]
            cp(f"s_mul_i32 s{S_PK}, s{S_PSTEP}, {s0}")
            for _ in range(n_):
                cp(f"buffer_load_dword v255, v{VP}, s[{SRD_P}:{SRD_P+3}], s{S_PK} offen\ns_add_u32 s{S_PK}, s{S_PK}, s{S_PSTEP}")
            cp.lab(f"{name}_nocp0")
    i_ = a.l.index("@CP0@"); a.l[i_:i_+1] = cp.l
    WORDER = [(0,0),(0,1),(1,1),(1,0),(2,0),(2,1),(3,1),(3,0)]
    def rd_w(st, slot, s, kh, j):
        blk, b = s >> 1, s & 1
        r = wf(st, s, kh) + j*2
        return (f"ds_read_b64_tr_b16 v[{r}:{r+1}], v{V_W0+b} offset:{slot*WSZ + blk*16384 + kh*8192 + j*1024}", ("W", st, s, kh))
    def rd_x(role, slot, u, kh):
        r = xf(u, kh)
        off = u*2048 + (0 if role == "F" else slot*XSZ)
        return (f"ds_read_b128 v[{r}:{r+3}], v{V_X0+kh} offset:{off}", ("x", u, kh))
    def rd_kv(slot, kh, j):
        r = KVW + kh*4 + j*2
        return (f"ds_read_b64_tr_b16 v[{r}:{r+1}], v{V_KV} offset:{slot*KVSZ + kh*2048 + j*256}", ("kv", kh))

    def gate_acc(nvm, t=V_GT):
        return [f"s_waitcnt vmcnt({nvm})",
                f"v_lshlrev_b32 v{t}, 16, v{V_GX}", f"v_and_b32 v{t+1}, s{S_MSK}, v{V_GX}",
                f"v_lshlrev_b32 v{V_GX}, 16, v{V_GW}", f"v_and_b32 v{V_GW}, s{S_MSK}, v{V_GW}",
                *([f"v_pk_mul_f32 v[{t}:{t+1}], v[{t}:{t+1}], v[{V_GX}:{V_GW}]"] if "gpk" in abl else
                  [f"v_mul_f32 v{t}, v{t}, v{V_GX}", f"v_mul_f32 v{t+1}, v{t+1}, v{V_GW}"]),
                f"v_cvt_pk_bf16_f32 v{t+1}, v{t}, v{t+1}",
                f"v_lshlrev_b32 v{t}, 16, v{t+1}", f"v_and_b32 v{t+1}, s{S_MSK}, v{t+1}",
                *([f"v_pk_add_f32 v[{V_GZ}:{V_GZ+1}], v[{V_GZ}:{V_GZ+1}], v[{t}:{t+1}]"] if "gpk" in abl else
                  [f"v_add_f32 v{V_GZ}, v{V_GZ}, v{t}", f"v_add_f32 v{V_GZ+1}, v{V_GZ+1}, v{t+1}"])]
    def gate_fin():
        z = V_GZ; t = V_GX
        g = [] if "oldg" in abl else gate_acc(63, 56)[1:]
        g += [f"v_add_f32 v{z}, v{z}, v{z+1}"]
        for sh in ("row_shr:1", "row_shr:2", "row_shr:4", "row_shr:8"):
            g += ["s_nop 1", f"v_add_f32_dpp v{z}, v{z}, v{z} {sh} row_mask:0xf bank_mask:0xf bound_ctrl:1"]
        g += ["s_nop 1", f"v_add_f32_dpp v{z}, v{z}, v{z} row_bcast:15 row_mask:0xa bank_mask:0xf",
              f"v_cvt_pk_bf16_f32 v{t}, v{z}, v{z}", f"v_lshlrev_b32 v{t}, 16, v{t}",
              f"v_mul_f32 v{t}, {hx(f2u(-LOG2E))}, v{t}", f"v_exp_f32 v{t}, v{t}",
              f"s_lshl_b32 s4, s{S_MT}, 5", f"v_add_f32 v{t}, 1.0, v{t}",
              f"v_rcp_f32 v{t}, v{t}", f"s_add_u32 s4, s4, s{S_NT}", f"v_cvt_pk_bf16_f32 v{t}, v{t}, v{t}", f"v_lshlrev_b32 v{t}, 16, v{t}",
              f"v_sub_f32 v{t+1}, 1.0, v{t}", f"v_cvt_pk_bf16_f32 v{t+1}, v{t+1}, v{t+1}", f"v_lshlrev_b32 v{t+1}, 16, v{t+1}",
              f"v_lshrrev_b32 v{z}, 5, v0", f"v_lshlrev_b32 v{z}, 3, v{z}",
              "s_lshl_b32 s4, s4, 2", f"s_add_u32 s4, s4, s{S_WN}", "s_lshl_b32 s4, s4, 4", f"s_add_u32 s4, s4, {hx(WS_GATE)}",
              "s_mov_b32 exec_lo, 0x80000000", "s_mov_b32 exec_hi, 0x80000000",
              f"buffer_store_dwordx2 v[{t}:{t+1}], v{z}, s[{SRD_WS}:{SRD_WS+3}], s4 offen" + SCM,
              "s_mov_b64 exec, -1"]
        if not merged:
            g += [f"s_lshl_b32 s4, s2, 3", f"s_add_u32 s4, s4, s{S_WAVE}", "s_cmp_ge_u32 s4, 8", f"s_cbranch_scc1 {name}_fin",
              f"v_lshlrev_b32 v{z}, 2, v0", f"v_mov_b32 v{z+1}, 0", "s_and_b32 s4, s4, 3", "s_lshl_b32 s4, s4, 9", f"s_add_u32 s4, s4, {hx(WS_FLAG)}",
              f"buffer_store_dword v{z+1}, v{z}, s[{SRD_WS}:{SRD_WS+3}], s4 offen",
              f"buffer_store_dword v{z+1}, v{z}, s[{SRD_WS}:{SRD_WS+3}], s4 offen offset:256"]
        return g

    def epi_group(role, u, pk=True):
        e = []
        TE = WF
        if role == "F":
            G = acc(u, 0); U = acc(u, 2)
            if pk:
                for i in range(4): e.append(f"v_pk_mul_f32 v[{G+2*i}:{G+2*i+1}], v[{G+2*i}:{G+2*i+1}], s[{S_E0}:{S_E1}]")
            else:
                for i in range(8): e.append(f"v_mul_f32 v{G+i}, s{S_E0}, v{G+i}")
            for i in range(8): e.append(f"v_exp_f32 v{G+i}, v{G+i}")
            if pk:
                for i in range(4): e.append(f"v_pk_add_f32 v[{G+2*i}:{G+2*i+1}], v[{G+2*i}:{G+2*i+1}], 1.0 op_sel_hi:[1,0]")
            else:
                for i in range(8): e.append(f"v_add_f32 v{G+i}, 1.0, v{G+i}")
            for i in range(8): e.append(f"v_rcp_f32 v{G+i}, v{G+i}")
            if pk:
                for i in range(4): e.append(f"v_pk_mul_f32 v[{U+2*i}:{U+2*i+1}], v[{U+2*i}:{U+2*i+1}], v[{G+2*i}:{G+2*i+1}]")
            else:
                for i in range(8): e.append(f"v_mul_f32 v{U+i}, v{U+i}, v{G+i}")
            o = TE + (u & 1)*4
            for i in range(4): e.append(f"v_cvt_pk_bf16_f32 v{o+i}, v{U+2*i}, v{U+2*i+1}")
            if LT: e.append(f"s_cmp_ge_u32 s{S_NT}, {LT}\ns_cbranch_scc1 {name}_ns{lab_id()}")
            if "nohst" not in abl: e.append(f"buffer_store_dwordx4 v[{o}:{o+3}], v{V_ST}, s[{SRD_WS}:{SRD_WS+3}], s{S_E2} offen offset:{(u&1)*1024}" + SC)
            if LT: e[-1] = e.pop(-2) + "\n" + e[-1] + f"\n{name}_ns{lid[0]}:"
            if u & 1 and u < 7: e.append(f"s_add_u32 s{S_E2}, s{S_E2}, 2048")
        else:
            if u % 2 == 0:
                e += [f"s_add_u32 s4, s{S_Q}, {u>>1}", "s_and_b32 s4, s4, 3", f"s_add_u32 s4, s4, s{S_E2}", "s_lshl_b32 s4, s4, 16", f"s_add_u32 s4, s4, s{S_E3}"]
            for blk in range(2):
                R = acc(u, 2*blk)
                if pk:
                    for i in range(4): e.append(f"v_pk_mul_f32 v[{R+2*i}:{R+2*i+1}], v[{R+2*i}:{R+2*i+1}], s[{S_E0}:{S_E1}]")
                else:
                    for i in range(8): e.append(f"v_mul_f32 v{R+i}, s{S_E0}, v{R+i}")
                o = TE + 8 + blk*4
                for i in range(4): e.append(f"v_cvt_pk_bf16_f32 v{o+i}, v{R+2*i}, v{R+2*i+1}")
                e.append(f"buffer_store_dwordx4 v[{o}:{o+3}], v{V_ST if blk == 0 else V_ST2}, s[{SRD_WS}:{SRD_WS+3}], s4 offen offset:{(u&1)*1024}" + ("" if "qplain" in abl and (not merged or "wbl2" in abl) else SC))
        return e
    def epi_setup(role):
        TE = WF + 16
        e = [f"v_lshlrev_b32 v{V_ST}, 4, v0",
             f"s_lshl_b32 s4, s{S_MT}, 3", f"s_lshl_b32 s5, s{S_WM}, 2", f"s_add_u32 s{S_E2}, s4, s5"]
        if role == "F":
            e += [f"s_lshl_b32 s5, s{S_NT}, 2", f"s_add_u32 s5, s5, s{S_WN}", "s_lshl_b32 s5, s5, 6", f"s_add_u32 s4, s5, s{S_E2}",
                  f"s_lshl_b32 s{S_E2}, s4, 11", f"s_mov_b32 s{S_E0}, {hx(f2u(-LOG2E))}", f"s_mov_b32 s{S_E1}, {hx(f2u(-LOG2E))}"]
        else:
            e += [f"s_lshl_b32 s7, s{S_Q}, 3", f"s_add_u32 s7, s7, s{S_WN}", "s_lshl_b32 s7, s7, 11", f"s_add_u32 s{S_E3}, s7, {hx(WS_Q)}",
                  f"s_mov_b32 s{S_E0}, {hx(f2u(QSCALE))}", f"s_mov_b32 s{S_E1}, {hx(f2u(QSCALE))}", f"v_add_u32 v{V_ST2}, 0x2000, v{V_ST}"]
        return e
    def epi_kv(role):
        TE = WF + 16
        e = [f"s_add_u32 s5, s{S_E2}, s{S_Q}", "s_lshl_b32 s5, s5, 12", f"s_and_b32 s6, s{S_WN}, 1"]
        cv = [f"v_cvt_pk_bf16_f32 v{TE+4+i}, v{KVA+2*i}, v{KVA+2*i+1}" for i in range(4)]
        if role == "K":
            e += ["s_lshl_b32 s6, s6, 3", "s_add_u32 s5, s5, s6", f"s_add_u32 s5, s5, {hx(WS_KV)}"] + cv
            e += [f"buffer_store_dwordx2 v[{TE+4}:{TE+5}], v{V_ST}, s[{SRD_WS}:{SRD_WS+3}], s5 offen" + SCM,
                  f"buffer_store_dwordx2 v[{TE+6}:{TE+7}], v{V_ST}, s[{SRD_WS}:{SRD_WS+3}], s5 offen offset:1024" + SCM]
        else:
            e += ["s_lshl_b32 s6, s6, 10", "s_add_u32 s5, s5, s6", f"s_add_u32 s5, s5, {hx(WS_KV+2048)}"] + cv
            e += [f"buffer_store_dwordx4 v[{TE+4}:{TE+7}], v{V_ST}, s[{SRD_WS}:{SRD_WS+3}], s5 offen" + SCM]
        return e

    def early_w(o, role):
        lab = f"{name}_{role}_dbg"
        o(f"""
        s_load_dwordx2 s[{SRD_K}:{SRD_K+1}], s[0:1], 64
        s_load_dwordx2 s[{SRD_V}:{SRD_V+1}], s[0:1], 88
        s_mov_b32 s{SRD_K+2}, 0x700000
        s_mov_b32 s{SRD_V+2}, 256
        s_mov_b32 s{SRD_V+3}, 0x20000
        v_lshrrev_b32 v9, 3, v0
        v_bfe_u32 v10, v0, 1, 2
        v_lshrrev_b32 v11, 4, v0
        v_xor_b32 v10, v10, v11
        v_lshlrev_b32 v9, 11, v9
        v_lshl_add_u32 v9, v10, 5, v9
        v_and_b32 v10, 1, v0
        v_lshl_add_u32 v9, v10, 4, v9
        s_and_b32 s4, s2, 1
        s_lshl_b32 s4, s4, 3
        s_lshr_b32 s5, s2, 5
        s_add_u32 s4, s4, s5
        s_lshl_b32 s4, s4, 7
        s_lshl_b32 s5, s{S_WN}, 14
        s_add_u32 s5, s5, s4
        v_add_u32 v6, s5, v9
        v_add_u32 v7, 0x10000, v6
        v_add_u32 v8, 0x20000, v6
        s_lshl_b32 s6, s{S_WN}, 10
        s_add_u32 s6, s6, {hx(20*4096)}
        v_lshlrev_b32 v9, 2, v0
        s_waitcnt lgkmcnt(0)
        """)
        o(f"buffer_load_dword v10, v9, s[{SRD_V}:{SRD_V+3}], 0 offen sc1")
        for n in range(10):
            o(f"s_add_u32 m0, s6, {n*4096}" if n else "s_mov_b32 m0, s6")
            o(f"s_mov_b32 s7, {hx((n//3)*3*65536)}")
            o(f"buffer_load_dwordx4 v{6 + n % 3}, s[{SRD_K}:{SRD_K+3}], s7 offen lds")
    def stage(o, lq, role, half, par, first=False, dW_on=True, dX_on=True, pf_on=True, nxt_reads=True, vm=None, bar=True, last=False, tail=None, gvm=1, w2pf=False, xstop=False, dbg=False, cpf2=False):
        cur, nxt = par, 1-par
        kv = role != "F"
        C = half == "C"
        fill = {}
        def put(slot, t):
            txt = t[0] if isinstance(t, tuple) else t
            if "nolds" in abl and txt.startswith("ds_"): return
            fill.setdefault(slot, []).append(t)
        put(0, rd_x(role, cur, 3, 0)); put(1, rd_x(role, cur, 3, 1))
        for u in range(4):
            put(8*u+8, rd_x(role, cur, u+4, 0)); put(8*u+9, rd_x(role, cur, u+4, 1))
        if C:
            put(2 if last else 26, (f"ds_read_b32 v{V_GX}, v{V_GA} offset:{0 if role == 'F' else cur*XSZ}", ("g",)))
        if nxt_reads:
            if role == "F":
                put(34, f"s_cmp_eq_u32 s{S_XT}, s{S_XT2}")
                put(34, f"s_cselect_b32 s{S_D2}, {hx(-2*XSZ)}, s{S_C32}")
                put(35, f"v_add_u32 v{V_X0}, s{S_D2}, v{V_X0}")
                put(36, f"v_add_u32 v{V_X1}, s{S_D2}, v{V_X1}")
                if C: put(37, f"v_add_u32 v{V_GA}, s{S_D2}, v{V_GA}")
                put(62, f"s_add_u32 s{S_XT}, s{S_XT}, s{S_D2}")
            for u in range(3):
                put(8*u+40, rd_x(role, nxt, u, 0)); put(8*u+41, rd_x(role, nxt, u, 1))
            wslots = [42,43,44,45,46,47,50,51,52,53,54,55,58,59,60,61]
            for n, (s, kh) in enumerate(WORDER):
                put(wslots[2*n], rd_w(nxt, nxt, s, kh, 0)); put(wslots[2*n+1], rd_w(nxt, nxt, s, kh, 1))
            if kv and not ("skipkv" in abl and dW_on):
                ks_ = (48, 49, 56, 57) if "kve" in abl else (62, 62, 63, 63)
                put(ks_[0], rd_kv(nxt, 0, 0)); put(ks_[1], rd_kv(nxt, 0, 1)); put(ks_[2], rd_kv(nxt, 1, 0)); put(ks_[3], rd_kv(nxt, 1, 1))
        dl = []; NUP = NUPQ if kv else NUPF + (1 if WL else 0)
        if not C:
            if kv and dW_on and not ("ckv" in abl): dl += dKVl(cur)
            if dW_on: dl += dWl(cur)
            if pf and pf_on and not kv: dl += [pfl0()] + PFL[1:]
            if dX_on and not (cx and role == "F"): dl += dXl(0 if role == "F" else cur*XSZ)[:8 - (CQ if kv else 0)]
            for n, g in enumerate(dl[NUP:]):
                put(40 + 2*n, g[0])
                for t in g[1:]: put(41 + 2*n, t)
            if first and role == "F" and not cx:
                for n, g in enumerate(dXl(2*XSZ)):
                    put(2 + 3*n, g[0])
                    for t in g[1:]: put(3 + 3*n, t)
        if last:
            off = 0
            if C and "oldg" in abl:
                ga = gate_acc(0)
                put(6, ("WAIT", ("g",)))
                for n, t in enumerate(ga): put(6 + n//4, t)
                off = 9
            es = epi_setup(role)
            for n, t in enumerate(es): put(off + n//(6 if off else 3), t)
            if kv:
                for n, t in enumerate(epi_kv(role)): put(18 + n//3, t)
            if C and "oldg" not in abl and ("ilv" in abl or (kv and "ilvQ" in abl)): put(14, "s_waitcnt vmcnt(0)")
            for u in range(7 if ("ilv" in abl or (kv and "ilvQ" in abl)) else 0):
                e = epi_group(role, u, 'nopk' not in abl)
                per = -(-len(e)//(8 if u < 6 else 5))
                for n, t in enumerate(e): put(8*u+11 + (1 if u == 0 else 0) + n//per, t)
        if last and not C and not ("ilv" in abl or (kv and "ilvQ" in abl)): put(0, "s_setprio 1" if "hiC" not in abl else "s_nop 0")
        if tail:
            for t in tail: put(63, t)
        def need(tags):
            if any(t in lq.q for t in tags): o(f"s_waitcnt lgkmcnt({lq.need(tags)})")
        def emit(t):
            if isinstance(t, tuple):
                if t[0] == "WAIT": need([t[1]])
                else: o(t[0]); lq.push(t[1])
            else: o(t)
        n = 0
        for u in range(8):
            if u == 5 and bar:
                lq.need(lq.q)
                if C:
                    o("s_waitcnt lgkmcnt(0)")
                    if "glow" in abl: o("s_setprio 0")
                    for t in gate_acc(gvm)[:(1 if (kv and "nogq" in abl) else 99)]: o(t)
                    o(f"buffer_load_dword v{V_GW}, v{V_GO}, s[{SRD_G}:{SRD_G+3}], s{S_GK} offen")
                    o(f"s_add_u32 s{S_GK}, s{S_GK}, 128")
                    if cpf2:
                        lab = f"{name}_{role}_pc2"
                        o(f"""
                        s_getpc_b64 s[4:5]
                        {lab}:
                        v_lshlrev_b32 v{V_GT}, 7, v0
                        s_lshl_b32 s6, s{S_WN}, 13
                        v_add_u32 v{V_GT}, s6, v{V_GT}
                        v_min_u32 v{V_GT}, {name}_{role}_last-{lab}, v{V_GT}
                        global_load_dword v{V_PD}, v{V_GT}, s[4:5]
                        """)
                    if merged and w2pf and "cpf3" in abl:
                        lab = f"{name}_{role}_pc3"
                        o(f"""
                        s_cmp_ge_u32 s2, 16
                        s_cbranch_scc1 {lab}n
                        s_getpc_b64 s[4:5]
                        {lab}:
                        s_add_u32 s4, s4, {name}_fin-{lab}
                        s_addc_u32 s5, s5, 0
                        v_lshlrev_b32 v{V_GT}, 7, v0
                        s_lshl_b32 s6, s{S_WN}, 13
                        v_add_u32 v{V_GT}, s6, v{V_GT}
                        v_min_u32 v{V_GT}, k2_kernel_end-{name}_fin, v{V_GT}
                        global_load_dword v{V_PD}, v{V_GT}, s[4:5]
                        {lab}n:
                        """)
                    if merged and first and "touch" in abl:
                        o(f"""
                        s_lshl_b32 s4, s{S_MT}, 3
                        s_add_u32 s4, s4, s{S_Q}
                        s_lshl_b32 s4, s4, 12
                        s_add_u32 s4, s4, {hx(WS_KV)}
                        v_and_b32 v{V_GT}, 15, v0
                        v_lshlrev_b32 v{V_GT}, 7, v{V_GT}
                        v_bfe_u32 v{V_GT+1}, v0, 4, 1
                        v_lshl_add_u32 v{V_GT}, v{V_GT+1}, 14, v{V_GT}
                        v_add_u32 v{V_GT}, s4, v{V_GT}
                        s_lshl_b32 s4, s{S_MT}, 5
                        s_add_u32 s4, s4, s{S_NT}
                        s_lshl_b32 s4, s4, 6
                        s_add_u32 s4, s4, {hx(WS_GATE)}
                        v_mov_b32 v{V_GT+1}, s4
                        v_cmp_gt_u32 vcc, {32 if kv else 0}, v0
                        s_cmp_lg_u32 s{S_WAVE}, 1
                        s_cbranch_scc1 {name}_{role}_nt
                        v_cndmask_b32 v{V_GT}, v{V_GT+1}, v{V_GT}, vcc
                        buffer_load_dword v{V_GT+1}, v{V_GT}, s[{SRD_WS}:{SRD_WS+3}], 0 offen sc1
                        {name}_{role}_nt:
                        """)
                    if merged and first:
                        o(f"v_mov_b32 v{V_PD}, 0\nbuffer_store_dword v{V_PD}, v{V_P}, s[{SRD_WS}:{SRD_WS+3}], 0 offen sc1")
                    if merged and dbg:
                        lab = f"{name}_{role}_nb"
                        o(f"""
                        s_sub_u32 s{S_D}, s{S_D}, 1
                        s_cmp_lg_u32 s{S_D}, 0
                        s_cbranch_scc1 {lab}
                        v_mov_b32 v{V_GT}, 1
                        v_mov_b32 v{V_GT+1}, 0
                        s_mov_b64 exec, 1
                        buffer_store_byte v{V_GT}, v{V_GT+1}, s[{SRD_K}:{SRD_K+3}], s2 offen sc1
                        s_mov_b64 exec, -1
                        {lab}:
                        """)
                    if cx and role == "F" and dW_on: burst(o, dXc())
                    if CQ and kv:
                        if first: cq_setup(o)
                        else:
                            burst(o, (dKVc(nxt) if "ckv" in abl else []) + dXl(nxt*XSZ)[8-CQ:]); o("s_waitcnt vmcnt(0)")
                else:
                    o(f"s_waitcnt vmcnt({vm}) lgkmcnt(0)")
                if C and "glow" in abl: o("s_setprio 1")
                if "nobar" not in abl: o("s_barrier")
                if stamp and not C:
                    o(f"s_memtime s[4:5]\ns_waitcnt lgkmcnt(0)\ns_mov_b32 m0, s{ST+15}\nv_writelane_b32 v13, s4, m0\ns_add_u32 s{ST+15}, s{ST+15}, 1")
                if not C: burst(o, dl[:NUP])
                if not C and merged and w2pf: early_w(o, role)
                if C and w2pf and "swap14" in abl: o("s_setprio 0")
                if not C and w2pf and "swap14" in abl: o("s_setprio 2")
            for c in range(4):
                s = c if u % 2 == 0 else 3-c
                for e in range(2):
                    kh = e if c % 2 == 0 else 1-e
                    need([("W", cur, s, kh), ("x", u, kh)])
                    d = acc(u, s)
                    cc = "0" if (first and e == 0) else f"v[{d}:{d+3}]"
                    o(f"v_mfma_f32_16x16x32_bf16 v[{d}:{d+3}], {vr(wf(cur,s,kh),4)}, {vr(xf(u,kh),4)}, {cc}")
                    if kv and u < 2 and c == 3 and e == 1 and not ("skipkv" in abl and not first and not last):
                        for k2 in range(2):
                            need([("kv", k2)])
                            d = KVA + u*4
                            cc = "0" if (first and k2 == 0) else f"v[{d}:{d+3}]"
                            w = vr(KVW+k2*4, 4); x = vr(xf(u, k2), 4)
                            if role == "K": o(f"v_mfma_f32_16x16x32_bf16 v[{d}:{d+3}], {w}, {x}, {cc}")
                            else: o(f"v_mfma_f32_16x16x32_bf16 v[{d}:{d+3}], {x}, {w}, {cc}")
                    for t in fill.get(n, []): emit(t)
                    n += 1
        if last:
            ilv = "ilv" in abl or (kv and "ilvQ" in abl)
            if not (ilv and kv): stp(o, 12)
            if C and not ilv and "oldg" not in abl: o("s_waitcnt vmcnt(0)")
            if C and not ilv and "hiC" not in abl: o("s_setprio 0")
            if ilv or "noshare" in abl:
                if ilv: o("s_nop 7")
                for u in range(7 if ilv else 0, 8):
                    for t in epi_group(role, u): o(t)
                if C:
                    stp(o, 6)
                    o(f"s_cmp_ge_u32 s{S_WAVE}, 4\ns_cbranch_scc1 {name}_fin")
                    for t in gate_fin(): o(t)
            elif C: o(f"s_branch {name}_{role}_epi")
            else:
                if "lowL" in abl: o("s_setprio 0")
                o.lab(f"{name}_{role}_epi")
                for u in range(8):
                    for t in epi_group(role, u, not ('nopk' in abl and u < NPK)): o(t)
                stp(o, 6)
                o(f"s_cmp_ge_u32 s{S_WAVE}, 4\ns_cbranch_scc1 {name}_{role}_nogate")
                for t in gate_fin(): o(t)
                o.lab(f"{name}_{role}_nogate")

    for role in "FKV":
      for half in "CL":
        kv = role != "F"; C = half == "C"
        rn = f"{name}_{role}{half}"
        a.raw(f"{rn}:")
        lq = LQ(15); pro_nt[0] = True
        if not C:
            if role == "F": a(f"s_add_u32 s{S_XT2}, s{S_XT2}, s{S_XT}")
            if kv and "kv0e" not in abl: dKV(a, 0)
            if "w1e" not in abl: dW(a, 1)
            if pf and not kv: p_setup(a)
            pre = NE if (pf and not kv and "epre" in abl) else 0
            burst(a, [pfl0() for _ in range(pre)])
            a(f"s_waitcnt vmcnt({8+pre})")
        if C and cx and role == "F": cx_setup(a)
        stp(a, 12)
        a("s_barrier")
        stp(a, 10)
        if not C:
            if kv: dKV(a, 1)
            dX(a, XSZ)
            if pf and not kv and "epre" not in abl: burst(a, [pfl0() for _ in range(NE)])
        pro = []; pro_nt[0] = False
        wi = iter([rd_w(0, 0, s, kh, j) for (s, kh) in WORDER for j in range(2)])
        for u in range(3):
            if kv and "kve" in abl and u > 0: pro += [rd_x(role, 0, u, 0), rd_kv(0, u-1, 0), rd_x(role, 0, u, 1), rd_kv(0, u-1, 1)]
            else: pro += [rd_x(role, 0, u, 0), rd_x(role, 0, u, 1)]
            pro += [next(wi) for _ in range(6 if u < 2 else 4)]
        if kv and "kve" not in abl: pro += [rd_kv(0, 0, 0), rd_kv(0, 0, 1), rd_kv(0, 1, 0), rd_kv(0, 1, 1)]
        for t in pro: a(t[0]); lq.push(t[1])
        a(f"s_mov_b32 s{S_CNT}, {6 if kv else 5}")
        vm = 0 if kv else (0 if cx else 8) + NPF
        gvm = 0
        stp(a, 4); stp(a, 5, True)
        stage(a, lq, role, half, 0, first=True, vm=(0 if kv else (0 if cx else 8) + (NE if pf and 'epre' not in abl else 0)), gvm=0)
        a.raw(".p2align 6")
        a.raw(f"{rn}_loop:")
        b1 = Asm(); q0 = list(lq.q)
        if kv:
            stage(b1, lq, role, half, 1, vm=vm, gvm=gvm, dbg=True, tail=[f"s_cmp_eq_u32 s{S_CNT}, 0", f"s_cbranch_scc1 {rn}_tail"])
            q1 = list(lq.q)
            stage(b1, lq, role, half, 0, vm=vm, gvm=gvm, tail=[f"s_sub_u32 s{S_CNT}, s{S_CNT}, 1", f"s_branch {rn}_loop"])
            assert lq.q == q0
            a.l += b1.l
            a.raw(f"{rn}_tail:")
            lq.q = q1
        else:
            stage(b1, lq, role, half, 1, vm=vm, gvm=gvm, dbg=True)
            stage(b1, lq, role, half, 0, vm=vm, gvm=gvm, xstop=True, tail=[f"s_sub_u32 s{S_CNT}, s{S_CNT}, 1", f"s_cbranch_scc0 {rn}_loop"])
            assert lq.q == q0
            a.l += b1.l
            stage(a, lq, role, half, 1, vm=vm, gvm=gvm, dX_on=False, pf_on=False, cpf2=("cpf13" in abl))
        stage(a, lq, role, half, 0, dW_on=False, dX_on=False, pf_on=False, vm=0, gvm=gvm, w2pf=True, cpf2=("cpf14" in abl or (kv and "cpf13" in abl)))
        stp(a, 11)
        sh = "share15" in abl and ("ilv" in abl or (kv and "ilvQ" in abl))
        if sh and not C:
            a(f"s_branch {name}_{role}_s15")
            a.lab(f"{name}_{role}_last")
            continue
        if sh: a.lab(f"{name}_{role}_s15")
        stage(a, lq, role, half, 1, dW_on=False, dX_on=False, nxt_reads=False, bar=False, last=True)
        stp(a, 6); stp(a, 7, True)
        if not C: a.lab(f"{name}_{role}_last")
        a(f"s_branch {name}_fin")
    a.raw(f"{name}_fin:")
    if stamp:
        T = 96
        a("s_waitcnt vmcnt(0)")
        stp(a, 13); stp(a, 14, True)
        a(f"""
        s_lshl_b32 s4, s2, 3
        s_add_u32 s4, s4, s{S_WAVE}
        s_lshl_b32 s4, s4, 6
        s_add_u32 s4, s4, {hx(0x1E00000)}
        s_mov_b64 exec, -1
        v_mov_b32 v14, 0
        """)
        for i, (r, rel) in enumerate([(4,1),(6,1),(13,1),(2,0),(14,0),(0,0),(5,0),(7,0),(8,1),(9,1),(10,1),(11,1),(12,1)]):
            if rel: a(f"s_sub_u32 s{ST+r}, s{ST+r}, s{ST}")
            a(f"v_mov_b32 v{T+i}, s{ST+r}")
        a(f"v_lshlrev_b32 v15, 2, v0\ns_add_u32 s5, s4, 0x40000\ns_mov_b64 exec, 0xffff\nbuffer_store_dword v13, v15, s[{SRD_WS}:{SRD_WS+3}], s5 offen")
        a("s_mov_b64 exec, 1")
        for i in range(4):
            a(f"buffer_store_dwordx4 v[{T+4*i}:{T+4*i+3}], v14, s[{SRD_WS}:{SRD_WS+3}], s4 offen offset:{16*i}")
    if merged:
        if stamp: a("s_mov_b64 exec, -1")
        flag_addrs(a, 96, 97, False)
        a(f"""
        s_cmp_lg_u32 s{S_WAVE}, 4
        s_cbranch_scc1 {name}_dbg_ok
        s_mov_b32 s5, 0x20000
        s_waitcnt vmcnt(18)
        {name}_dbg:
        v_cmp_ne_u32 vcc, 0x01010101, v10
        s_sub_u32 s5, s5, 1
        s_cbranch_scc1 {name}_dbg_ok
        s_cbranch_vccz {name}_dbg_ok
        buffer_load_dword v10, v9, s[{SRD_V}:{SRD_V+3}], 0 offen sc1
        s_waitcnt vmcnt(0)
        s_branch {name}_dbg
        {name}_dbg_ok:
        s_mov_b32 s60, s{S_NT}
        """)
        return a.text()
    a.raw(f"{name}_end:")
    a("s_endpgm")
    return a.text()

if __name__ == "__main__":
    import sys
    stamp = "stamp" in sys.argv
    s = "; @launch kernel=k1_kernel grid=(256,1,1) block=(512,1,1) lds=163840\n"
    s += '.amdgcn_target "amdgcn-amd-amdhsa--gfx950"\n.text\n' + gen_k1(stamp=stamp, abl=sys.argv[2:]) + kernel_desc("k1_kernel")
    open(sys.argv[1], "w").write(s)
```

```python
from common import *

RW = 30
PROG = 122880
CNT_LDS = PROG + 2048
KVB = 131072
K2_LDS = 163840

S_WAVE, S_W = 3, 33
SRD_WS, SRD_WD, SRD_WO, SRD_OUT = 8, 12, 16, 20
S_MI, S_NI, S_MT32 = 34, 35, 36
S_CNT = 37
S_HK, S_WK, S_WM, S_WEND, S_WW, S_KVK, S_KVM, S_RD = 38, 39, 40, 41, 42, 43, 44, 45
S_T = 46
S_NEED, S_CU, S_NEED2, S_P1, S_P2 = 58, 57, 59, 61, 62
ST = 70
def m16(d, x, y, c=True): return f"v_mfma_f32_16x16x32_bf16 {vr(d,4)}, {vr(x,4)}, {vr(y,4)}, " + (vr(d,4) if c is True else ("0" if c is False else vr(c,4)))

def gen_k2(name="k2_kernel", stamp=False, abl=(), merged=False):
    a = Asm()
    def stp(o, i, real=False):
        if stamp:
            o(f"{'s_memrealtime' if real else 's_memtime'} s[4:5]\ns_waitcnt lgkmcnt(0)\ns_mov_b32 s{ST+i}, s4")
    prioA = 1; prioG = 0; HD = 10; FLAGU = 106; GP2 = 0; GPU_ = 96; W2U = 40; PI = 0; SLP = 0; OB = 2; OS = 1
    for x in abl:
        if x.startswith("pa"): prioA = int(x[2:])
        if x.startswith("pg"): prioG = int(x[2:])
        if x.startswith("fu"): FLAGU = int(x[2:])
        if x.startswith("ob"): OB = int(x[2:])
        if x.startswith("os") and x[2:].isdigit(): OS = int(x[2:])
        if x.startswith("wu"): W2U = int(x[2:])
        if x.startswith("pi"): PI = int(x[2:])
        if x.startswith("sl"): SLP = int(x[2:])
        if x.startswith("gp"): GP2 = int(x[2:])
        if x.startswith("gu"): GPU_ = int(x[2:])
    nosync = "nosync" in abl
    PRE = merged and "pre" in abl
    if PRE: abl = list(abl) + ["kv4"]
    GOFF = 3 if PRE else 0
    SC1 = " sc1" if merged else ""
    SCK = "" if "kplain" in abl else SC1
    if merged: a.raw(f"{name}:"); abl = list(abl) + ["nocpf"]
    else: a.raw(f".globl {name}\n.p2align 8\n.type {name},@function\n{name}:")
    if stamp: a(f"s_memtime s[{ST}:{ST+1}]\ns_memrealtime s[{ST+2}:{ST+3}]")
    a(f"""
    s_load_dwordx2 s[24:25], s[0:1], 96
    s_load_dwordx2 s[26:27], s[0:1], 64
    s_load_dwordx2 s[28:29], s[0:1], 32
    s_load_dwordx2 s[30:31], s[0:1], 80
    """)
    CW = 8
    for x in abl:
        if x.startswith("cw"): CW = int(x[2:])
    if "nocpf" not in abl:
        a(f"""
        s_cmp_ge_u32 s2, {CW}
        s_cbranch_scc1 {name}_nocpf
        s_getpc_b64 s[4:5]
        {name}_pc:
        s_sub_u32 s4, s4, {name}_pc-{name}
        s_subb_u32 s5, s5, 0
        v_lshlrev_b32 v2, 7, v0
        v_min_u32 v3, k2_kernel_end-{name}, v2
        global_load_dword v255, v3, s[4:5]
        {name}_nocpf:
        """)
    a(f"""
    """)
    if not merged:
        a(f"""
        s_cmp_ge_u32 s2, 256
        s_cbranch_scc1 {name}_end
        v_lshrrev_b32 v1, 6, v0
        v_and_b32 v0, 63, v0
        v_readfirstlane_b32 s{S_WAVE}, v1
        """)
    a(f"""
    s_and_b32 s4, s2, 7
    {"s_xor_b32 s4, s4, 1" if "xflip" in abl else ""}
    s_lshr_b32 s5, s2, 3
    s_lshr_b32 s6, s4, 1
    s_lshl_b32 s6, s6, 2
    s_and_b32 s7, s5, 3
    s_add_u32 s{S_MI}, s6, s7
    s_and_b32 s4, s4, 1
    s_lshl_b32 s4, s4, 3
    s_lshr_b32 s5, s5, 2
    s_add_u32 s{S_NI}, s4, s5
    s_and_b32 s{S_W}, s{S_WAVE}, 3
    s_lshl_b32 s4, s{S_MI}, 2
    s_add_u32 s{S_MT32}, s4, s{S_W}
    s_mov_b32 s{SRD_WS+2}, {hx(WS_SIZE)}
    s_mov_b32 s{SRD_WS+3}, 0x20000
    v_lshlrev_b32 v1, 4, v0
    s_cmp_ge_u32 s{S_WAVE}, 4
    s_cbranch_scc1 {name}_G
    """)
    VL = 1; VKV = 2
    VG = 4
    VT = 6
    SEL = 12
    Q = 16
    S = 32
    P = 64
    O = 80
    Ls = 112
    K = 128
    V = 144
    CB = 160
    MX = 176
    VSIG, VCHK, VONE, VCNT = 186, 187, 188, 189
    if prioA: a(f"s_setprio {prioA}")
    a(f"""
    s_lshl_b32 s4, s{S_MT32}, 5
    s_lshl_b32 s5, s{S_NI}, 1
    s_add_u32 s4, s4, s5
    s_lshl_b32 s4, s4, 11
    s_add_u32 s{S_T}, s4, {hx(WS_Q)}
    s_lshl_b32 s5, s{S_NI}, 7
    s_add_u32 s5, s5, s{S_MT32}
    s_lshl_b32 s5, s5, 11
    s_add_u32 s{S_T+1}, s5, {hx(WS_O)}
    s_add_u32 s{S_T+10}, s{S_T+1}, 0x20000
    s_lshl_b32 s{S_T+2}, s{S_MT32}, 8
    s_add_u32 s{S_T+2}, s{S_T+2}, {hx(WS_GATE)}
    v_and_b32 v{VT}, 15, v0
    v_lshlrev_b32 v{VT}, 3, v{VT}
    v_add_u32 v{VKV}, {hx(KVB)}, v{VL}
    s_waitcnt lgkmcnt(0)
    s_mov_b32 s{SRD_WS}, s24
    s_mov_b32 s{SRD_WS+1}, s25
    """)
    VGA = 3
    def g_loads():
        for i in range(2): a(f"buffer_load_dword v{VG+i}, v{VGA}, s[{SRD_WS}:{SRD_WS+3}], s{S_T+2} offen offset:{128*i}" + SC1)
    a(f"v_mov_b32 v{VGA}, v{VT}")
    def a_loads():
        for i in range(4): a(f"buffer_load_dwordx4 {vr(Q+4*i,4)}, v{VL}, s[{SRD_WS}:{SRD_WS+3}], s{S_T} offen offset:{1024*i}" + SC1)
        if not merged: g_loads()
    if PRE: pass
    elif merged: a("s_waitcnt vmcnt(0)\ns_barrier")
    else: a_loads()
    a(f"""
    v_and_b32 v{VT+1}, 3, v0
    v_cmp_eq_u32 vcc, 0, v{VT+1}
    v_mov_b32 v{VT+2}, 0x3f803f80
    s_mov_b32 s{S_CNT}, 7
    v_cndmask_b32 v{SEL}, 0, v{VT+2}, vcc
    v_cndmask_b32 v{SEL+1}, 0, v{VT+2}, vcc
    v_cndmask_b32 v{SEL+2}, 0, v{VT+2}, vcc
    v_cndmask_b32 v{SEL+3}, 0, v{VT+2}, vcc
    s_lshl_b32 s4, s{S_W}, 8
    s_add_u32 s4, s4, {hx(PROG+1024)}
    v_lshl_add_u32 v{VSIG}, v0, 2, s4
    v_lshlrev_b32 v{VCHK}, 8, v{VT+1}
    v_add_u32 v{VCHK}, {hx(PROG)}, v{VCHK}
    v_mov_b32 v{VONE}, 1
    s_mov_b32 s{S_NEED}, 0
    s_mov_b32 s{S_NEED2}, {2+GOFF}
    v_mov_b32 v{VT+2}, 0
    ds_write_b32 v{VSIG}, v{VT+2 if PRE else VONE}
    """)
    for r in list(range(P+8, P+16)) + list(range(O, O+48)) + list(range(V+8, V+16)): a(f"v_mov_b32 v{r}, 0")
    if PRE:
        a(f"""
        v_and_b32 v{VT}, 31, v0
        v_lshlrev_b32 v{VT}, 2, v{VT}
        v_mov_b32 v{VT+2}, {hx(CNT_LDS+8)}
        s_and_b32 s6, s2, {NREP-1}
        s_lshl_b32 s6, s6, 7
        s_add_u32 s6, s6, {hx(WS_FQ)}
        s_lshl_b32 s4, s{S_W}, 11
        s_add_u32 s{S_KVK}, s4, {hx(WS_KV)}
        s_add_u32 s{S_KVM}, s4, {hx(KVB)}
        s_mov_b32 s7, 0x20000
        s_waitcnt vmcnt(0) lgkmcnt(0)
        s_barrier
        s_cmp_lg_u32 s{S_W}, 0
        s_cbranch_scc1 {name}_A_q1
        {name}_A_q0:
        buffer_load_dword v{VT+1}, v{VT}, s[{SRD_WS}:{SRD_WS+3}], s6 offen sc1
        s_waitcnt vmcnt(0)
        v_cmp_eq_u32 vcc, 0, v{VT+1}
        s_sub_u32 s7, s7, 1
        s_cbranch_scc1 {name}_A_q0ok
        s_cbranch_vccnz {name}_A_q0
        {name}_A_q0ok:
        ds_write_b32 v{VT+2}, v{VONE}
        s_branch {name}_A_qok
        {name}_A_q1:
        ds_read_b32 v{VT+1}, v{VT+2}
        s_waitcnt lgkmcnt(0)
        v_cmp_eq_u32 vcc, 0, v{VT+1}
        s_nop 4
        s_cbranch_vccz {name}_A_qok
        s_sleep 1
        s_branch {name}_A_q1
        {name}_A_qok:
        """)
        stp(a, 8)
        for c in range(4):
            a(f"s_add_u32 m0, s{S_KVM}, {8192*c}\ns_add_u32 s4, s{S_KVK}, {8192*c}")
            a(f"buffer_load_dwordx4 v{VL}, s[{SRD_WS}:{SRD_WS+3}], s4 offen{SCK} lds")
            a(f"buffer_load_dwordx4 v{VL}, s[{SRD_WS}:{SRD_WS+3}], s4 offen offset:1024{SCK} lds")
            if c == 0: a_loads()
        a(f"""
        s_waitcnt vmcnt(0)
        ds_add_u32 v{VSIG}, v{VONE}
        {name}_A_s:
        ds_read_b32 v{VT+1}, v{VCHK} offset:1024
        s_waitcnt lgkmcnt(0)
        v_cmp_eq_u32 vcc, 0, v{VT+1}
        s_nop 4
        s_cbranch_vccnz {name}_A_s
        """)
        stp(a, 9)
    else:
        if merged:
            a("s_barrier"); a_loads()
        stp(a, 8)
        a("s_waitcnt lgkmcnt(0)\ns_barrier")
        stp(a, 9)
    lq = LQ(15)
    def rdK(o, t, u):
        o(f"ds_read_b128 {vr(K+(t&1)*8+u*4,4)}, v{VKV} offset:{((t >> 1) & 3)*8192 + (t & 1)*4096 + u*1024}"); lq.push(("K", t & 1))
    def rdV(o, t, s):
        o(f"ds_read_b128 {vr(V+(t&1)*8+s*4,4)}, v{VKV} offset:{((t >> 1) & 3)*8192 + (t & 1)*4096 + 2048 + s*1024}"); lq.push(("V", t & 1))
    def need(o, tags):
        if any(t in lq.q for t in tags): o(f"s_waitcnt lgkmcnt({lq.need(tags)})")
    def qk(h, par, c=False):
        return [m16(S+16*h+8*qs+4*u, K+8*par+4*u, Q+8*h+4*qs, c if c is False else c+8*h+4*qs) for (u, qs) in ((0,0),(0,1),(1,1),(1,0))]
    def pv(h, par):
        f = lambda s, qs: m16(O+16*h+8*qs+4*s, V+8*par+4*s, P+8*h+4*qs)
        g = lambda qs: m16(Ls+8*h+4*qs, SEL, P+8*h+4*qs)
        if "fakech" in abl:
            ff = lambda d, s, qs: m16(O+16*h+8*d+4*par, V+8*par+4*s, P+8*h+4*qs)
            gg = lambda qs: m16(Ls+8*h+4*par, SEL, P+8*h+4*qs)
            return [ff(0,0,0), ff(0,1,1), ff(1,1,0), ff(1,0,1), gg(1), gg(0)]
        return [f(0,0), g(0), f(1,0), f(1,1), g(1), f(0,1)]
    rdK(a, 0, 0); rdK(a, 0, 1); rdK(a, 1, 0); rdK(a, 1, 1)
    a("s_waitcnt vmcnt(0)")
    need(a, [("K", 0)])
    for t in qk(0, 0): a(t)
    a("s_nop 7")
    stp(a, 4); stp(a, 5, True)
    SEQS = {
     "t1": "M e M e e M e M e e c c M e M e e M e M e c c M e M e c e e c e c c",
     "t2": "M e e M e e M e c c M e e M e c c M e e M e e M e c M e c M e e c c",
     "t3": "M e M e M e M e M e M e M e M e M e M e e e c c c e e c c e e c c c",
     "t6": "M e M e e M e M e e c c M e M e e c M e M e c c M e M e e c e c c",
     "t7": "M e e M e e M e e M e e c c M e e M e c c M e e M e c M e M e c c c",
     "t4": "M e M e e e M e M e c c c M e M e e M e M e c c M e M e c e e e c c",
     "t5": "M e M e M e M e e e c c c M e M e M e e e c c M e M e M e e c e c c",
    }
    seqn = "t1"
    for x in abl:
        if x in SEQS: seqn = x
    slow = Asm()
    def phase(o, t, h):
        b = 1-h
        tq = t if h == 0 else t+1
        tv = t-1 if h == 0 else t
        mf = qk(b, tq & 1) + pv(b, tv & 1)
        Sa, Pa = S+16*h, P+8*h
        e = iter([f"v_exp_f32 v{Sa+i}, v{Sa+i}" for i in range(16)])
        c = iter([f"v_cvt_pk_bf16_f32 v{Pa+i}, v{Sa+2*i}, v{Sa+2*i+1}" for i in range(8)])
        first = (t % 2 == 0 and h == 0); lastp = (t % 2 == 1 and h == 1)
        m = 0
        for x in SEQS[seqn].split():
            if x == "e": o(next(e))
            elif x == "c": o(next(c))
            else:
                if m == (9 if "cm9" in abl else 8) and first and not nosync: o(f"v_cmp_gt_u32 vcc, s{S_NEED}, v{VCNT}")
                o(mf[m])
                if m in (0, 4):
                    if h == 0: rdV(o, t, m >> 2)
                    else: rdK(o, t+2, m >> 2)
                if m == 3 and h == 1: need(o, [("V", t & 1)])
                if m == 9 and h == 0 and not first: need(o, [("K", (t+1) & 1)])
                if m == 7 and first: need(o, [("K", (t+1) & 1), "cnt"])
                if not nosync:
                    if m == 2 and first:
                        o(f"ds_read_b32 v{VCNT}, v{VCHK}"); lq.push("cnt")
                    if m == 9 and first:
                        lab = f"{name}_A_w{t}"
                        o(f"s_cbranch_vccnz {lab}"); o.lab(lab + "r")
                        slow(f"""
                        {lab}:
                        {"s_nop 0" if "asl0" in abl else "s_sleep 1"}
                        ds_read_b32 v{VCNT}, v{VCHK}
                        s_waitcnt lgkmcnt(0)
                        v_cmp_gt_u32 vcc, s{S_NEED}, v{VCNT}
                        s_nop 4
                        s_cbranch_vccnz {lab}
                        s_branch {lab}r
                        """)
                    if m == 6 and lastp:
                        o(f"ds_add_u32 v{VSIG}, v{VONE}"); lq.push("sig")
                    if "kv4" in abl:
                        if m == 7 and lastp: o(f"s_add_u32 s{S_NEED2}, s{S_NEED2}, 1")
                        if m == 8 and lastp: o(f"s_cmp_lt_u32 s{S_NEED2}, {5+GOFF}")
                        if m == 9 and lastp: o(f"s_cselect_b32 s{S_NEED}, 0, s{S_NEED2}")
                    else:
                        if m == 8 and lastp: o(f"s_add_u32 s{S_NEED}, s{S_NEED}, 1")
                        if m == 9 and lastp and t == 1: o(f"s_max_u32 s{S_NEED}, s{S_NEED}, 3")
                m += 1
        assert m == 10 and next(e, None) is None and next(c, None) is None
    tmp = Asm(); lq.q = []
    for t in range(8): phase(tmp, t, 0); phase(tmp, t, 1)
    slow.l = []
    q0 = list(lq.q)
    a.raw(".p2align 6")
    a.raw(f"{name}_A_loop:")
    for t in range(8): phase(a, t, 0); phase(a, t, 1)
    assert lq.q == q0
    if stamp:
        a(f"s_memtime s[4:5]\ns_waitcnt lgkmcnt(0)\ns_mov_b32 m0, s{S_CNT}\nv_writelane_b32 v198, s4, m0")
    if merged:
        a(f"s_cmp_eq_u32 s{S_CNT}, 5\ns_cbranch_scc1 {name}_A_g"); a.lab(f"{name}_A_nog")
        k_ = len(a.l); a.lab(f"{name}_A_g"); g_loads(); a(f"s_branch {name}_A_nog")
        slow.l += a.l[k_:]; del a.l[k_:]
    a(f"s_sub_u32 s{S_CNT}, s{S_CNT}, 1\ns_cbranch_scc0 {name}_A_loop")
    stp(a, 6); stp(a, 7, True)
    if merged: a("s_waitcnt vmcnt(0)")
    else: a("s_nop 0")
    for t in pv(1, 1): a(t)
    a.lab(f"{name}_A_fin")
    PO = K
    a("s_waitcnt lgkmcnt(0)")
    for i in range(4):
        r = S + 2*i
        a(f"v_rcp_f32 v{r}, v{Ls+4*i}\ns_nop 0\nv_mul_f32 v{r}, v{r}, v{VG+(i&1)}")
        for j in range(8): a(f"v_mul_f32 v{S+8+j}, v{O+8*i+j}, v{r}")
        for j in range(4): a(f"v_cvt_pk_bf16_f32 v{PO+4*i+j}, v{S+8+2*j}, v{S+8+2*j+1}")
        a(f"buffer_store_dwordx4 {vr(PO+4*i,4)}, v{VL}, s[{SRD_WS}:{SRD_WS+3}], s{S_T+1 if i < 2 else S_T+10} offen offset:{1024*(i&1)} sc1")
    a(f"s_cmp_eq_u32 s{S_NEED}, 0\ns_cbranch_scc1 {name}_A_sig")
    a(f"v_max3_f32 v{VT}, abs(v{O}), abs(v{O+1}), abs(v{O+2})")
    for i in range(3, 31, 2): a(f"v_max3_f32 v{VT}, v{VT}, abs(v{O+i}), abs(v{O+i+1})")
    a(f"""
    v_max_f32 v{VT}, v{VT}, abs(v{O+31})
    s_mov_b32 s4, {hx(f2u(2.0**-64))}
    s_mov_b32 s5, {hx(f2u(2.0**64))}
    s_mov_b32 s6, {hx(f2u(2.0**120))}
    v_cmp_gt_f32 s[{S_T+4}:{S_T+5}], s6, v{VT}
    """)
    for i in range(4):
        a(f"""
        v_cmp_lt_f32 s[{S_T+6}:{S_T+7}], s4, v{Ls+4*i}
        v_cmp_gt_f32 vcc, s5, v{Ls+4*i}
        s_nop 0
        s_and_b64 s[{S_T+4}:{S_T+5}], s[{S_T+4}:{S_T+5}], s[{S_T+6}:{S_T+7}]
        s_and_b64 s[{S_T+4}:{S_T+5}], s[{S_T+4}:{S_T+5}], vcc
        """)
    a(f"""
    s_cmp_eq_u64 s[{S_T+4}:{S_T+5}], -1
    {"s_branch" if "forcefb" in abl else "s_cbranch_scc0"} {name}_A_fb
    {name}_A_sig:
    """)
    a(f"""
    v_mov_b32 v{VT}, {hx(CNT_LDS)}
    s_lshl_b32 s4, s{S_MI}, 7
    s_lshl_b32 s5, s{S_NI}, 2
    s_add_u32 s4, s4, s5
    s_add_u32 s4, s4, {hx(WS_FLAG)}
    v_mov_b32 v{VT+3}, 0
    s_mov_b64 exec, 1
    s_waitcnt vmcnt(0)
    ds_add_rtn_u32 v{VT+2}, v{VT}, v{VONE}
    s_waitcnt lgkmcnt(0)
    v_readfirstlane_b32 s5, v{VT+2}
    s_nop 1
    s_cmp_lg_u32 s5, 3
    s_cbranch_scc1 {name}_fin
    buffer_store_dword v{VONE}, v{VT+3}, s[{SRD_WS}:{SRD_WS+3}], s4 offen sc1
    s_branch {name}_fin
    """)
    a.l += slow.l
    a.raw(f"{name}_A_fb:")
    a(f"s_waitcnt vmcnt(0)\ns_mov_b32 s{S_NEED}, 0")
    for i in range(4): a(f"v_mov_b32 v{MX+i}, 0xff800000")
    a(f"""
    s_mov_b32 s{S_T+3}, {hx(WS_KV)}
    s_mov_b32 s{S_CNT}, 63
    {name}_A_fb1:
    buffer_load_dwordx4 {vr(K,4)}, v{VL}, s[{SRD_WS}:{SRD_WS+3}], s{S_T+3} offen{SC1}
    buffer_load_dwordx4 {vr(K+4,4)}, v{VL}, s[{SRD_WS}:{SRD_WS+3}], s{S_T+3} offen offset:1024{SC1}
    s_add_u32 s{S_T+3}, s{S_T+3}, 4096
    s_waitcnt vmcnt(0)
    """)
    for h in range(2):
        for t in qk(h, 0): a(t)
    a("s_nop 7")
    for i in range(4):
        for j in range(0, 8, 2): a(f"v_max3_f32 v{MX+i}, v{MX+i}, v{S+8*i+j}, v{S+8*i+j+1}")
    a(f"s_sub_u32 s{S_CNT}, s{S_CNT}, 1\ns_cbranch_scc0 {name}_A_fb1")
    for op in ("v_permlane32_swap_b32", "v_permlane16_swap_b32"):
        for i in range(4): a(f"v_mov_b32 v{VT+i}, v{MX+i}")
        a("s_nop 1")
        for i in range(4): a(f"{op} v{VT+i}, v{MX+i}")
        a("s_nop 1")
        for i in range(4): a(f"v_max_f32 v{MX+i}, v{MX+i}, v{VT+i}")
    for i in range(16): a(f"v_sub_f32 v{CB+i}, 0, v{MX+(i>>2)}")
    for r in range(O, O+48): a(f"v_mov_b32 v{r}, 0")
    a(f"""
    s_mov_b32 s{S_T+3}, {hx(WS_KV)}
    s_mov_b32 s{S_CNT}, 63
    {name}_A_fb2:
    """)
    for i in range(2): a(f"buffer_load_dwordx4 {vr(K+4*i,4)}, v{VL}, s[{SRD_WS}:{SRD_WS+3}], s{S_T+3} offen offset:{1024*i}" + SC1)
    for i in range(2): a(f"buffer_load_dwordx4 {vr(V+4*i,4)}, v{VL}, s[{SRD_WS}:{SRD_WS+3}], s{S_T+3} offen offset:{2048+1024*i}" + SC1)
    a(f"s_add_u32 s{S_T+3}, s{S_T+3}, 4096\ns_waitcnt vmcnt(0)")
    for h in range(2):
        for t in qk(h, 0, CB): a(t)
    a("s_nop 7")
    for i in range(32): a(f"v_exp_f32 v{S+i}, v{S+i}")
    a("s_nop 0")
    for i in range(16): a(f"v_cvt_pk_bf16_f32 v{P+i}, v{S+2*i}, v{S+2*i+1}")
    a("s_nop 1")
    for h in range(2):
        for t in pv(h, 0): a(t)
    a(f"s_sub_u32 s{S_CNT}, s{S_CNT}, 1\ns_cbranch_scc0 {name}_A_fb2\ns_nop 7")
    a(f"s_branch {name}_A_fin")

    VA = 2
    VDW = 6
    V1G = 10
    VT = 14
    VSIG, VCHK, VONE, VCNT, VNEED = 20, 21, 22, 23, 24
    ACC = 32
    WF = 64
    H = 128
    U = 10
    VL2 = 25; V3 = 26; VFA = 27; VFV = 28; VP1 = 29; VP2 = 31; VPD = 9
    def wf(par, e, ns): return WF + par*32 + e*16 + ns*4
    slot = {}
    def hs(n): return slot.get(n, n % HD)
    def hf(n, ts): return H + hs(n)*8 + ts*4
    a.raw(f"{name}_G:")
    if prioG or merged: a(f"s_setprio {prioG}")
    a(f"""
    v_lshrrev_b32 v{VT}, 3, v0
    v_bfe_u32 v{VT+1}, v0, 1, 2
    v_lshrrev_b32 v{VT+2}, 4, v0
    v_xor_b32 v{VT+1}, v{VT+1}, v{VT+2}
    v_lshlrev_b32 v{VT}, 11, v{VT}
    v_lshl_add_u32 v{VT}, v{VT+1}, 5, v{VT}
    v_and_b32 v{VT+1}, 1, v0
    v_lshl_add_u32 v{VT}, v{VT+1}, 4, v{VT}
    s_lshl_b32 s4, s{S_NI}, 7
    s_lshl_b32 s5, s{S_W}, 14
    s_add_u32 s5, s5, s4
    v_add_u32 v{VDW}, s5, v{VT}
    v_add_u32 v{VDW+1}, 0x10000, v{VDW}
    v_add_u32 v{VDW+2}, 0x20000, v{VDW}
    s_lshl_b32 s{S_HK}, s{S_MT32}, 11
    v_add_u32 v{VL2}, 0x20000, v{VL}
    s_mov_b32 s{S_WK}, 0
    s_lshl_b32 s{S_WW}, s{S_W}, 10
    s_mov_b32 s{S_WM}, s{S_WW}
    s_add_u32 s{S_WEND}, s{S_WW}, {hx(RW*4096)}
    s_lshl_b32 s4, s{S_W}, 11
    s_add_u32 s{S_KVK}, s4, {hx(WS_KV)}
    s_add_u32 s{S_KVM}, s4, {hx(KVB)}
    s_mov_b32 s{SRD_WD+2}, 0x700000
    s_mov_b32 s{SRD_WD+3}, 0x20000
    s_mov_b32 s{SRD_WO+2}, 0x200000
    s_mov_b32 s{SRD_WO+3}, 0x20000
    s_mov_b32 s{SRD_OUT+2}, 0x400000
    s_mov_b32 s{SRD_OUT+3}, 0x20000
    s_lshl_b32 s{S_T+2}, s{S_MT32}, 8
    s_add_u32 s{S_T+2}, s{S_T+2}, {hx(WS_GATE+4)}
    s_waitcnt lgkmcnt(0)
    s_mov_b32 s{SRD_WS}, s24
    s_mov_b32 s{SRD_WS+1}, s25
    s_mov_b32 s{SRD_WD}, s26
    s_mov_b32 s{SRD_WD+1}, s27
    """)
    vq = LQ(63); lq = LQ(15); mainflag = {}; mark = {"n": 0}
    ev = {"vm": [], "lg": [], "cert": set(), "free": set(), "pc": set(), "pf": set()}
    def dKV():
        return [f"s_mov_b32 m0, s{S_KVM}", f"s_add_u32 s{S_KVM}, s{S_KVM}, 8192",
                (f"buffer_load_dwordx4 v{VL}, s[{SRD_WS}:{SRD_WS+3}], s{S_KVK} offen{SCK} lds", "vm", "KV"),
                (f"buffer_load_dwordx4 v{VL}, s[{SRD_WS}:{SRD_WS+3}], s{S_KVK} offen offset:1024{SCK} lds", "vm", "KV"),
                f"s_add_u32 s{S_KVK}, s{S_KVK}, 8192", f"s_and_b32 s{S_KVM}, s{S_KVM}, {hx(KVB | 0x7fff)}"]
    def dW3(u0):
        ld = lambda i: (f"buffer_load_dwordx4 v{VDW+i}, s[{SRD_WD}:{SRD_WD+3}], s{S_WK} offen lds", "vm", "W", u0+i)
        return [f"s_mov_b32 m0, s{S_WM}", "NOP", ld(0), f"s_add_u32 m0, s{S_WM}, 4096", "NOP", ld(1), f"s_add_u32 m0, s{S_WM}, 8192",
                f"s_add_u32 s{S_WM}, s{S_WM}, 12288", ld(2), f"s_add_u32 s{S_WK}, s{S_WK}, {hx(3*65536)}",
                f"s_cmp_eq_u32 s{S_WM}, s{S_WEND}", f"s_cselect_b32 s{S_WM}, s{S_WW}, s{S_WM}"]
    def dP():
        if "w2h" not in abl: return []
        return [(f"buffer_load_dword v{VPD}, v{VP1}, s[{SRD_WD}:{SRD_WD+3}], s{S_P1} offen", "vm", "p"), f"s_add_u32 s{S_P1}, s{S_P1}, {hx(12*65536)}",
                (f"buffer_load_dword v{VPD}, v{VP2}, s[{SRD_WO}:{SRD_WO+3}], s{S_P2} offen", "vm", "p"), f"s_add_u32 s{S_P2}, s{S_P2}, {hx(4*65536)}"]
    def dW1(n):
        wo = n >= 112; k = n - 112 if wo else n
        srd = SRD_WO if wo else SRD_WD
        r = [f"s_add_u32 m0, s{S_WW}, {hx(KVB + (n-136)*4096 if ('kvr' in abl and n >= 136) else ((n + R0) % RW)*4096)}", f"s_mov_b32 s{S_WK}, {hx(k*65536)}",
             (f"buffer_load_dwordx4 v{VDW}, s[{srd}:{srd+3}], s{S_WK} offen lds", "vm", "W", n)]
        return r
    def ldH(n, ts, ofrag):
        return (f"buffer_load_dwordx4 {vr(hf(n,ts),4)}, v{VL2 if n & 1 else VL}, s[{SRD_WS}:{SRD_WS+3}], s{S_HK} offen offset:{ts*1024}" + (" sc1" if (ofrag and "oplain" not in abl) or (merged and not ofrag and "hplain" not in abl) else ""), "vm", ("H", hs(n), ts))
    HADD = f"s_add_u32 s{S_HK}, s{S_HK}, 0x40000"
    def rdW(p, ns, j):
        r = wf((p >> 1) & 1, p & 1, ns) + 2*j
        return (f"ds_read_b64_tr_b16 {vr(r,2)}, v{VA+ns} offset:{(p % U)*4096 + j*2048}", "lg", ("W", (p >> 1) & 1, p & 1, ns), p)
    def emit(o, t):
        if t == "NOP": t = "s_nop 0"
        if isinstance(t, tuple) and t[1] == "vm" and mainflag.get("on"):
            if ("noH" in abl or "noO" in abl and "sc1" in t[0]) and t[2][0] == "H": return
            if "noW" in abl and t[2] == "W": return
        if isinstance(t, tuple):
            o(t[0]); (vq if t[1] == "vm" else lq).push(t[2])
            if t[1] == "vm": mark["n"] += 1; ev["vm"].append(t[3] if len(t) > 3 else None)
            else: ev["lg"].append(t[3] if len(t) > 3 else None)
            if len(t) > 3:
                n = t[3]
                if t[1] == "vm":
                    if n >= 136 and "kvr" in abl: assert ev.get("adone")
                    elif n >= RW: assert n - RW in ev["free"], ("W ring overwritten early", n)
                else: assert n in ev["cert"] or "noW" in abl, ("W unit read before certified", n)
        else: o(t)
    N01 = 10 if merged else 9
    R0 = 20 if merged else 0
    def first_loads():
        for t in dKV(): emit(a, t)
        if not merged:
            for t in dW3(0): emit(a, t)
        if not merged:
            for n in range(2):
                for ts in range(2): emit(a, ldH(n, ts, False))
            a(HADD)
        if not merged:
            for t in dW3(3): emit(a, t)
        for t in dKV() + (dKV() + dKV() if "kv4" in abl else []): emit(a, t)
        return len(vq.q)
    if PRE:
        a(f"s_mov_b32 s{S_WK}, {hx(10*65536)}\ns_add_u32 s{S_KVK}, s{S_KVK}, {4*8192}")
        ev["cert"] |= set(range(10))
    elif merged:
        a(f"""
        s_waitcnt vmcnt(0)
        s_barrier
        s_cmp_lg_u32 s{S_W}, 0
        s_cbranch_scc1 {name}_G_nosig
        {"s_cmp_lt_u32 s60, 28" if "wbl2" in abl else ""}
        {"s_cbranch_scc1 " + name + "_G_nowb" if "wbl2" in abl else ""}
        {"buffer_wbl2 sc1" if "wbl2" in abl else ""}
        s_waitcnt vmcnt(0)
        {name}_G_nowb:
        v_mov_b32 v97, 1
        buffer_store_dword v97, v96, s[{SRD_WS}:{SRD_WS+3}], 0 offen sc1
        {name}_G_nosig:
        """)
        stp(a, 15, True)
        a(f"""
        s_mov_b32 s{S_WK}, {hx(10*65536)}
        """)
        ev["cert"] |= set(range(10))
    else: nfirst = first_loads()
    a(f"""
    s_mov_b32 s{SRD_WO}, s28
    s_mov_b32 s{SRD_WO+1}, s29
    s_mov_b32 s{SRD_OUT}, s30
    s_mov_b32 s{SRD_OUT+1}, s31
    v_lshrrev_b32 v{VT}, 2, v0
    v_bfe_u32 v{VT+1}, v0, 3, 2
    v_lshlrev_b32 v{VT}, 7, v{VT}
    v_lshl_add_u32 v{VT}, v{VT+1}, 5, v{VT}
    v_and_b32 v{VT+1}, 3, v0
    v_lshl_add_u32 v{VA}, v{VT+1}, 3, v{VT}
    v_add_u32 v{VA}, {hx(R0*4096)}, v{VA}
    v_xor_b32 v{VA+1}, 32, v{VA}
    v_xor_b32 v{VA+2}, 64, v{VA}
    v_xor_b32 v{VA+3}, 0x60, v{VA}
    v_mov_b32 v{VT}, {hx(CNT_LDS)}
    v_mov_b32 v{VT+1}, 0
    ds_write_b32 v{VT}, v{VT+1}
    {f"ds_write_b32 v{VT}, v{VT+1} offset:8" if PRE else ""}
    s_lshl_b32 s4, s{S_W}, 8
    s_add_u32 s4, s4, {hx(PROG)}
    v_lshl_add_u32 v{VSIG}, v0, 2, s4
    v_mov_b32 v{VONE}, 1
    ds_write_b32 v{VSIG}, v{VT+1 if PRE else VONE}
    v_and_b32 v{VCHK}, 7, v0
    v_lshlrev_b32 v{VCHK}, 8, v{VCHK}
    v_add_u32 v{VCHK}, {hx(PROG)}, v{VCHK}
    v_mov_b32 v{VONE}, 1
    v_bfe_u32 v{VNEED}, v0, 2, 1
    {f"v_mul_i32_i24 v{VNEED}, -4, v{VNEED}" if PRE else f"v_sub_u32 v{VNEED}, 1, v{VNEED}"}
    v_and_b32 v{VT+3}, 15, v0
    v_lshlrev_b32 v{VT+3}, 3, v{VT+3}
    s_mov_b32 s{S_RD}, {hx(R0*4096)}
    v_mov_b32 v{V3}, 3
    s_lshl_b32 s4, s2, 2
    s_add_u32 s4, s4, s{S_W}
    s_lshl_b32 s{S_P2}, s4, 8
    s_mul_i32 s{S_P1}, s4, 768
    s_add_u32 s{S_P1}, s{S_P1}, {hx(W2U*65536)}
    v_min_u32 v{VP1}, 5, v0
    v_lshlrev_b32 v{VP1}, 7, v{VP1}
    v_and_b32 v{VP2}, 1, v0
    v_lshlrev_b32 v{VP2}, 7, v{VP2}
    s_lshl_b32 s4, s{S_MI}, 7
    s_add_u32 s4, s4, {hx(WS_FLAG)}
    v_and_b32 v{VFA}, 15, v0
    v_lshl_add_u32 v{VFA}, v{VFA}, 2, s4
    s_mov_b32 s{S_CU}, {hx(U*4096)}
    """)
    if PRE:
        for i in range(32): a(f"v_mov_b32 v{ACC+i}, 0")
        a(f"""
        v_and_b32 v{VT}, 31, v0
        v_lshlrev_b32 v{VT}, 2, v{VT}
        v_mov_b32 v{VT+2}, {hx(CNT_LDS+4)}
        s_lshr_b32 s4, s{S_MI}, 1
        s_lshl_b32 s6, s4, 7
        s_add_u32 s6, s6, {hx(WS_F1)}
        s_lshl_b32 s5, 1, s60
        s_cmp_eq_u32 s4, s56
        s_cselect_b32 s5, s5, 0
        s_andn2_b32 s{S_T+5}, 0x0fffffff, s5
        s_mov_b32 s7, 0x20000
        s_cmp_lg_u32 s{S_W}, 0
        s_cbranch_scc1 {name}_G_b1
        buffer_load_dword v{VT+1}, v{VT}, s[{SRD_WS}:{SRD_WS+3}], s6 offen sc1
        s_waitcnt vmcnt(0)
        v_cmp_eq_u32 vcc, 0, v{VT+1}
        s_nop 1
        s_and_b32 s4, vcc_lo, s{S_T+5}
        v_mov_b32 v{VT+1}, s4
        ds_write_b32 v{VT+2}, v{VT+1}
        {name}_G_b1:
        s_waitcnt vmcnt(0) lgkmcnt(0)
        s_barrier
        s_cmp_lg_u32 s{S_W}, 0
        s_cbranch_scc1 {name}_G_h1
        v_mov_b32 v97, 1
        buffer_store_dword v97, v96, s[{SRD_WS}:{SRD_WS+3}], 0 offen sc1
        s_cmp_eq_u32 s4, 0
        s_cbranch_scc1 {name}_G_p2ok
        {name}_G_h0:
        buffer_load_dword v{VT+1}, v{VT}, s[{SRD_WS}:{SRD_WS+3}], s6 offen sc1
        s_waitcnt vmcnt(0)
        v_cmp_eq_u32 vcc, 0, v{VT+1}
        s_sub_u32 s7, s7, 1
        s_cbranch_scc1 {name}_G_h0ok
        s_and_b32 s4, vcc_lo, s{S_T+5}
        s_cbranch_scc0 {name}_G_h0ok
        s_sleep 4
        s_branch {name}_G_h0
        {name}_G_h0ok:
        v_mov_b32 v{VT+1}, 0
        ds_write_b32 v{VT+2}, v{VT+1}
        s_branch {name}_G_p2ok
        {name}_G_h1:
        ds_read_b32 v{VT+1}, v{VT+2}
        s_waitcnt lgkmcnt(0)
        v_cmp_ne_u32 vcc, 0, v{VT+1}
        s_nop 4
        s_cbranch_vccz {name}_G_p2ok
        s_sleep 1
        s_branch {name}_G_h1
        {name}_G_p2ok:
        s_waitcnt lgkmcnt(0)
        """)
        stp(a, 15, True); stp(a, 16, True); stp(a, 17, True); stp(a, 8); stp(a, 9)
        for n in range(2):
            for ts in range(2): emit(a, ldH(n, ts, False))
        a(HADD)
    else:
        if merged:
            a(f"""
            v_and_b32 v{VT}, 31, v0
            v_lshlrev_b32 v{VT}, 2, v{VT}
            s_lshr_b32 s6, s{S_MI}, 1
            s_lshl_b32 s6, s6, 7
            s_add_u32 s6, s6, {hx(WS_F1)}
            s_cmp_gt_u32 s{S_W}, {1 if "two" in abl else 0}
            s_cbranch_scc1 {name}_G_p1ok
            s_and_b32 s4, s2, {NREP-1}
            s_lshl_b32 s4, s4, 7
            s_add_u32 s4, s4, {hx(WS_FQ)}
            s_cmp_eq_u32 s{S_W}, 1
            s_cselect_b32 s4, s6, s4
            s_mov_b32 s5, 0x20000
            {name}_G_p1:
            buffer_load_dword v{VT+1}, v{VT}, s[{SRD_WS}:{SRD_WS+3}], s4 offen sc1
            s_waitcnt vmcnt(0)
            v_cmp_eq_u32 vcc, 0, v{VT+1}
            s_sub_u32 s5, s5, 1
            s_cbranch_scc1 {name}_G_p1ok
            s_cbranch_vccz {name}_G_p1ok
            {"s_sleep %d" % SLP if SLP else ""}
            s_branch {name}_G_p1
            {name}_G_p1ok:
            s_waitcnt lgkmcnt(0)
            s_barrier
            """)
            stp(a, 16, True)
            nfirst = first_loads()
            if "two" in abl:
                for n in range(2):
                    for ts in range(2): emit(a, ldH(n, ts, False))
                a(HADD)
            else: a(f"""
            s_cmp_lg_u32 s{S_W}, 0
            s_cbranch_scc1 {name}_G_nh
            buffer_load_dword v{VT+1}, v{VT}, s[{SRD_WS}:{SRD_WS+3}], s6 offen sc1
            v_mov_b32 v{VT+2}, {hx(CNT_LDS+4)}
            s_waitcnt vmcnt(0)
            v_cmp_eq_u32 vcc, 0, v{VT+1}
            s_nop 1
            v_mov_b32 v{VT+1}, vcc_lo
            ds_write_b32 v{VT+2}, v{VT+1}
            {name}_G_nh:
            """)
        for i in range(32): a(f"v_mov_b32 v{ACC+i}, 0")
        stp(a, 8)
        n = len(vq.q) - nfirst; vq.q = vq.q[nfirst:]
        a(f"s_waitcnt vmcnt({n}) lgkmcnt(0)\ns_barrier")
        stp(a, 9)
        ev["cert"] |= set(range(6))
        if merged and "two" in abl: stp(a, 17, True)
        elif merged:
            a(f"""
            v_mov_b32 v{VT+2}, {hx(CNT_LDS+4)}
            ds_read_b32 v{VT+1}, v{VT+2}
            s_mov_b32 s5, 0x20000
            s_waitcnt lgkmcnt(0)
            v_cmp_ne_u32 vcc, 0, v{VT+1}
            s_nop 4
            s_cbranch_vccz {name}_G_p2ok
            {name}_G_p2:
            buffer_load_dword v{VT+1}, v{VT}, s[{SRD_WS}:{SRD_WS+3}], s6 offen sc1
            s_waitcnt vmcnt(0)
            v_cmp_eq_u32 vcc, 0, v{VT+1}
            s_sub_u32 s5, s5, 1
            s_cbranch_scc1 {name}_G_p2ok
            s_cbranch_vccz {name}_G_p2ok
            s_sleep 8
            s_branch {name}_G_p2
            {name}_G_p2ok:
            """)
            stp(a, 17, True)
            for n in range(2):
                for ts in range(2): emit(a, ldH(n, ts, False))
            a(HADD)

    gslow = Asm(); sites = [0]
    def sync_signal(o, big=False, strict=False):
        nq = len(vq.q) if ("len" in abl or "len2" in abl) else 99
        n = min(mark["n"], len(vq.q))
        if "len" in abl or "len2" in abl:
            old = [i for i, t in enumerate(vq.q[:len(vq.q)-n]) if t in (("KV",) if ("len2" in abl and mark.get("kvonly")) else ("KV", "W"))]
            n = len(vq.q) - 1 - max(old) if old else len(vq.q)
        if big: n = min(n, len(vq.q) - 1 - max(i for i, t in enumerate(vq.q) if t == "KV"))
        if strict and "W" in vq.q: n = min(n, len(vq.q) - 1 - max(i for i, t in enumerate(vq.q) if t == "W"))
        vq.q = vq.q[len(vq.q)-n:]
        if n < nq: o(f"s_waitcnt vmcnt({n})")
        mark["n"] = 0
        ev["pc"] = set(ev["vm"][:len(ev["vm"])-len(vq.q)])
        done = ev["lg"][:len(ev["lg"])-len(lq.q)]
        ev["pf"] = {u for u in set(done) if u is not None and done.count(u) >= (4 if "halfL" in abl else 8)}
        if nosync: return
        emit(o, (f"ds_add_u32 v{VSIG}, v{V3 if big else VONE}", "lg", "sig"))
        o(f"v_add_u32 v{VNEED}, {3 if big else 1}, v{VNEED}")
        if big:
            o(f"v_and_b32 v{VCHK}, {hx(~0x400)}, v{VCHK}")
            if GP2: o(f"s_setprio {GP2}")
    CNTRD = (f"ds_read_b32 v{VCNT}, v{VCHK}", "lg", "cnt")
    def sync_check(o):
        ev["cert"] |= ev["pc"]; ev["free"] |= ev["pf"]
        if nosync: return
        if "cnt" in lq.q: o(f"s_waitcnt lgkmcnt({lq.need(['cnt'])})")
        lab = f"{name}_G_w{sites[0]}"; sites[0] += 1
        o(f"v_cmp_gt_i32 vcc, v{VNEED}, v{VCNT}\ns_nop 0\ns_cbranch_vccnz {lab}"); o.lab(lab + "r")
        gslow(f"""
        {lab}:
        {"s_nop 0" if "gsl0" in abl else "s_sleep 2" if "gsl2" in abl else "s_sleep 1"}
        ds_read_b32 v{VCNT}, v{VCHK}
        s_waitcnt lgkmcnt(0)
        v_cmp_gt_i32 vcc, v{VNEED}, v{VCNT}
        s_nop 4
        s_cbranch_vccnz {lab}
        s_branch {lab}r
        """)
    mark["n"] = 0
    NSO = (0, 1, 2, 3)
    for ns in NSO:
        for e in range(2):
            for j in range(2): emit(a, rdW(e, ns, j))
    for n in range(2, 4):
        for ts in range(2): emit(a, ldH(n, ts, False))
    a(HADD)
    for t in ([] if "kv4" in abl else dKV()) + ([] if merged else dW3(6)): emit(a, t)
    GLD = [(f"buffer_load_dword v{V1G+2*ts}, v{VT+3}, s[{SRD_WS}:{SRD_WS+3}], s{S_T+2} offen offset:{128*ts}" + SC1, "vm", "g") for ts in range(2)]
    if not PRE:
        for t in GLD: emit(a, t)
    if "otouch" in abl:
        a(f"""
        s_lshl_b32 s5, s{S_NI}, 7
        s_add_u32 s5, s5, s{S_MT32}
        s_lshl_b32 s5, s5, 11
        s_add_u32 s5, s5, {hx(WS_O)}
        v_and_b32 v{VT}, 15, v0
        v_lshlrev_b32 v{VT}, 7, v{VT}
        v_bfe_u32 v{VT+1}, v0, 4, 1
        v_lshl_add_u32 v{VT}, v{VT+1}, 17, v{VT}
        """)
        emit(a, (f"buffer_load_dword v{VT+1}, v{VT}, s[{SRD_WS}:{SRD_WS+3}], s5 offen sc1", "vm", "c"))
    stp(a, 4); stp(a, 5, True)

    def block(o, n0, par0, nun=U, syncs=(0, 20, 40, 60), extra=None, loads=None, scale_after=None, pre=None, big=None, strict=None, early=None, gsched={}):
        extra = extra or {}; pre = pre or {}
        loads = loads or (lambda n, ts: ldH(n+HD, ts, False))
        fill = {}
        def put(m, t): fill.setdefault(m, []).append(t)
        for pp in range(nun//2):
            p = 2*pp; n = n0 + p; m0 = 16*pp
            if p == U-2:
                put(m0-2, f"s_cmp_eq_u32 s{S_RD}, {hx((RW-U)*4096)}"); put(m0-2, f"s_cselect_b32 s{S_T+1}, {hx(-(RW-U)*4096)}, s{S_CU}")
                put(m0-1, "ADV"); put(m0, f"s_add_u32 s{S_RD}, s{S_RD}, s{S_T+1}")
            if "kvr" in abl and n == 134: put(m0-1, "ADVK")
            if n + 2 < 144:
                i = 0
                for ns in NSO:
                    for e in range(2):
                        for j in range(2):
                            r = rdW(p+2+e + (2*U if False else 0), ns, j)
                            par = (par0 + pp + 1) & 1
                            reg = wf(par, e, ns) + 2*j
                            if not ("halfL" in abl and j == 1): put(m0 + i, (f"ds_read_b64_tr_b16 {vr(reg,2)}, v{VA+ns} offset:{((p+2+e) % U)*4096 + j*2048}", "lg", ("W", par, e, ns), n+2+e))
                            i += 1
            if early and pp in early:
                q = early[pp]
                for i, (e, ts) in enumerate(((0,0),(1,0),(0,1),(1,1))): put(m0 + 1 + i, ldH(q+e, ts, False))
                put(m0 + 4, HADD)
            any_l = False
            for ts in range(2):
                for e in range(2):
                    l = loads(n+e, ts)
                    if l: put(m0 + (8+e if ts == 0 else 15), l); any_l = True
            if any_l: put(m0 + 15, HADD)
        for m in range(8*nun):
            for t in gsched.get(8*n0 + m, []): put(m, t)
        for s_ in syncs:
            if not nosync: put(s_ + 4, CNTRD)
            put(s_ + 7, "CHECK")
        for m, l in extra.items():
            k = m
            for t in l:
                if t == "NOP": k += 1; continue
                put(k, t)
                if isinstance(t, tuple): k += 1
        for pp in range(nun//2):
            p = 2*pp; n = n0 + p; par = (par0 + pp) & 1
            if n in pre: pre[n](o)
            i = 0
            for ts in range(2):
                for c in range(4):
                    ns = c if ts == 0 else 3-c
                    for e0 in range(2):
                        e = e0 if c % 2 == 0 else 1-e0
                        m = 16*pp + i
                        if m in syncs: sync_signal(o, big == m, strict == m)
                        w = []
                        tg = [("H", hs(n+e), ts)]
                        if any(t in vq.q for t in tg): w.append(f"vmcnt({vq.need(tg)})")
                        tg = [("W", par, 0, ns), ("W", par, 1, ns)]
                        if any(t in lq.q for t in tg): w.append(f"lgkmcnt({lq.need(tg)})")
                        if w: o("s_waitcnt " + " ".join(w))
                        if not ("noGM" in abl and mainflag.get("on")):
                            o(m16(ACC + 16*ts + 4*ns, wf(par, e, ns), hf(n+e, ts)))
                        for x in fill.get(m, []):
                            if x == "CHECK": sync_check(o)
                            elif x == "ADVK":
                                for k in range(4): o(f"v_add_u32 v{VA+k}, {hx(KVB - 6*4096 - ((130 + R0) % RW)*4096)}, v{VA+k}")
                            elif x == "ADV":
                                for k in range(4): o(f"v_add_u32 v{VA+k}, s{S_T+1}, v{VA+k}")
                            else: emit(o, x)
                        i += 1
            if scale_after == n+1:
                if "g" in vq.q: o(f"s_waitcnt vmcnt({vq.need(['g'])})")
                o("s_nop 7")
                for i in range(16): o(f"v_pk_mul_f32 {vr(ACC+2*i,2)}, {vr(ACC+2*i,2)}, {vr(V1G+2*(i>>3),2)} op_sel_hi:[1,0]")
                o("s_nop 1")
    mainx = lambda b: {s_+8: ([] if ("kv4" in abl and b == 0 and i == 0) else dKV()) + dW3(N01 + 12*b + 3*i) + (dP() if i == PI else []) for i, s_ in enumerate((0, 20, 40, 60))}
    mainflag['on'] = True
    def lenient_check(b0, b1):
        import re
        def waits(l):
            r = {}; k = 0
            for t in l:
                if "s_waitcnt" in t:
                    for c in ("vmcnt", "lgkmcnt"):
                        m_ = re.search(c + r"\((\d+)\)", t)
                        if m_: r[(k, c)] = int(m_.group(1))
                else: k += 1
            return r, k
        w1, n1 = waits(b1.l); w0, n0_ = waits(b0.l)
        for (k, c), v in w0.items(): assert w1.get((k % n1, c), 99) <= v, ("loop text too lenient", k, c, v)
    nxt = [0]; HT = HD
    def wd(k, gap=4):
        r = []
        for _ in range(k):
            if nxt[0] > 143: break
            r += dW1(nxt[0]) + ["NOP"]*gap; nxt[0] += 1
        return r
    if PRE:
        TAIL0 = 90
        first = {0: 6, 1: 10, 2: 14}
        SY = (0, 20, 40, 60)
        gx = lambda b, kvs: {s_+8: kvs[i] + dW3(N01 + 12*b + 3*i) + (dP() if i == PI else []) for i, s_ in enumerate(SY)}
        block(a, 0, 0, extra=gx(0, [[], [], [], []]), early={0: 4, 1: 8, 2: 12},
              loads=lambda n, ts: ldH(first[n//2] + (n & 1), ts, False) if n < 6 else ldH(n+HD, ts, False))
        block(a, 10, 1, extra=gx(1, [GLD, dKV(), dKV(), dKV()]))
        allkv = lambda: [dKV(), dKV(), dKV(), dKV()]
        keep = list(gslow.l)
        b0 = Asm()
        for b in range(2, 6): block(b0, 10*b, b & 1, extra=gx(b, allkv()))
        gslow.l = keep
        sq = (list(vq.q), list(lq.q), mark["n"])
        b1 = Asm(); block(b1, 60, 0, extra=gx(6, allkv())); block(b1, 70, 1, extra=gx(7, allkv()))
        assert (list(vq.q), list(lq.q), mark["n"]) == sq
        lenient_check(b0, b1)
        a(f"s_mov_b32 s{S_CNT}, 2")
        a.raw(".p2align 6")
        a.raw(f"{name}_G_loop:")
        a.l += b1.l
        a(f"s_sub_u32 s{S_CNT}, s{S_CNT}, 1\ns_cbranch_scc0 {name}_G_loop")
        nxt[0] = N01 + 96
        block(a, 80, 0, syncs=(0, 20, 48), big=20, extra={8: dKV() + wd(3, 1), 28: wd(112 - nxt[0], 1), 56: wd(3, 1)})
    elif "r9" in abl:
        TAIL0 = 70
        first = {0: 6, 1: 10, 2: 14}
        block(a, 0, 0, extra=mainx(0), early={0: 4, 1: 8, 2: 12},
              loads=lambda n, ts: ldH(first[n//2] + (n & 1), ts, False) if n < 6 else ldH(n+HD, ts, False))
        SA, SB_ = (0, 18, 36, 54, 69), (8, 26, 44, 62)
        def body(o, b):
            u = N01 + 12 + 24*b
            block(o, 10+20*b, 1, syncs=SA, extra={s_+8: dKV() + (dW3(u + 3*i) if i < 4 else []) for i, s_ in enumerate(SA)})
            block(o, 20+20*b, 0, syncs=SB_, extra={s_+8: dKV() + dW3(u + 12 + 3*i) for i, s_ in enumerate(SB_)})
        keep = list(gslow.l)
        b0 = Asm(); body(b0, 0)
        gslow.l = keep
        sq = (list(vq.q), list(lq.q), mark["n"])
        b1 = Asm(); body(b1, 1)
        assert (list(vq.q), list(lq.q), mark["n"]) == sq
        a(f"s_mov_b32 s{S_CNT}, 1")
        a.raw(".p2align 6")
        a.raw(f"{name}_G_loop:")
        a.l += b1.l
        a(f"s_sub_u32 s{S_CNT}, s{S_CNT}, 1\ns_cbranch_scc0 {name}_G_loop")
        nxt[0] = N01 + 60
        block(a, 50, 1, syncs=SA, extra={8: dKV() + wd(3, 1), 26: dKV() + wd(3, 1), 44: dKV() + wd(3, 1), 62: dKV() + wd(2, 0), 77: dKV()})
        block(a, 60, 0, syncs=SB_, big=44, extra={16: dKV() + wd(4, 0), 34: dKV() + wd(3, 1), 52: wd(93 - nxt[0], 1), 70: wd(3, 1)})
    elif "r7" not in abl:
        TAIL0 = 80
        first = {0: 6, 1: 10, 2: 14}
        block(a, 0, 0, extra=mainx(0), early={0: 4, 1: 8, 2: 12},
              loads=lambda n, ts: ldH(first[n//2] + (n & 1), ts, False) if n < 6 else ldH(n+HD, ts, False))
        mark["kvonly"] = True
        keep = list(gslow.l); st0 = (list(vq.q), list(lq.q), mark["n"])
        b0 = Asm()
        for b in range(1, 5): block(b0, 10*b, b & 1, extra=mainx(b))
        gslow.l = keep
        sq = (list(vq.q), list(lq.q), mark["n"])
        b1 = Asm(); block(b1, 50, 1, extra=mainx(5)); block(b1, 60, 0, extra=mainx(6))
        assert (list(vq.q), list(lq.q), mark["n"]) == sq
        lenient_check(b0, b1)
        a(f"s_mov_b32 s{S_CNT}, 2")
        a.raw(".p2align 6")
        a.raw(f"{name}_G_loop:")
        a.l += b1.l
        a(f"s_sub_u32 s{S_CNT}, s{S_CNT}, 1\ns_cbranch_scc0 {name}_G_loop")
        mark["kvonly"] = False
        if "cpf2" in abl:
            a(f"""
            s_getpc_b64 s[4:5]
            {name}_pc2:
            s_lshl_b32 s6, s{S_W}, 13
            v_lshl_add_u32 v{VT}, v0, 7, s6
            v_min_u32 v{VT}, {name}_end-{name}_pc2, v{VT}
            """)
            emit(a, (f"global_load_dword v{VT+1}, v{VT}, s[4:5]", "vm", "c"))
        if "hx" in abl:
            HT = 16
            for i, n in enumerate((80, 81, 84, 85, 88, 89)): slot[n] = 10 + i
            for n, m in ((82, 70), (83, 71), (86, 72), (87, 73), (90, 74), (91, 75), (92, 76), (93, 77), (94, 78), (95, 79)): slot[n] = m % HD
            for n in range(96, 144): slot[n] = slot[n-16]
            reg = {70: 82, 72: 86, 74: 90, 76: 92, 78: 94}
            kw = dict(early={0: 80, 1: 84, 2: 88}, loads=lambda n, ts: ldH(reg[n & ~1] + (n & 1), ts, False))
        else: kw = {}
        block(a, 70, 1, syncs=(0, 20, 48), big=20, extra={8: dKV() + dW3(N01+84), 28: dW3(N01+87) + dP(), 56: dW3(N01+90) + dW3(N01+93)}, **kw)

        nxt[0] = N01 + 96
    else:
        TAIL0 = 90
        first = {0: 6, 1: 10, 2: 14}
        k0 = lambda i: [] if ("kv4" in abl and i == 0) else dKV()
        block(a, 0, 0, syncs=(0, 28, 56), extra={8: k0(0) + dW3(N01) + dW3(N01+3), 36: dKV() + dW3(N01+6), 64: dKV() + dW3(N01+9)}, early={0: 4, 1: 8, 2: 12},
              loads=lambda n, ts: ldH(first[n//2] + (n & 1), ts, False) if n < 6 else ldH(n+HD, ts, False))
        def body(o, b):
            u = N01 + 12 + 24*b
            block(o, 10+20*b, 1, syncs=(0, 22, 44, 64), extra={s_+8: dKV() + dW3(u + 3*i) for i, s_ in enumerate((0, 22, 44, 64))})
            block(o, 20+20*b, 0, syncs=(8, 32, 56), extra={16: dKV() + dW3(u+12) + dW3(u+15), 40: dKV() + dW3(u+18), 64: dKV() + dW3(u+21)})
        keep = list(gslow.l)
        b0 = Asm(); body(b0, 0); body(b0, 1)
        gslow.l = keep
        sq = (list(vq.q), list(lq.q), mark["n"])
        b1 = Asm(); body(b1, 2)
        assert (list(vq.q), list(lq.q), mark["n"]) == sq
        a(f"s_mov_b32 s{S_CNT}, 2")
        a.raw(".p2align 6")
        a.raw(f"{name}_G_loop:")
        a.l += b1.l
        a(f"s_sub_u32 s{S_CNT}, s{S_CNT}, 1\ns_cbranch_scc0 {name}_G_loop")
        nxt[0] = N01 + 84
        block(a, 70, 1, syncs=(0, 22, 44, 64), extra={8: dKV() + wd(4, 1), 30: dKV() + wd(101 - nxt[0], 1), 52: dKV() + wd(104 - nxt[0], 1), 72: dKV() + wd(2, 0)})
        block(a, 80, 0, syncs=(8, 32, 56), big=32, extra={16: dKV() + wd(110 - nxt[0], 1), 40: wd(113 - nxt[0], 1), 64: wd(3, 1)})
    mainflag['on'] = False
    stp(a, 6); stp(a, 7, True)
    FLD = (f"buffer_load_dword v{VFV}, v{VFA}, s[{SRD_WS}:{SRD_WS+3}], 0 offen sc1", "vm", "flag")
    def flagwait(o):
        stp(o, 10)
        if "flag" in vq.q: o(f"s_waitcnt vmcnt({vq.need(['flag'])})")
        o(f"""
        v_cmp_ne_u32 vcc, 0, v{VFV}
        s_lshl_b32 s{S_HK}, s{S_MT32}, 11
        s_add_u32 s{S_HK}, s{S_HK}, {hx(WS_O)}
        s_cmp_eq_u64 vcc, -1
        s_cbranch_scc0 {name}_G_poll
        {name}_G_go:
        """)
        gslow(f"""
        {name}_G_poll:
        s_mov_b32 s5, 0x20000
        {name}_G_poll1:
        buffer_load_dword v{VFV}, v{VFA}, s[{SRD_WS}:{SRD_WS+3}], 0 offen sc1
        s_waitcnt vmcnt(0)
        v_cmp_ne_u32 vcc, 0, v{VFV}
        s_sub_u32 s5, s5, 1
        s_cbranch_scc1 {name}_G_go
        s_cmp_eq_u64 vcc, -1
        s_cbranch_scc1 {name}_G_go
        s_sleep 1
        s_branch {name}_G_poll1
        """)
        stp(o, 11)
        def opf():
            o(f"""
            s_and_b32 s4, s{S_NI}, 7
            s_lshl_b32 s4, s4, 2
            s_add_u32 s4, s4, s{S_W}
            s_lshl_b32 s4, s4, 17
            s_lshl_b32 s5, s{S_MI}, 13
            s_add_u32 s4, s4, s5
            s_add_u32 s4, s4, {hx(WS_O)}
            v_lshlrev_b32 v{VT}, 7, v0
            """)
            emit(o, (f"buffer_load_dword v{VT+1}, v{VT}, s[{SRD_WS}:{SRD_WS+3}], s4 offen sc1", "vm", "c"))
        if "opf0" in abl: opf()
        for m in range(112, (FLAGU + HT) if "osch" not in abl else 112 + OB):
            for ts in range(2): emit(o, ldH(m, ts, True))
            if m & 1: o(HADD)
        if "opf1" in abl: opf()
    def tl(n, ts):
        m = n + HT
        if m < 112: return ldH(m, ts, False)
        if n < FLAGU or m > 143 or "osch" in abl: return None
        return ldH(m, ts, True)
    sched = {}
    if "osch" in abl:
        g = 8*FLAGU
        for m in range(112 + OB, 144, 2):
            for (e, ts) in ((0, 0), (1, 0), (0, 1), (1, 1)):
                free = 8*((m - HT) & ~1) + (7 if ts == 0 else 15)
                g = max(g, free)
                sched.setdefault(g, []).append(ldH(m+e, ts, True))
                if (e, ts) == (1, 1): sched[g].append(HADD)
                g += OS
    pre = {FLAGU: flagwait}
    if GP2: pre[GPU_] = lambda o: o(f"s_setprio {prioG}")
    for i, n0 in enumerate(range(60, 144, 10)):
        if n0 < TAIL0: continue
        if stamp: a(f"s_memtime s[4:5]\ns_waitcnt lgkmcnt(0)\nv_writelane_b32 v30, s4, {max(i-2, 0)}")
        if "r7" in abl or "r9" in abl or PRE: ex = {8: wd(n0 + 30 - nxt[0]), 48: wd(n0 + 34 - nxt[0])}
        elif "kvr" not in abl: ex = {8: wd(4 if (merged and n0 == 80) else 5), 48: wd(5)}
        if "kvr" in abl:
            lim = lambda k: wd(min(k, 136) - nxt[0])
            if n0 == 80: ex = {8: lim(110), 48: lim(114)}
            elif n0 == 90:
                a(f"""
                {name}_G_ad:
                ds_read_b32 v{VCNT}, v{VCHK} offset:1024
                s_waitcnt lgkmcnt(0)
                v_cmp_gt_u32 vcc, 33, v{VCNT}
                s_nop 4
                s_cbranch_vccnz {name}_G_ad
                """)
                lq.q = []; ev["adone"] = True
                ex = {8: lim(120), 48: lim(124)}
                k8 = []
                for n_ in range(136, 144): k8 += dW1(n_) + ["NOP"]
                ex[64] = k8
            elif n0 == 100: ex = {8: lim(130), 48: lim(134)}
            elif n0 == 110: ex = {8: lim(136)}
            else: ex = {}
        if n0 <= FLAGU-4 < n0+10: ex[8*(FLAGU-4-n0) + 2] = [FLD]
        sy = (0, 40) if n0 < 120 else ((16,) if n0 == 120 else ())
        block(a, n0, i & 1, nun=min(U, 144-n0), syncs=sy, strict=(16 if n0 == 120 else None), extra=ex, loads=tl, scale_after=111, pre=pre, gsched=sched)
    stp(a, 12)
    a(f"""
    v_and_b32 v{VT}, 15, v0
    v_lshlrev_b32 v{VT}, 11, v{VT}
    v_bfe_u32 v{VT+1}, v0, 4, 1
    v_lshl_add_u32 v{VT}, v{VT+1}, 5, v{VT}
    v_lshrrev_b32 v{VT+1}, 5, v0
    v_lshl_add_u32 v{VT}, v{VT+1}, 4, v{VT}
    v_add_u32 v{VT+1}, 0x8000, v{VT}
    s_lshl_b32 s4, s{S_MT32}, 16
    s_lshl_b32 s5, s{S_NI}, 7
    s_add_u32 s4, s4, s5
    """)
    for ts in (1, 0):
        for p in (1, 0):
            r = WF + (ts*2+p)*4
            for i in range(4): a(f"v_cvt_pk_bf16_f32 v{r+i}, v{ACC+16*ts+8*p+2*i}, v{ACC+16*ts+8*p+2*i+1}")
            a("s_nop 1")
            a(f"v_permlane16_swap_b32 v{r}, v{r+2}\nv_permlane16_swap_b32 v{r+1}, v{r+3}")
            a(f"buffer_store_dwordx4 {vr(r,4)}, v{VT+ts}, s[{SRD_OUT}:{SRD_OUT+3}], s4 offen offset:{64*p}" + (" sc1" if "osc1" in abl else "") + (" nt" if "ont" in abl else ""))
    a(f"s_branch {name}_fin")
    a.l += gslow.l
    a.raw(f"{name}_fin:")
    if stamp:
        T = 220
        a("s_waitcnt vmcnt(0)")
        stp(a, 13); stp(a, 14, True)
        a(f"""
        s_lshl_b32 s4, s2, 3
        s_add_u32 s4, s4, s{S_WAVE}
        s_lshl_b32 s4, s4, 6
        s_add_u32 s4, s4, {hx(0x1E80000)}
        s_mov_b64 exec, -1
        v_mov_b32 v219, 0
        """)
        for i, (r, rel) in enumerate([(4,1),(6,1),(13,1),(2,0),(14,0),(0,0),(5,0),(7,0),(8,1),(9,1),(10,1),(11,1),(12,1),(15,0),(16,0),(17,0)]):
            if rel: a(f"s_sub_u32 s{ST+r}, s{ST+r}, s{ST}")
            a(f"v_mov_b32 v{T+i}, s{ST+r}")
        a(f"v_lshlrev_b32 v218, 2, v0\ns_add_u32 s5, s4, 0x40000\ns_mov_b64 exec, 0xffff\ns_cmp_ge_u32 s{S_WAVE}, 4\ns_cselect_b64 vcc, -1, 0\nv_cndmask_b32 v198, v198, v30, vcc\nbuffer_store_dword v198, v218, s[{SRD_WS}:{SRD_WS+3}], s5 offen")
        a("s_mov_b64 exec, 1")
        for i in range(4):
            a(f"buffer_store_dwordx4 v[{T+4*i}:{T+4*i+3}], v219, s[{SRD_WS}:{SRD_WS+3}], s4 offen offset:{16*i}")
    a.raw(f"{name}_end:")
    a("s_endpgm")
    return a.text()
```
